```python
import torch

def _softmax(x, axis=-1):
    return torch.softmax(x, dim=axis)
def _gelu(x):
    return torch.nn.functional.gelu(x, approximate="tanh")
def _silu(x):
    return torch.nn.functional.silu(x)
def _sigmoid(x):
    return torch.sigmoid(x)
def _layernorm(x, axis=-1, eps=1e-5):
    m = x.mean(dim=axis, keepdim=True)
    v = x.var(dim=axis, keepdim=True, unbiased=False)
    return (x - m) / torch.sqrt(v + eps)
def _scatter_add(tgt, idx, src, axis=0):
    return tgt.clone().index_add_(axis, idx, src)
def _segment_sum(src, seg, n):
    out = torch.zeros((n,) + src.shape[1:], dtype=src.dtype)
    return out.index_add_(0, seg, src)
def _pad(x, pw):
    flat = tuple(v for pair in reversed(pw) for v in pair)
    return torch.nn.functional.pad(x, flat)

kernel_name = 'parallel_sum__linear_kernel_hedgehog__dense_activation_mish__prompt'

def setup_inputs():

    _w = (lambda a: (lambda t: t.to(torch.bfloat16) if t.is_floating_point() else t)(torch.as_tensor(a)))
    def _A_setup():
        B, S, D, H = 1, 2048, 448, 16
        Dh = D // H
        return {
            "x": _w((lambda *s: torch.randn(*s, dtype=torch.bfloat16) * 0.05)(B, S, D)),
            "wqkv": _w((lambda *s: torch.randn(*s, dtype=torch.bfloat16) * 0.2)(D, 3 * D)),
            "w_phi": _w((lambda *s: torch.randn(*s, dtype=torch.bfloat16) * 0.2)(H, Dh, Dh) * (Dh ** -0.5)),
            "wo": _w((lambda *s: torch.randn(*s, dtype=torch.bfloat16) * 0.05)(D, D)),
        }
    _A_in = _A_setup()

    def _B_setup():
        B, S, D, F = 1, 2048, 448, 1792
        return {
            "x": _w((lambda *s: torch.randn(*s, dtype=torch.bfloat16) * 0.05)(B, S, D)),
            "w1": _w((lambda *s: torch.randn(*s, dtype=torch.bfloat16) * 0.8)(D, F) * (D ** -0.5)),
            "b1": _w((lambda *s: torch.randn(*s, dtype=torch.bfloat16) * 0.4)(F)),
            "w2": _w((lambda *s: torch.randn(*s, dtype=torch.bfloat16) * 0.1)(F, D) * (F ** -0.5)),
        }
    _B_in = _B_setup()

    return {
        "A_x": _A_in["x"],
        "A_wqkv": _A_in["wqkv"],
        "A_w_phi": _A_in["w_phi"],
        "A_wo": _A_in["wo"],
        "B_x": _B_in["x"],
        "B_w1": _B_in["w1"],
        "B_b1": _B_in["b1"],
        "B_w2": _B_in["w2"],
    }

def reference(A_x, A_wqkv, A_w_phi, A_wo, B_x, B_w1, B_b1, B_w2):
    def _A_ref(x, wqkv, w_phi, wo):
        B, S, D = x.shape
        H = 16; Dh = D // H
        qkv = (lambda x, *d: x.permute(*d))((x @ wqkv).reshape(B, S, 3, H, Dh), 2, 0, 3, 1, 4)
        q, k, v = qkv[0], qkv[1], qkv[2]
        pq = torch.einsum("bhsd,hdf->bhsf", q, w_phi)
        pk = torch.einsum("bhsd,hdf->bhsf", k, w_phi)
        phi_q = torch.concatenate([_softmax(pq, axis=-1), _softmax(-pq, axis=-1)], axis=-1)
        phi_k = torch.concatenate([_softmax(pk, axis=-1), _softmax(-pk, axis=-1)], axis=-1)
        kv = torch.einsum("bhsf,bhsd->bhfd", phi_k, v)
        z  = torch.einsum("bhsf->bhf", phi_k)
        num = torch.einsum("bhqf,bhfd->bhqd", phi_q, kv)
        den = torch.einsum("bhqf,bhf->bhq", phi_q, z)[..., None] + 1e-6
        o = num / den
        return (lambda x, *d: x.permute(*d))(o, 0, 2, 1, 3).reshape(B, S, D) @ wo

    def _B_ref(x, w1, b1, w2):
        h = torch.einsum("bsd,df->bsf", x, w1) + b1
        sp = torch.log1p(torch.exp(-torch.abs(h))) + torch.where(h > 0, h, torch.zeros_like(h))
        act = h * torch.tanh(sp)
        return torch.einsum("bsf,fd->bsd", act, w2)

    x = A_x
    xn = _layernorm(x, axis=-1)
    return x + _A_ref(xn, A_wqkv, A_w_phi, A_wo) + _B_ref(xn, B_w1, B_b1, B_w2)
```

```python
import re

TRANS = ('v_exp_f32', 'v_log_f32', 'v_rcp_f32', 'v_rsq_f32', 'v_sqrt_f32', 'v_sin_f32', 'v_cos_f32')
RMW = ('v_fmac_f32', 'v_mac_f32', 'v_dot2c_f32_bf16', 'v_fmac_f16', 'v_pk_fmac_f16', 'v_writelane_b32')

_reg_re = re.compile(r'^(v|s|a)(\d+)$')
_rng_re = re.compile(r'^(v|s|a)\[(\d+):(\d+)\]$')


def regs_of(op):
    op = op.strip()
    neg = op.lstrip('-')
    if neg.startswith('|') and neg.endswith('|'):
        neg = neg[1:-1]
    if neg.startswith('abs(') and neg.endswith(')'):
        neg = neg[4:-1]
    m = _reg_re.match(neg)
    if m:
        return [(m.group(1), int(m.group(2)))]
    m = _rng_re.match(neg)
    if m:
        return [(m.group(1), i) for i in range(int(m.group(2)), int(m.group(3)) + 1)]
    if neg == 'vcc':
        return [('s', 106), ('s', 107)]
    if neg == 'vcc_lo':
        return [('s', 106)]
    if neg == 'vcc_hi':
        return [('s', 107)]
    if neg == 'exec':
        return [('s', 126), ('s', 127)]
    if neg == 'exec_lo':
        return [('s', 126)]
    if neg == 'exec_hi':
        return [('s', 127)]
    if neg == 'm0':
        return [('s', 124)]
    if neg == 'scc':
        return []
    return []


def split_ops(rest):
    ops = []
    cur = ''
    depth = 0
    for ch in rest:
        if ch in '[(':
            depth += 1
        if ch in '])':
            depth -= 1
        if ch == ',' and depth == 0:
            ops.append(cur.strip())
            cur = ''
        else:
            cur += ch
    if cur.strip():
        ops.append(cur.strip())
    mods = ''
    if ops:
        last = ops[-1]
        parts = last.split(None, 1)
        if len(parts) == 2:
            ops[-1] = parts[0]
            mods = parts[1]
        elif len(parts) == 1 and (':' in parts[0] and not parts[0].startswith(('v[', 's[', 'a['))):
            pass
    return ops, mods


MFMA_PASSES = {
    'v_mfma_f32_32x32x16_bf16': 8,
    'v_mfma_f32_16x16x32_bf16': 4,
    'v_mfma_f32_4x4x4_16b_bf16': 2,
}


class Ins:
    __slots__ = ('text', 'op', 'ops', 'mods', 'rd', 'wr', 'kind', 'tag', 'passes', 'mf', 'comment', 'waittags', 'raw')

    def __init__(self, text, tag=None, comment=None):
        self.text = text.strip()
        self.tag = tag
        self.comment = comment
        self.waittags = None
        self.raw = False
        parts = self.text.split(None, 1)
        self.op = parts[0]
        rest = parts[1] if len(parts) > 1 else ''
        self.ops, self.mods = split_ops(rest)
        self.rd = []
        self.wr = []
        self.passes = 0
        self.mf = None
        self.classify()

    def classify(self):
        op, ops = self.op, self.ops
        base = op
        for suf in ('_e32', '_e64', '_dpp', '_sdwa'):
            if base.endswith(suf):
                base = base[:-len(suf)]
        R = lambda i: regs_of(ops[i]) if i < len(ops) else []
        allr = lambda a, b=None: [r for o in ops[a:b] for r in regs_of(o)]
        if op.endswith(':') or op.startswith('.'):
            self.kind = 'label'
            return
        if op.startswith('v_mfma'):
            self.kind = 'mfma'
            self.passes = MFMA_PASSES[op]
            self.wr = R(0)
            self.rd = R(1) + R(2) + R(3)
            self.mf = (R(0), R(1), R(2), R(3))
        elif op.startswith('v_'):
            self.kind = 'trans' if base in TRANS else 'valu'
            if base.startswith('v_cmp'):
                self.wr = R(0)
                self.rd = allr(1)
                if base.startswith('v_cmpx'):
                    self.wr = self.wr + regs_of('exec')
            elif base in ('v_permlane32_swap_b32', 'v_permlane16_swap_b32'):
                self.wr = R(0) + R(1)
                self.rd = R(0) + R(1)
            elif base in ('v_add_co_u32', 'v_sub_co_u32', 'v_subrev_co_u32'):
                self.wr = R(0) + R(1)
                self.rd = allr(2)
            elif base in ('v_addc_co_u32', 'v_subb_co_u32'):
                self.wr = R(0) + R(1)
                self.rd = allr(2)
            elif base in ('v_nop',):
                pass
            else:
                self.wr = R(0)
                self.rd = allr(1)
                if base in RMW:
                    self.rd = self.rd + R(0)
                if base == 'v_cndmask_b32' and len(ops) == 3:
                    self.rd = self.rd + regs_of('vcc')
            self.rd = self.rd + regs_of('exec')
        elif op.startswith('ds_'):
            self.kind = 'ds'
            if op.startswith(('ds_read', 'ds_bpermute', 'ds_permute', 'ds_swizzle')):
                self.wr = R(0)
                self.rd = allr(1)
            else:
                self.rd = allr(0)
            self.rd = self.rd + regs_of('exec')
        elif op.startswith(('buffer_', 'global_', 'flat_')):
            self.kind = 'vmem'
            islds = ' lds' in (' ' + self.mods) or op.startswith('global_load_lds')
            if op.startswith(('buffer_wbl2', 'buffer_inv')):
                pass
            elif 'atomic' in op:
                ret = 'sc0' in self.mods.split()
                if op.startswith('buffer_'):
                    self.rd = allr(0)
                    if ret:
                        self.wr = R(0)
                else:
                    if ret:
                        self.wr = R(0)
                        self.rd = allr(1)
                    else:
                        self.rd = allr(0)
            elif 'load' in op:
                if islds:
                    self.rd = allr(0) + regs_of('m0')
                    self.kind = 'vmem'
                    self.mf = 'lds'
                else:
                    self.wr = R(0)
                    self.rd = allr(1)
                    if 'd16' in op:
                        self.rd = self.rd + R(0)
            else:
                self.rd = allr(0)
                self.mf = 'store'
            self.rd = self.rd + regs_of('exec')
        elif op.startswith('s_'):
            if op.startswith(('s_load', 's_buffer_load', 's_memtime', 's_memrealtime')):
                self.kind = 'smem'
                self.wr = R(0)
                self.rd = allr(1)
            elif op in ('s_waitcnt', 's_nop', 's_barrier', 's_endpgm', 's_setprio', 's_sleep', 's_branch') or op.startswith('s_cbranch'):
                self.kind = 'sctl'
            elif op.startswith(('s_cmp', 's_bitcmp')):
                self.kind = 'salu'
                self.rd = allr(0)
            else:
                self.kind = 'salu'
                self.wr = R(0)
                self.rd = allr(1)
                if 'saveexec' in op:
                    self.wr = self.wr + regs_of('exec')
                    self.rd = self.rd + regs_of('exec')
                if op in ('s_addk_i32', 's_mulk_i32', 's_cmovk_i32', 's_cmov_b32', 's_cmov_b64', 's_bitset1_b32', 's_bitset0_b32'):
                    self.rd = self.rd + R(0)
        else:
            raise ValueError('unknown instruction ' + self.text)


def I(text, tag=None, comment=None):
    return Ins(text, tag, comment)


class WaitTag(Ins):
    def __init__(self, tags, comment=None):
        self.text = ''
        self.op = 'waittag'
        self.kind = 'waittag'
        self.ops = []
        self.mods = ''
        self.rd = []
        self.wr = []
        self.tag = None
        self.passes = 0
        self.mf = None
        self.comment = comment
        self.raw = False
        self.waittags = list(tags)


class Drain(Ins):
    def __init__(self, kinds):
        self.text = ''
        self.op = 'drain'
        self.kind = 'drain'
        self.ops = []
        self.mods = ''
        self.rd = []
        self.wr = []
        self.tag = None
        self.passes = 0
        self.mf = None
        self.comment = None
        self.raw = False
        self.waittags = list(kinds)


class Fence(Ins):
    def __init__(self):
        self.text = ''
        self.op = 'fence'
        self.kind = 'fence'
        self.ops = []
        self.mods = ''
        self.rd = []
        self.wr = []
        self.tag = None
        self.passes = 0
        self.mf = None
        self.comment = None
        self.raw = False
        self.waittags = None


def interleave(main, side, start=0, end=None, every=None):
    n = len(main)
    if end is None:
        end = n
    slots = end - start
    out = []
    si = 0
    ns = len(side)
    for i, ins in enumerate(main):
        out.append(ins)
        if start <= i < end:
            k = i - start + 1
            target = (ns * k + slots - 1) // slots if every is None else min(ns, k * every)
            while si < target:
                out.append(side[si])
                si += 1
    out.extend(side[si:])
    return out


class Emitter:
    def __init__(self):
        self.out = []
        self.hist = []
        self.state = 0
        self.vm = []
        self.lg = []
        self.nnop = 0
        self.nins = 0
        self.done_tags = set()
        self.stats = {}

    def _emit_wait(self, vmc=None, lgc=None):
        parts = []
        if vmc is not None:
            vmc = min(vmc, 63)
            parts.append('vmcnt(%d)' % vmc)
            self.vm = self._retire(self.vm, vmc)
        if lgc is not None:
            lgc = min(lgc, 15)
            parts.append('lgkmcnt(%d)' % lgc)
            self.lg = self._retire(self.lg, lgc)
        if parts:
            self._raw('s_waitcnt ' + ' '.join(parts))

    def _retire(self, q, keep):
        if keep >= len(q):
            return q
        for e in q[:len(q) - keep]:
            if e['tag'] is not None:
                self.done_tags.add(e['tag'])
        return q[len(q) - keep:] if keep > 0 else []

    def _raw(self, text, states=1):
        self.out.append('\t' + text)
        self.state += states
        self.nins += 1

    def _need_waits(self, regs):
        regs = set(regs)
        vmc = lgc = None
        for idx, e in enumerate(self.vm):
            if regs & e['wr']:
                c = len(self.vm) - 1 - idx
                vmc = c if vmc is None else min(vmc, c)
        smem_pending = any(e['smem'] for e in self.lg)
        for idx, e in enumerate(self.lg):
            if regs & e['wr']:
                c = len(self.lg) - 1 - idx
                if smem_pending:
                    c = 0
                lgc = c if lgc is None else min(lgc, c)
        return vmc, lgc

    def _hazard(self, ins):
        need = 0
        rd = set(ins.rd)
        wr = set(ins.wr)
        isvalu = ins.kind in ('valu', 'trans')
        base = ins.op
        for p, st in reversed(self.hist):
            age = self.state - st - 1
            if age > 20:
                break
            req = 0
            pw = set(p.wr)
            if p.kind == 'mfma':
                P = p.passes
                D, A, B, C = p.mf
                Dset = set(D)
                if ins.kind == 'mfma':
                    D2, A2, B2, C2 = ins.mf
                    if Dset & (set(A2) | set(B2)):
                        req = max(req, {2: 5, 4: 8, 8: 12}[P])
                    if Dset & set(C2):
                        if C2 == D and ins.passes == P:
                            req = max(req, 2 if P == 2 else 0)
                        else:
                            req = max(req, {2: 4, 4: 6, 8: 10}[P])
                    if Dset & set(D2) and not (C2 == D and ins.passes == P and D2 == D):
                        req = max(req, {2: 5, 4: 8, 8: 12}[P])
                elif ins.kind in ('valu', 'trans', 'ds', 'vmem'):
                    if Dset & (rd | wr):
                        req = max(req, {2: 5, 4: 8, 8: 12}[P])
                    if isvalu and set(C) & wr:
                        req = max(req, {2: 1, 4: 3, 8: 7}[P])
            elif p.kind in ('valu', 'trans'):
                pv = {r for r in pw if r[0] in 'va'}
                ps = {r for r in pw if r[0] == 's'}
                if ins.kind == 'mfma' and pv & rd:
                    req = max(req, 2)
                if ins.kind == 'mfma' and (('s', 126) in ps or ('s', 127) in ps):
                    req = max(req, 4)
                if p.kind == 'trans' and ins.kind == 'valu' and pv & rd:
                    req = max(req, 1)
                if p.kind == 'trans' and ins.kind in ('ds', 'vmem') and pv & rd:
                    req = max(req, 1)
                if isvalu and ps & (rd - {('s', 126), ('s', 127)}):
                    req = max(req, 2)
                if isvalu and base.startswith(('v_readlane', 'v_writelane')) and ps & rd:
                    req = max(req, 4)
                if ins.kind == 'vmem' and ps & rd:
                    req = max(req, 5)
                if base.startswith(('v_readfirstlane', 'v_readlane')) and pv & rd:
                    req = max(req, 1)
                if base.startswith('v_permlane') and pv & rd:
                    req = max(req, 2)
                if ('dpp' in ins.text or 'row_' in ins.mods or 'quad_perm' in ins.mods) and pv & rd:
                    req = max(req, 2)
                if p.op.startswith('v_cmpx'):
                    if base.startswith(('v_readfirstlane', 'v_readlane', 'v_permlane')):
                        req = max(req, 4)
                if (('s', 126) in ps) and ('dpp' in ins.text):
                    req = max(req, 5)
            elif p.kind == 'salu':
                if ('s', 124) in pw and ins.kind == 'vmem' and ins.mf == 'lds':
                    req = max(req, 1)
            elif p.kind == 'vmem' and p.mf == 'store' and ('x4' in p.op or 'x3' in p.op):
                data = set(regs_of(p.ops[0])) if p.op.startswith('buffer_') else set(regs_of(p.ops[1]))
                if data & wr:
                    req = max(req, 2)
            need = max(need, req - age)
        return need

    def nop(self, n):
        while n > 0:
            k = min(n, 16)
            self._raw('s_nop %d' % (k - 1), states=k)
            self.nnop += 1
            n -= k

    def emit(self, ins):
        if isinstance(ins, str):
            ins = Ins(ins)
        if isinstance(ins, (list, tuple)):
            for i in ins:
                self.emit(i)
            return
        k = ins.kind
        if k == 'label':
            self.out.append(ins.text)
            return
        if k == 'waittag':
            vmc = lgc = None
            for t in ins.waittags:
                found = False
                for idx, e in enumerate(self.vm):
                    if e['tag'] == t:
                        c = len(self.vm) - 1 - idx
                        vmc = c if vmc is None else min(vmc, c)
                        found = True
                for idx, e in enumerate(self.lg):
                    if e['tag'] == t:
                        c = len(self.lg) - 1 - idx
                        if any(x['smem'] for x in self.lg):
                            c = 0
                        lgc = c if lgc is None else min(lgc, c)
                        found = True
                if not found and t not in self.done_tags:
                    raise ValueError('waittag %r: never issued' % (t,))
            self._emit_wait(vmc, lgc)
            return
        if k == 'drain':
            vmc = 0 if ('vm' in ins.waittags and self.vm) else None
            lgc = None
            if 'lgkm' in ins.waittags and self.lg:
                lgc = 0
            if 'ldsw' in ins.waittags:
                last = None
                for idx, e in enumerate(self.lg):
                    if e.get('ldsw'):
                        last = idx
                if last is not None:
                    c = len(self.lg) - 1 - last
                    if any(x['smem'] for x in self.lg):
                        c = 0
                    lgc = c if lgc is None else min(lgc, c)
            self._emit_wait(vmc, lgc)
            return
        if k == 'fence':
            need = 0
            for p, st in reversed(self.hist):
                age = self.state - st - 1
                if age > 20:
                    break
                if p.kind == 'mfma':
                    need = max(need, {2: 5, 4: 8, 8: 12}[p.passes] - age)
                elif p.kind in ('valu', 'trans'):
                    need = max(need, (5 if any(r[0] == 's' for r in p.wr) else 2) - age)
                elif p.kind == 'salu':
                    need = max(need, 1 - age)
                elif p.kind == 'vmem' and p.mf == 'store':
                    need = max(need, 2 - age)
            self.nop(need)
            return
        vmc, lgc = self._need_waits(ins.rd + ins.wr)
        if vmc is not None or lgc is not None:
            self._emit_wait(vmc, lgc)
        if ins.op == 's_waitcnt':
            m = re.search(r'vmcnt\((\d+)\)', ins.text)
            if m:
                self.vm = self._retire(self.vm, int(m.group(1)))
            m = re.search(r'lgkmcnt\((\d+)\)', ins.text)
            if m:
                self.lg = self._retire(self.lg, int(m.group(1)))
        n = self._hazard(ins)
        if n > 0:
            self.nop(n)
        self.hist.append((ins, self.state))
        if len(self.hist) > 40:
            self.hist = self.hist[-40:]
        t = ins.text + (('    ; ' + ins.comment) if ins.comment else '')
        if ins.op == 's_nop':
            self._raw(t, states=int(ins.ops[0]) + 1)
        else:
            self._raw(t)
        self.stats[ins.kind] = self.stats.get(ins.kind, 0) + 1
        if k == 'vmem':
            self.vm.append({'tag': ins.tag, 'wr': set(ins.wr), 'smem': False})
            if len(self.vm) > 63:
                self._emit_wait(vmc=62)
        elif k == 'ds':
            self.lg.append({'tag': ins.tag, 'wr': set(ins.wr), 'smem': False, 'ldsw': not ins.op.startswith('ds_read')})
        elif k == 'smem':
            self.lg.append({'tag': ins.tag, 'wr': set(ins.wr), 'smem': True})

    def comment(self, text):
        self.out.append('\t; ' + text)

    def text(self):
        return '\n'.join(self.out) + '\n'


class RegAlloc:
    def __init__(self, kind, start, limit):
        self.kind = kind
        self.next = start
        self.limit = limit
        self.names = {}

    def alloc(self, n=1, align=1, name=None):
        b = (self.next + align - 1) // align * align
        self.next = b + n
        assert self.next <= self.limit, 'out of %s regs (%s)' % (self.kind, name)
        if name:
            self.names[name] = (b, n)
        return b


def vr(b, n=1):
    return 'v%d' % b if n == 1 else 'v[%d:%d]' % (b, b + n - 1)


def sr(b, n=1):
    return 's%d' % b if n == 1 else 's[%d:%d]' % (b, b + n - 1)
```

```python
from asm import *

KBASE = 'parallel_sum__linear_kernel_hedgehog__dense_activation_mish__prompt'
HEADER = open('cdna_kernels/%s.s.ref' % KBASE).read().split('; Override launch geometry')[0]

def kernel_text(label, body, vgpr, agpr=0, sgpr=102):
    acc = (vgpr + 3) // 4 * 4
    nfv = acc + agpr
    return ('.text\n.globl %s\n.p2align 8\n.type %s,@function\n%s:\n%s'
            '.section .rodata,"a"\n.p2align 6\n.amdhsa_kernel %s\n'
            '  .amdhsa_next_free_vgpr %d\n  .amdhsa_next_free_sgpr %d\n  .amdhsa_accum_offset %d\n'
            '  .amdhsa_group_segment_fixed_size 0\n  .amdhsa_kernarg_size 88\n  .amdhsa_user_sgpr_count 2\n'
            '  .amdhsa_user_sgpr_kernarg_segment_ptr 1\n  .amdhsa_system_sgpr_workgroup_id_x 1\n.end_amdhsa_kernel\n'
            % (label, label, label, body, label, nfv, sgpr, acc))

def file_text(launch_lines, kernels):
    return HEADER + ''.join(l + '\n' for l in launch_lines) + '.amdgcn_target "amdgcn-amd-amdhsa--gfx950"\n' + ''.join(kernels)

def srd(e, s, ptr, nbytes):
    e.emit('s_mov_b32 s%d, s%d' % (s, ptr))
    e.emit('s_and_b32 s%d, s%d, 0xffff' % (s + 1, ptr + 1))
    e.emit('s_mov_b32 s%d, 0x%x' % (s + 2, nbytes))
    e.emit('s_mov_b32 s%d, 0x00020000' % (s + 3))
```

```python
from common import *

ACT_BYTES = 64 * 144 * 1024
KVP_OFF = 0x1000000
WS_BYTES = KVP_OFF + 8 * 16 * 8192
RINGA = 114688
MISC = 155648
M_CS = MISC
M_ST = MISC + 4096
LOG2E = 0x3fb8aa3b


def V(b, n=1):
    return vr(b, n)


class K1:
    def __init__(self, label):
        self.e = Emitter()
        self.label = label
        self.sX, self.sW, self.sWS, self.sB = 8, 12, 16, 20
        (self.sWv, self.sT, self.sG, self.sRb, self.sJ, self.sM0x, self.sM0w, self.sXoff) = range(24, 32)
        self.sT0, self.sT1, self.sT2, self.sT3 = 32, 33, 34, 35
        self.sWc = [36, 37, 38]
        self.sWs = 39
        self.sSt = 40
        self.sStS = 41
        self.sM = [42, 44, 46]
        self.sMh = 48
        self.sPi = 50
        self.sK = 51
        self.sW2, self.sB2, self.sDbg = 68, 72, 76
        va = self.va = RegAlloc('v', 1, 256)
        A = va.alloc
        self.xf = A(112, 4)
        self.acc = [A(16, 4), A(16, 4)]
        self.wf = [A(16, 4), A(16, 4)]
        self.vTr = [A() for _ in range(4)]
        self.vOffW = A(); self.vOffS = A()
        self.ones = A(2, 2)
        self.csacc = A(4, 4)
        self.augA = A(4, 4); self.augB = A(4, 4)
        self.vC = A(); self.vCSw = A(); self.vCSr = A(); self.vLane16 = A()
        self.vb1 = [A() for _ in range(4)]
        self.vT0 = A(); self.vT1 = A(); self.vT2 = A(); self.vT3 = A()
        pool = A(24, 4)
        self.pool = pool
        self.sumacc = pool; self.sqacc = pool + 4
        self.vXa = [pool + 8 + i for i in range(4)]
        self.vOffX = [pool + 12, pool + 13]
        self.vSTw = pool + 14; self.vSTr = pool + 15
        self.tE = pool + 16
        self.pk = pool
        self.vTrS = [A(), A()]
        self.rest = va.next

    def E(self, text, tag=None):
        self.e.emit(I(text, tag))

    def emit(self, lst):
        self.e.emit(lst)

    def prologue(self):
        E = self.E; s = self
        E('s_load_dwordx2 s[52:53], s[0:1], 0')
        E('s_load_dwordx4 s[60:63], s[0:1], 8')
        E('s_load_dwordx4 s[56:59], s[0:1], 40')
        E('s_load_dwordx4 s[64:67], s[0:1], 72')
        E('s_cmp_ge_u32 s2, 256')
        E('s_cbranch_scc1 %s_end' % s.label)
        E('v_lshrrev_b32 v%d, 6, v0' % s.vT0)
        E('v_and_b32 v0, 63, v0')
        E('v_readfirstlane_b32 s%d, v%d' % (s.sWv, s.vT0))
        E('s_and_b32 s%d, s2, 7' % s.sT0)
        E('s_lshr_b32 s%d, s2, 3' % s.sT1)
        E('s_and_b32 s%d, s%d, 1' % (s.sT2, s.sT0))
        E('s_lshl_b32 s%d, s%d, 3' % (s.sT2, s.sT2))
        E('s_and_b32 s%d, s%d, 7' % (s.sT3, s.sT1))
        E('s_add_u32 s%d, s%d, s%d' % (s.sRb, s.sT2, s.sT3))
        E('s_lshr_b32 s%d, s%d, 1' % (s.sT2, s.sT0))
        E('s_lshl_b32 s%d, s%d, 2' % (s.sT2, s.sT2))
        E('s_lshr_b32 s%d, s%d, 3' % (s.sT3, s.sT1))
        E('s_add_u32 s%d, s%d, s%d' % (s.sJ, s.sT2, s.sT3))
        E('s_lshl_b32 s%d, s%d, 11' % (s.sM0x, s.sWv))
        E('s_lshl_b32 s%d, s%d, 10' % (s.sM0w, s.sWv))
        E('s_mul_i32 s%d, s%d, %d' % (s.sXoff, s.sRb, 128 * 896))
        E('v_lshrrev_b32 v%d, 3, v0' % s.vT0)
        E('v_and_b32 v%d, 7, v0' % s.vT1)
        E('v_lshrrev_b32 v%d, 4, v0' % s.vT2)
        E('v_xor_b32 v%d, v%d, v%d' % (s.vT2, s.vT1, s.vT2))
        E('v_lshlrev_b32 v%d, 4, v%d' % (s.vT2, s.vT2))
        E('s_lshl_b32 s%d, s%d, 4' % (s.sT0, s.sWv))
        E('v_add_u32 v%d, s%d, v%d' % (s.vOffX[1], s.sT0, s.vT0))
        E('s_movk_i32 s%d, 896' % s.sT1)
        E('v_mad_u32_u24 v%d, v%d, s%d, v%d' % (s.vOffX[0], s.vOffX[1], s.sT1, s.vT2))
        E('v_xor_b32 v%d, 64, v%d' % (s.vOffX[1], s.vOffX[0]))
        E('v_add_u32 v%d, %d, v%d' % (s.vOffX[1], 8 * 896, s.vOffX[1]))
        E('v_lshrrev_b32 v%d, 2, v0' % s.vT2)
        E('v_and_b32 v%d, 4, v%d' % (s.vT2, s.vT2))
        E('v_xor_b32 v%d, v%d, v%d' % (s.vT1, s.vT1, s.vT2))
        E('s_lshl_b32 s%d, s%d, 3' % (s.sT0, s.sWv))
        E('v_add_u32 v%d, s%d, v%d' % (s.vT0, s.sT0, s.vT0))
        E('s_and_b32 s%d, s%d, 3' % (s.sT, s.sWv))
        E('s_lshr_b32 s%d, s%d, 2' % (s.sG, s.sWv))
        srd(s.e, s.sX, 52, 2048 * 896)

    def dma_x(self, c):
        s = self
        for e_ in range(2):
            self.E('s_add_u32 m0, s%d, %d' % (s.sM0x, c * 16384 + e_ * 1024 - c * 128))
            self.E('buffer_load_dwordx4 v%d, s[%d:%d], s%d offen offset:%d lds' % (s.vOffX[e_], s.sX, s.sX + 3, s.sXoff, c * 128), tag=('x', c))

    def dma_w(self, r, c):
        s = self
        out = [I('s_add_u32 m0, s%d, %d' % (s.sM0w, s.wdst(r, c)))]
        if r == 'S':
            out.append(I('buffer_load_dwordx4 v%d, s[%d:%d], s%d offen lds' % (s.vOffS, s.srdW, s.srdW + 3, s.sWs), tag=('w', r, c)))
            out.append(I('s_add_u32 s%d, s%d, %d' % (s.sWs, s.sWs, 128 * s.wstride)))
        else:
            out.append(I('buffer_load_dwordx4 v%d, s[%d:%d], s%d offen lds' % (s.vOffW, s.srdW, s.srdW + 3, s.sWc[r]), tag=('w', r, c)))
            out.append(I('s_add_u32 s%d, s%d, %d' % (s.sWc[r], s.sWc[r], 64 * s.wstride)))
        return out

    def wdst(self, r, c):
        if r == 0: return RINGA + (c % 5) * 8192
        if r == 'S': return RINGA + ((c + 2) % 5) * 8192
        return (r - 1) * 57344 + c * 8192

    def prologue_dma(self):
        for c in range(5):
            self.dma_x(c)
            self.emit(self.dma_w(0, c))
        self.dma_x(5)
        self.dma_x(6)

    def setup_addrs(self):
        E = self.E; s = self
        E('s_lshl_b32 s%d, s%d, 1' % (s.sPi, s.sG))
        E('s_xor_b32 s%d, s%d, s%d' % (s.sPi, s.sPi, s.sT))
        E('v_lshrrev_b32 v%d, 5, v0' % s.vT0)
        E('s_lshl_b32 s%d, s%d, 1' % (s.sT1, s.sPi))
        E('v_add_u32 v%d, s%d, v%d' % (s.vT1, s.sT1, s.vT0))
        E('v_bfe_u32 v%d, v0, 1, 3' % s.vT2)
        E('v_xor_b32 v%d, v%d, v%d' % (s.vT1, s.vT1, s.vT2))
        E('v_lshlrev_b32 v%d, 4, v%d' % (s.vT1, s.vT1))
        E('v_and_b32 v%d, 31, v0' % s.vT2)
        E('v_lshl_add_u32 v%d, v%d, 7, v%d' % (s.vT1, s.vT2, s.vT1))
        E('s_lshl_b32 s%d, s%d, 12' % (s.sT1, s.sT))
        E('v_add_u32 v%d, s%d, v%d' % (s.vXa[0], s.sT1, s.vT1))
        for q in range(1, 4):
            E('v_xor_b32 v%d, %d, v%d' % (s.vXa[q], q << 5, s.vXa[0]))
        E('v_lshlrev_b32 v%d, 4, v0' % s.vLane16)
        E('s_lshl_b32 s%d, s%d, 10' % (s.sT1, s.sG))
        E('s_add_u32 s%d, s%d, %d' % (s.sT1, s.sT1, M_CS))
        E('v_add_u32 v%d, s%d, v%d' % (s.vCSr, s.sT1, s.vLane16))
        E('s_lshl_b32 s%d, s%d, 2' % (s.sT1, s.sT))
        E('v_add_u32 v%d, s%d, v%d' % (s.vCSw, s.sT1, s.vCSr))
        E('s_lshl_b32 s%d, s%d, 10' % (s.sT1, s.sT))
        E('s_add_u32 s%d, s%d, %d' % (s.sT1, s.sT1, M_ST))
        E('v_lshlrev_b32 v%d, 5, v%d' % (s.vT2, s.vT2))
        E('v_add_u32 v%d, s%d, v%d' % (s.vSTr, s.sT1, s.vT2))
        E('s_lshl_b32 s%d, s%d, 4' % (s.sT1, s.sG))
        E('v_lshl_add_u32 v%d, v%d, 3, v%d' % (s.vSTw, s.vT0, s.vSTr))
        E('v_add_u32 v%d, s%d, v%d' % (s.vSTw, s.sT1, s.vSTw))
        E('v_mov_b32 v%d, 0x3f803f80' % s.ones)
        E('v_mov_b32 v%d, 0x3f803f80' % (s.ones + 1))
        E('v_mov_b32 v%d, 0' % (s.augA + 3))
        E('s_mov_b32 s%d, 0x22222222' % s.sM[0]); E('s_mov_b32 s%d, 0x22222222' % (s.sM[0] + 1))
        E('s_mov_b32 s%d, 0xcccccccc' % s.sM[1]); E('s_mov_b32 s%d, 0xcccccccc' % (s.sM[1] + 1))
        E('s_mov_b32 s%d, 0x88888888' % s.sM[2]); E('s_mov_b32 s%d, 0x88888888' % (s.sM[2] + 1))
        E('s_mov_b32 s%d, 0' % s.sMh); E('s_mov_b32 s%d, -1' % (s.sMh + 1))

    def tr_base(self, dst, vcol, spi, base):
        E = self.E; s = self
        E('v_lshrrev_b32 v%d, 5, v0' % s.vT0)
        E('v_lshlrev_b32 v%d, 10, v%d' % (s.vT0, s.vT0))
        E('v_bfe_u32 v%d, v0, 2, 2' % s.vT1)
        E('v_lshl_add_u32 v%d, v%d, 7, v%d' % (s.vT0, s.vT1, s.vT0))
        E('v_lshlrev_b32 v%d, 3, v0' % s.vT1)
        E('v_and_b32 v%d, 64, v%d' % (s.vT1, s.vT1))
        E('v_xor_b32 v%d, v%d, v%d' % (s.vT1, s.vT1, vcol))
        E('v_add_u32 v%d, v%d, v%d' % (s.vT0, s.vT0, s.vT1))
        E('s_lshl_b32 s%d, s%d, 11' % (s.sT1, spi))
        E('s_add_u32 s%d, s%d, %d' % (s.sT1, s.sT1, base))
        E('v_add_u32 v%d, s%d, v%d' % (dst, s.sT1, s.vT0))

    def lane_col(self, dst):
        E = self.E; s = self
        E('v_and_b32 v%d, 3, v0' % dst)
        E('v_lshlrev_b32 v%d, 3, v%d' % (dst, dst))
        E('v_bfe_u32 v%d, v0, 4, 1' % s.vT3)
        E('v_lshl_add_u32 v%d, v%d, 5, v%d' % (dst, s.vT3, dst))

    def rd_w(self, imm, slot, dst):
        s = self
        return [I('ds_read_b64_tr_b16 v[%d:%d], v%d offset:%d' % (dst, dst + 1, s.vTr[slot], imm)),
                I('ds_read_b64_tr_b16 v[%d:%d], v%d offset:%d' % (dst + 2, dst + 3, s.vTr[slot], imm + 512))]

    def rd_x(self, c, slot):
        s = self
        d = s.xf + 16 * c + 4 * slot
        return I('ds_read_b128 v[%d:%d], v%d offset:%d' % (d, d + 3, s.vXa[slot], (c % 4) * 16384))

    def mfma(self, d, a, b, c):
        cs = '0' if c is None else 'v[%d:%d]' % (c, c + 15)
        return I('v_mfma_f32_32x32x16_bf16 v[%d:%d], v[%d:%d], v[%d:%d], %s' % (d, d + 15, a, a + 3, b, b + 3, cs))

    def mfma4(self, d, a, b, first):
        cs = '0' if first else 'v[%d:%d]' % (d, d + 3)
        return I('v_mfma_f32_4x4x4_16b_bf16 v[%d:%d], v[%d:%d], v[%d:%d], %s' % (d, d + 3, a, a + 1, b, b + 1, cs))

    def bump_tr(self, delta, n=4):
        return [I('v_add_u32 v%d, 0x%x, v%d' % (self.vTr[q], delta & 0xffffffff, self.vTr[q])) for q in range(n)]

    def chunk_reads(self, r, c):
        s = self
        buf = s.wf[(7 * r + c) % 2]
        if r == 0:
            imm = (c % 5) * 8192
        else:
            imm = c * 8192
        out = []
        for q in range(4):
            if r == 0:
                out.append(s.rd_x(c, q))
            out += s.rd_w(imm, q, buf + 4 * q)
        return out

    def chunk_mfmas(self, r, c, swap=False):
        s = self
        buf = s.wf[(7 * r + c) % 2]
        acc = s.acc[r % 2]
        out = []
        for q in range(4):
            x = s.xf + 16 * c + 4 * q
            w = buf + 4 * q
            cs = None if (c == 0 and q == 0) else acc
            out.append(s.mfma(acc, x, w, cs) if swap else s.mfma(acc, w, x, cs))
            ex = []
            if r == 0 and q < 2:
                f = (c == 0 and q == 0)
                ex = [s.mfma4(s.sumacc, s.ones, x, f), s.mfma4(s.sqacc, x, x, f),
                      s.mfma4(s.sumacc, s.ones, x + 2, False), s.mfma4(s.sqacc, x + 2, x + 2, False)]
            if q == 0:
                c0 = s.mfma4(s.csacc, s.ones, w, c == 0)
                c1 = s.mfma4(s.csacc, s.ones, w + 2, False)
                if ex:
                    ex = [ex[0], c0, ex[1], ex[2], c1, ex[3]]
                else:
                    ex = [c0]
                    out.append(c0)
                    ex = []
                    out.append(('later', c1))
            out += ex
        res = []
        pend = []
        for it in out:
            if isinstance(it, tuple):
                pend.append(it[1])
            else:
                res.append(it)
                if pend and it.passes == 8:
                    res += pend
                    pend = []
        res += pend
        return res

    def merge(self, main, side):
        return interleave(main, side)

    def barrier(self, tags, drain='lgkm'):
        if tags:
            self.e.emit(WaitTag(tags))
        self.e.emit(Drain([drain]))
        self.E('s_barrier')

    def stats_write(self):
        s = self
        q = s.sqacc
        return [I('v_cndmask_b32 v%d, v%d, v%d, s[%d:%d]' % (q, q, q + 1, s.sM[0], s.sM[0] + 1)),
                I('v_cndmask_b32 v%d, v%d, v%d, s[%d:%d]' % (q + 2, q + 2, q + 3, s.sM[2], s.sM[2] + 1)),
                I('v_cndmask_b32 v%d, v%d, v%d, s[%d:%d]' % (s.sumacc + 1, q, q + 2, s.sM[1], s.sM[1] + 1)),
                I('ds_write_b64 v%d, v[%d:%d]' % (s.vSTw, s.sumacc, s.sumacc + 1))]

    def cs_write(self, r):
        s = self
        return [I('ds_write_b32 v%d, v%d offset:%d' % (s.vCSw, s.csacc, (r % 2) * 2048))]

    def stats_read(self, t):
        s = self
        o = []
        o.append(I('ds_read_b128 v[%d:%d], v%d' % (t, t + 3, s.vSTr)))
        o.append(I('ds_read_b128 v[%d:%d], v%d offset:16' % (t + 4, t + 7, s.vSTr)))
        o.append(I('v_add_f32 v%d, v%d, v%d' % (t, t, t + 2)))
        o.append(I('v_add_f32 v%d, v%d, v%d' % (t + 4, t + 4, t + 6)))
        o.append(I('v_add_f32 v%d, v%d, v%d' % (t + 1, t + 1, t + 3)))
        o.append(I('v_add_f32 v%d, v%d, v%d' % (t + 5, t + 5, t + 7)))
        o.append(I('v_add_f32 v%d, v%d, v%d' % (t, t, t + 4)))
        o.append(I('v_add_f32 v%d, v%d, v%d' % (t + 1, t + 1, t + 5)))
        o.append(I('v_mul_f32 v%d, 0x%x, v%d' % (t, f2u(1.0 / 448), t)))
        o.append(I('v_mul_f32 v%d, v%d, v%d' % (t + 2, t, t)))
        o.append(I('v_fma_f32 v%d, v%d, s%d, -v%d' % (t + 1, t + 1, s.sK, t + 2)))
        o.append(I('v_max_f32 v%d, 0, v%d' % (t + 1, t + 1)))
        o.append(I('v_add_f32 v%d, 0x%x, v%d' % (t + 1, f2u(1e-5), t + 1)))
        o.append(I('v_rsq_f32 v%d, v%d' % (t + 7, t + 1)))
        o.append(I('v_cvt_pk_bf16_f32 v%d, v%d, v%d' % (t + 2, t, t)))
        o.append(I('v_and_b32 v%d, 0xffff0000, v%d' % (t + 2, t + 2)))
        o.append(I('v_sub_f32 v%d, v%d, v%d' % (t + 2, t, t + 2)))
        o.append(I('v_cvt_pk_bf16_f32 v%d, v%d, v%d' % (s.augB, t, t + 2)))
        o.append(I('v_mul_f32 v%d, v%d, v%d' % (t + 1, t + 1, t + 7)))
        o.append(I('v_mul_f32 v%d, 0x%x, v%d' % (s.vC, LOG2E, t + 7)))
        o.append(I('v_cndmask_b32 v%d, v%d, 0, s[%d:%d]' % (t + 1, t + 1, s.sMh, s.sMh + 1)))
        o.append(I('v_cvt_pk_bf16_f32 v%d, v%d, v%d' % (t + 3, t + 1, t + 1)))
        o.append(I('v_and_b32 v%d, 0xffff0000, v%d' % (t + 3, t + 3)))
        o.append(I('v_sub_f32 v%d, v%d, v%d' % (t + 3, t + 1, t + 3)))
        o.append(I('v_cvt_pk_bf16_f32 v%d, v%d, v%d' % (s.augB + 1, t, t + 1)))
        o.append(I('v_cvt_pk_bf16_f32 v%d, v%d, 0' % (s.augB + 2, t + 3)))
        o.append(I('v_mov_b32 v%d, 0' % (s.augB + 3)))
        return o

    def aug_col(self, cs, b1, t, half=False):
        s = self
        o = []
        o.append(I('v_cvt_pk_bf16_f32 v%d, -v%d, -v%d' % (s.augA, cs, cs)))
        o.append(I('v_lshlrev_b32 v%d, 16, v%d' % (t + 1, b1)))
        o.append(I('v_and_b32 v%d, 0xffff0000, v%d' % (t, s.augA)))
        o.append(I('v_add_f32 v%d, v%d, v%d' % (t, cs, t)))
        if half:
            o.append(I('v_mul_f32 v%d, 0.5, v%d' % (t + 1, t + 1)))
        o.append(I('v_cvt_pk_bf16_f32 v%d, -v%d, v%d' % (s.augA + 1, t, t + 1)))
        if half:
            o.append(I('v_lshrrev_b32 v%d, 16, v%d' % (s.augA + 2, t + 1)))
        else:
            o.append(I('v_mov_b32 v%d, v%d' % (s.augA + 2, b1)))
        return o

    def cs_read(self, r, t):
        s = self
        return [I('ds_read_b128 v[%d:%d], v%d offset:%d' % (t, t + 3, s.vCSr, (r % 2) * 2048)),
                I('v_add_f32 v%d, v%d, v%d' % (t, t, t + 1)),
                I('v_add_f32 v%d, v%d, v%d' % (t + 2, t + 2, t + 3)),
                I('v_add_f32 v%d, v%d, v%d' % (t, t, t + 2))]

    def mish(self, src, n, t, pk, stores):
        s = self
        o = []
        G = 4
        for g0 in range(0, n, G):
            a = [src + g0 + i for i in range(G)]
            u = [t + i for i in range(G)]
            w = [t + G + i for i in range(G)]
            for i in range(G): o.append(I('v_mul_f32 v%d, v%d, v%d' % (a[i], a[i], s.vC)))
            for i in range(G): o.append(I('v_exp_f32 v%d, v%d' % (u[i], a[i])))
            for i in range(G): o.append(I('v_fma_f32 v%d, v%d, -0.5, -1.0' % (w[i], u[i])))
            for i in range(G): o.append(I('v_fma_f32 v%d, v%d, v%d, -1.0' % (u[i], u[i], w[i])))
            for i in range(G): o.append(I('v_rcp_f32 v%d, v%d' % (u[i], u[i])))
            for i in range(G): o.append(I('v_fmac_f32 v%d, v%d, v%d' % (a[i], a[i], u[i])))
            for i in range(0, G, 2):
                o.append(I('v_cvt_pk_bf16_f32 v%d, v%d, v%d' % (pk + (g0 + i) // 2, a[i], a[i + 1])))
            if (g0 + G) in stores:
                o += stores[g0 + G]
        return o


import struct
def f2u(x):
    return struct.unpack('<I', struct.pack('<f', x))[0]


def rm(reads, mf, lead=3):
    if not mf:
        return list(reads)
    big = [i for i, m in enumerate(mf) if m.passes == 8]
    out = list(reads[:lead])
    rest = list(reads[lead:])
    n = len(mf)
    return out + interleave(mf, rest, 0, max(1, n - 1))


def round0(s, sched, extra_wait6, swap=False):
    for st in range(7):
        tags = [('x', st), ('w', 0, st)]
        if st == 6:
            tags += extra_wait6
        s.barrier(tags)
        pre = []
        for (r, c) in sched.get(st, []):
            pre += s.dma_w(r, c)
        if st == 4:
            pre = [I('v_add_u32 v%d, 0x10000, v%d' % (s.vXa[q], s.vXa[q])) for q in range(4)] + pre
        reads = s.chunk_reads(0, st)
        mf = s.chunk_mfmas(0, st - 1, swap) if st > 0 else []
        if st == 4:
            s.emit(pre[:4]); pre = pre[4:]
        s.emit(reads[:3])
        s.emit(pre)
        s.emit(rm(reads[3:], mf, lead=2))


def ffn_path(s):
    E = s.E
    s.srdW = s.sW; s.wstride = 3584
    srd(s.e, s.sW, 56, 448 * 3584)
    E('s_sub_u32 s%d, s%d, 8' % (s.sJ, s.sJ))
    E('s_mul_i32 s%d, s%d, 7' % (s.sT0, s.sJ))
    E('s_and_b32 s%d, s%d, 1' % (s.sT1, s.sJ))
    E('s_add_u32 s%d, s%d, s%d' % (s.sT2, s.sT0, s.sT1))
    E('s_lshl_b32 s%d, s%d, 6' % (s.sWc[0], s.sT2))
    E('s_add_u32 s%d, s%d, 128' % (s.sWc[1], s.sWc[0]))
    E('s_add_u32 s%d, s%d, 256' % (s.sWc[2], s.sWc[0]))
    E('s_movk_i32 s%d, 3584' % s.sK)
    E('v_lshlrev_b32 v%d, 4, v%d' % (s.vT2, s.vT1))
    E('v_mad_u32_u24 v%d, v%d, s%d, v%d' % (s.vOffW, s.vT0, s.sK, s.vT2))
    s.prologue_dma()
    E('s_mul_i32 s%d, s%d, 6' % (s.sT1, s.sT1))
    E('s_sub_u32 s%d, s%d, s%d' % (s.sT0, s.sT0, s.sT1))
    E('s_add_u32 s%d, s%d, 6' % (s.sT0, s.sT0))
    E('s_lshl_b32 s%d, s%d, 6' % (s.sWs, s.sT0))
    E('s_lshl_b32 s%d, s%d, 5' % (s.sT1, s.sG))
    E('v_add_u32 v%d, s%d, v%d' % (s.vT0, s.sT1, s.vT0))
    E('v_lshrrev_b32 v%d, 2, v%d' % (s.vT2, s.vT1))
    E('v_lshl_add_u32 v%d, v%d, 5, v%d' % (s.vT0, s.vT2, s.vT0))
    E('v_and_b32 v%d, 3, v%d' % (s.vT2, s.vT1))
    E('v_lshlrev_b32 v%d, 4, v%d' % (s.vT2, s.vT2))
    E('v_mad_u32_u24 v%d, v%d, s%d, v%d' % (s.vOffS, s.vT0, s.sK, s.vT2))
    srd(s.e, s.sB, 58, 1792 * 2)
    E('v_and_b32 v%d, 31, v0' % s.vT2)
    E('v_lshlrev_b32 v%d, 1, v%d' % (s.vT2, s.vT2))
    E('s_add_u32 s%d, s%d, s%d' % (s.sT2, s.sT2, s.sG))
    E('s_lshl_b32 s%d, s%d, 6' % (s.sT1, s.sT2))
    for r in range(3):
        E('buffer_load_ushort v%d, v%d, s[%d:%d], s%d offen offset:%d' % (s.vb1[r], s.vT2, s.sB, s.sB + 3, s.sT1, 128 * r))
    E('buffer_load_ushort v%d, v%d, s[%d:%d], s%d offen' % (s.vb1[3], s.vT2, s.sB, s.sB + 3, s.sWs))
    E('s_lshl_b32 s%d, s%d, 2' % (s.sT1, s.sRb))
    E('s_add_u32 s%d, s%d, s%d' % (s.sT1, s.sT1, s.sT))
    E('s_mul_i32 s%d, s%d, 144' % (s.sT1, s.sT1))
    E('s_lshl_b32 s%d, s%d, 1' % (s.sT2, s.sT2))
    E('s_add_u32 s%d, s%d, s%d' % (s.sSt, s.sT1, s.sT2))
    E('s_lshl_b32 s%d, s%d, 10' % (s.sSt, s.sSt))
    E('s_lshl_b32 s%d, s%d, 1' % (s.sT0, s.sT0))
    E('s_add_u32 s%d, s%d, s%d' % (s.sT0, s.sT0, s.sG))
    E('s_add_u32 s%d, s%d, s%d' % (s.sStS, s.sT1, s.sT0))
    E('s_lshl_b32 s%d, s%d, 10' % (s.sStS, s.sStS))
    srd(s.e, s.sWS, 66, WS_BYTES)
    s.setup_addrs()
    s.lane_col(s.vT2)
    E('s_lshl_b32 s%d, s%d, 6' % (s.sT0, s.sG))
    E('v_add_u32 v%d, s%d, v%d' % (s.vTrS[1], s.sT0, s.vT2))
    s.tr_base(s.vTr[0], s.vTrS[1], s.sPi, RINGA)
    for q in range(1, 4):
        E('v_xor_b32 v%d, %d, v%d' % (s.vTr[q], q << 11, s.vTr[0]))
    E('s_lshr_b32 s%d, s%d, 1' % (s.sT0, s.sPi))
    E('s_lshl_b32 s%d, s%d, 6' % (s.sT0, s.sT0))
    E('v_add_u32 v%d, s%d, v%d' % (s.vTrS[1], s.sT0, s.vT2))
    E('s_and_b32 s%d, s%d, 1' % (s.sT0, s.sT))
    s.tr_base(s.vTrS[0], s.vTrS[1], s.sT0, RINGA)
    E('v_xor_b32 v%d, %d, v%d' % (s.vTrS[1], 1 << 11, s.vTrS[0]))
    E('s_mov_b32 s%d, 0x%x' % (s.sK, f2u(1.0 / 448)))

    sched = {1: [(0, 5), (1, 0), (1, 1)], 2: [(0, 6), (1, 2), (1, 3)], 3: [(1, 4), (1, 5), ('S', 0)],
             4: [(1, 6), (2, 0), ('S', 1)], 5: [(2, 1), (2, 2), ('S', 2)], 6: [(2, 3), (2, 4), ('S', 3)]}
    round0(s, sched, [('w', 1, c) for c in range(2)])
    s.emit(s.bump_tr(-RINGA))
    s.emit(rm(s.chunk_reads(1, 0), s.chunk_mfmas(0, 6)))
    s.emit(s.stats_write() + s.cs_write(0))
    s.emit(rm(s.chunk_reads(1, 1), s.chunk_mfmas(1, 0)))

    def s_reads(u):
        buf = s.wf[(21 + u) % 2]
        out = []
        for ci in (2 * u, 2 * u + 1):
            if ci > 6: continue
            for rho in range(2):
                d = buf + 4 * (2 * (ci % 2) + rho)
                imm = ((u + 2) % 5) * 8192 + (ci % 2) * 4096
                out.append(I('ds_read_b64_tr_b16 v[%d:%d], v%d offset:%d' % (d, d + 1, s.vTrS[rho], imm)))
                out.append(I('ds_read_b64_tr_b16 v[%d:%d], v%d offset:%d' % (d + 2, d + 3, s.vTrS[rho], imm + 512)))
        return out

    def s_mfmas(u):
        buf = s.wf[(21 + u) % 2]
        acc = s.acc[1]
        out = []
        for ci in (2 * u, 2 * u + 1):
            if ci > 6: continue
            for rho in range(2):
                w = buf + 4 * (2 * (ci % 2) + rho)
                x = s.xf + 16 * ci + 4 * rho
                first = (ci == 0 and rho == 0)
                out.append(s.mfma4(s.csacc, s.ones, w, first))
                out.append(s.mfma(acc, w, x, None if first else acc))
                out.append(s.mfma4(s.csacc, s.ones, w + 2, False))
        return out

    for r in (1, 2, 3):
        if r == 1:
            s.barrier([('w', 1, c) for c in range(7)] + [('w', 2, 0), ('w', 2, 1)], 'ldsw')
            pre = s.dma_w(2, 5) + s.dma_w(2, 6)
        elif r == 2:
            s.barrier([('w', 2, c) for c in range(7)] + [('w', 'S', c) for c in range(4)], 'ldsw')
            pre = []
        else:
            s.barrier([], 'ldsw')
            pre = []
        p = r - 1
        t = s.tE
        side = []
        if r == 1:
            side += s.stats_read(t)
        side += s.cs_read(p, t)
        side += s.aug_col(t, s.vb1[p], t + 2)
        accp = s.acc[p % 2]
        side.append(s.mfma(accp, s.augA, s.augB, accp))
        st = []
        for kk in range(2):
            ins = [I('buffer_store_dwordx4 v[%d:%d], v%d, s[%d:%d], s%d offen offset:%d' % (s.pk + 4 * kk, s.pk + 4 * kk + 3, s.vLane16, s.sWS, s.sWS + 3, s.sSt, 1024 * kk))]
            if kk == 1 and p < 2:
                ins.append(I('s_add_u32 s%d, s%d, 4096' % (s.sSt, s.sSt)))
            st.append(ins)
        side += s.mish(accp, 16, t, s.pk, {8: st[0], 16: st[1]})
        main = []
        if r < 3:
            for c in range(1, 7):
                if c < 6:
                    rds = s.chunk_reads(r, c + 1)
                elif r == 1:
                    rds = s.bump_tr(57344) + s.chunk_reads(2, 0)
                else:
                    rds = s_reads(0)
                main += rm(rds, s.chunk_mfmas(r, c), lead=(3 if not (c == 6 and r == 1) else 7))
        else:
            for u in range(1, 4):
                rds = s_reads(u + 1) if u < 3 else []
                main += rm(rds, s_mfmas(u))
        s.emit(pre)
        s.emit(interleave(main, side, 0, len(main) - 4))
        if r < 3:
            s.emit(s.cs_write(r))
            if r == 1:
                s.emit(rm(s.chunk_reads(2, 1), s.chunk_mfmas(2, 0)))
            else:
                s.emit(rm(s_reads(1), s_mfmas(0)))
    t = s.tE
    s.emit(s.aug_col(s.csacc, s.vb1[3], t, half=True))
    acc = s.acc[1]
    s.emit(s.mfma(acc, s.augA, s.augB, acc))
    E('s_lshl_b32 s%d, s%d, 12' % (s.sT0, s.sWv))
    E('v_add_u32 v%d, s%d, v%d' % (s.vT0, s.sT0, s.vLane16))
    E('s_lshl_b32 s%d, s%d, 12' % (s.sT0, s.sT))
    E('s_lshl_b32 s%d, s%d, 11' % (s.sT1, s.sG))
    E('s_add_u32 s%d, s%d, s%d' % (s.sT0, s.sT0, s.sT1))
    E('v_add_u32 v%d, s%d, v%d' % (s.vT1, s.sT0, s.vLane16))
    for q in range(4):
        E('ds_write_b128 v%d, v[%d:%d] offset:%d' % (s.vT0, acc + 4 * q, acc + 4 * q + 3, 1024 * q))
    s.barrier([], 'lgkm')
    a0 = s.acc[0]
    for gp in range(2):
        for q in range(2):
            d = a0 + 8 * gp + 4 * q
            E('ds_read_b128 v[%d:%d], v%d offset:%d' % (d, d + 3, s.vT1, 16384 * gp + 1024 * q))
    for i in range(8):
        E('v_add_f32 v%d, v%d, v%d' % (a0 + i, a0 + i, a0 + 8 + i))
    st = [I('buffer_store_dwordx4 v[%d:%d], v%d, s[%d:%d], s%d offen' % (s.pk, s.pk + 3, s.vLane16, s.sWS, s.sWS + 3, s.sStS))]
    s.emit(s.mish(a0, 8, t, s.pk, {8: st}))


def gen_k1(label, attn=True):
    s = K1(label)
    s.prologue()
    s.E('s_cmp_lt_u32 s%d, 8' % s.sJ)
    s.E('s_cbranch_scc1 %s_attn' % label)
    s.e.emit(Fence())
    save = (list(s.e.lg), list(s.e.vm))
    ffn_path(s)
    s.E('s_endpgm')
    s.e.out.append('%s_attn:' % label)
    s.e.lg, s.e.vm = save
    s.e.hist = []
    if attn:
        import k1_attn
        k1_attn.attn_path(s)
    s.E('%s_end:' % label)
    s.E('s_endpgm')
    return s.e, s.va.next


if __name__ == '__main__':
    import sys
    attn = len(sys.argv) > 1 and sys.argv[1] == 'attn'
    e, nv = gen_k1(KBASE + '_kernel', attn)
    txt = file_text(['; @launch grid=(256,1,1) block=(512,1,1) lds=163840'], [kernel_text(KBASE + '_kernel', e.text(), nv)])
    open('k1only.s', 'w').write(txt)
    print('vgprs', nv, 'instrs', e.nins, 'nops', e.nnop, e.stats)
```

```python
from k1 import *

BIGNEG = 0xf149f2ca


def attn_path(s):
    E = s.E
    A = s.va.alloc
    Id = A(8, 4)
    Id4 = A(2, 2)
    vWp = s.vOffS
    vMx, vN, vZ, vZ2 = s.vb1[0], s.vb1[1], s.vb1[2], s.vb1[3]
    vB1a, vB1b = s.vTrS[0], s.vTrS[1]
    vM2 = A(); vN2 = A()
    kb = s.pool; EE = s.pool + 8
    s.srdW = s.sW2; s.wstride = 2688
    sFlag = 80; sGat = 81; sSpin = 82; sKvp = 83; sMl30 = 84
    srd(s.e, s.sW2, 60, 448 * 2688)
    hp = s.sJ
    E('s_mul_i32 s%d, s%d, 112' % (s.sWc[2], hp))
    E('s_add_u32 s%d, s%d, 896' % (s.sWc[0], s.sWc[2]))
    E('s_add_u32 s%d, s%d, 1792' % (s.sWc[1], s.sWc[2]))
    E('s_movk_i32 s%d, 2688' % s.sK)
    E('v_lshlrev_b32 v%d, 4, v%d' % (s.vT2, s.vT1))
    E('v_mad_u32_u24 v%d, v%d, s%d, v%d' % (s.vOffW, s.vT0, s.sK, s.vT2))
    E('v_cmp_eq_u32 vcc, 7, v%d' % s.vT1)
    E('v_mov_b32 v%d, 0x40000000' % s.vT2)
    E('v_cndmask_b32 v%d, v%d, v%d, vcc' % (s.vOffW, s.vOffW, s.vT2))
    s.prologue_dma()
    srd(s.e, s.sB2, 62, 16 * 1568)
    srd(s.e, s.sWS, 66, WS_BYTES)
    srd(s.e, s.sDbg, 64, 256)
    s.setup_addrs()
    s.lane_col(s.vT2)
    E('s_mul_i32 s%d, s%d, 56' % (s.sT0, s.sG))
    E('v_add_u32 v%d, s%d, v%d' % (vWp, s.sT0, s.vT2))
    E('v_cmp_eq_u32 vcc, 56, v%d' % s.vT2)
    E('v_mov_b32 v%d, 112' % s.vT3)
    E('v_cndmask_b32 v%d, v%d, v%d, vcc' % (vWp, vWp, s.vT3))
    s.tr_base(s.vTr[0], vWp, s.sPi, RINGA)
    for q in range(1, 4):
        E('v_xor_b32 v%d, %d, v%d' % (s.vTr[q], q << 11, s.vTr[0]))
    E('v_min_u32 v%d, 48, v%d' % (s.vT2, s.vT2))
    E('v_lshrrev_b32 v%d, 5, v0' % s.vT0)
    E('v_bfe_u32 v%d, v0, 2, 2' % s.vT1)
    E('v_lshl_add_u32 v%d, v%d, 2, v%d' % (s.vT0, s.vT0, s.vT1))
    E('v_mad_u32_u24 v%d, v%d, 56, v%d' % (vWp, s.vT0, s.vT2))
    E('s_mul_i32 s%d, s%d, 1568' % (s.sT0, s.sG))
    E('s_add_u32 s%d, s%d, %d' % (s.sT0, s.sT0, RINGA + 2 * 8192))
    E('v_add_u32 v%d, s%d, v%d' % (vWp, s.sT0, vWp))
    E('v_and_b32 v%d, 31, v0' % s.vT0)
    E('v_lshrrev_b32 v%d, 5, v0' % s.vT1)
    E('v_lshlrev_b32 v%d, 2, v%d' % (s.vT1, s.vT1))
    E('v_sub_u32 v%d, v%d, v%d' % (s.vT1, s.vT0, s.vT1))
    E('v_lshlrev_b32 v%d, 4, v%d' % (s.vT1, s.vT1))
    E('s_movk_i32 s%d, 0x3f80' % s.sT0)
    for kk in range(2):
        for m in range(4):
            cst = 16 * kk + 8 * (m // 2) + 2 * (m % 2)
            d = Id + 4 * kk + m
            E('v_subrev_u32 v%d, %d, v%d' % (s.vT2, 16 * cst, s.vT1))
            E('v_lshlrev_b32 v%d, v%d, s%d' % (d, s.vT2, s.sT0))
            E('v_cmp_gt_u32 vcc, 32, v%d' % s.vT2)
            E('v_cndmask_b32 v%d, 0, v%d, vcc' % (d, d))
    E('v_and_b32 v%d, 1, v0' % s.vT2)
    E('v_lshlrev_b32 v%d, 4, v%d' % (s.vT2, s.vT2))
    E('v_lshlrev_b32 v%d, v%d, s%d' % (s.vT2, s.vT2, s.sT0))
    E('v_cndmask_b32 v%d, v%d, 0, s[%d:%d]' % (Id4, s.vT2, s.sM[1], s.sM[1] + 1))
    E('v_cndmask_b32 v%d, 0, v%d, s[%d:%d]' % (Id4 + 1, s.vT2, s.sM[1], s.sM[1] + 1))
    E('v_cmp_eq_u32 vcc, 28, v%d' % s.vT0)
    E('v_cndmask_b32 v%d, 0, 1.0, vcc' % vB1a)
    E('v_cmp_eq_u32 vcc, 29, v%d' % s.vT0)
    E('v_mov_b32 v%d, 0x3f80' % s.vT2)
    E('v_cndmask_b32 v%d, 0, v%d, vcc' % (vB1b, s.vT2))
    E('v_cmp_eq_u32 s[%d:%d], 30, v%d' % (sMl30, sMl30 + 1, s.vT0))
    E('s_lshl_b32 s%d, s%d, 2' % (s.sT1, s.sRb))
    E('s_add_u32 s%d, s%d, s%d' % (s.sT1, s.sT1, s.sT))
    E('s_mul_i32 s%d, s%d, 144' % (s.sT1, s.sT1))
    E('s_lshl_b32 s%d, s%d, 2' % (s.sT2, hp))
    E('s_lshl_b32 s%d, s%d, 1' % (s.sT3, s.sG))
    E('s_add_u32 s%d, s%d, s%d' % (s.sT2, s.sT2, s.sT3))
    E('s_add_u32 s%d, s%d, s%d' % (s.sSt, s.sT1, s.sT2))
    E('s_add_u32 s%d, s%d, 112' % (s.sSt, s.sSt))
    E('s_lshl_b32 s%d, s%d, 10' % (s.sSt, s.sSt))
    E('s_lshl_b32 s%d, s%d, 17' % (sGat, hp))
    E('s_lshl_b32 s%d, s%d, 12' % (s.sT2, s.sG))
    E('s_add_u32 s%d, s%d, s%d' % (sGat, sGat, s.sT2))
    E('s_lshl_b32 s%d, s%d, 10' % (s.sT2, s.sT))
    E('s_add_u32 s%d, s%d, s%d' % (sGat, sGat, s.sT2))
    E('s_add_u32 s%d, s%d, 0x%x' % (sGat, sGat, KVP_OFF))
    E('s_lshl_b32 s%d, s%d, 13' % (s.sT2, s.sRb))
    E('s_add_u32 s%d, s%d, s%d' % (sKvp, sGat, s.sT2))
    E('s_lshl_b32 s%d, s%d, 3' % (sFlag, hp))
    E('s_add_u32 s%d, s%d, s%d' % (sFlag, sFlag, s.sWv))
    E('s_lshl_b32 s%d, s%d, 2' % (sFlag, sFlag))
    E('s_mul_i32 s%d, s%d, 3136' % (s.sWs, hp))
    E('s_lshl_b32 s%d, s%d, 10' % (s.sT2, s.sT))
    E('s_add_u32 s%d, s%d, s%d' % (s.sWs, s.sWs, s.sT2))
    E('s_add_u32 s%d, s%d, %d' % (s.sStS, s.sT2, RINGA + 2 * 8192))
    E('s_mov_b32 s%d, 0x%x' % (s.sK, f2u(1.0 / 448)))

    sched = {1: [(0, 5), (1, 0), (1, 1)], 2: [(0, 6), (1, 2), (1, 3)], 3: [(1, 4), (1, 5), 'P'],
             4: [(1, 6), (2, 0)], 5: [(2, 1), (2, 2)], 6: [(2, 3), (2, 4)]}
    dma_w0 = s.dma_w
    def dma_w(r, c=None):
        if r == 'P':
            return [I('s_mov_b32 m0, s%d' % s.sStS),
                    I('buffer_load_dwordx4 v%d, s[%d:%d], s%d offen lds' % (s.vLane16, s.sB2, s.sB2 + 3, s.sWs), tag=('w', 'P', 0))]
        return dma_w0(r, c)
    s.dma_w = dma_w
    sched[3] = [(1, 4), (1, 5), ('P', 0)]
    round0(s, sched, [('w', 1, c) for c in range(2)])
    s.emit(s.bump_tr(-RINGA))
    s.emit(rm(s.chunk_reads(1, 0), s.chunk_mfmas(0, 6)))
    s.emit(s.stats_write() + s.cs_write(0))
    s.emit(rm(s.chunk_reads(1, 1), s.chunk_mfmas(1, 0, swap=True)))

    def aug_col0(cs, t, b1a=None, b1b=None):
        o = []
        o.append(I('v_cvt_pk_bf16_f32 v%d, -v%d, -v%d' % (s.augA, cs, cs)))
        o.append(I('v_and_b32 v%d, 0xffff0000, v%d' % (t, s.augA)))
        o.append(I('v_add_f32 v%d, v%d, v%d' % (t, cs, t)))
        if b1a is None:
            o.append(I('v_cvt_pk_bf16_f32 v%d, -v%d, 0' % (s.augA + 1, t)))
            o.append(I('v_mov_b32 v%d, 0' % (s.augA + 2)))
        else:
            o.append(I('v_cvt_pk_bf16_f32 v%d, -v%d, v%d' % (s.augA + 1, t, b1a)))
            o.append(I('v_mov_b32 v%d, v%d' % (s.augA + 2, b1b)))
        return o

    def feat_common(P):
        o = []
        for kk in range(2):
            for sec in range(2):
                d = EE + 4 * kk + 2 * sec
                o.append(I('ds_read_b64_tr_b16 v[%d:%d], v%d offset:%d' % (d, d + 1, vWp, 896 * kk + 448 * sec)))
        for i in range(8):
            o.append(I('v_cvt_pk_bf16_f32 v%d, v%d, v%d' % (kb + i, P + 2 * i, P + 2 * i + 1)))
        o.append(s.mfma(P, EE, kb, None))
        o.append(s.mfma(P, EE + 4, kb + 4, P))
        o.append(I('v_max3_f32 v%d, v%d, v%d, v%d' % (vMx, P, P + 1, P + 2)))
        o.append(I('v_min3_f32 v%d, v%d, v%d, v%d' % (vN, P, P + 1, P + 2)))
        for i in range(3, 15, 2):
            o.append(I('v_max3_f32 v%d, v%d, v%d, v%d' % (vMx, vMx, P + i, P + i + 1)))
            o.append(I('v_min3_f32 v%d, v%d, v%d, v%d' % (vN, vN, P + i, P + i + 1)))
        o.append(I('v_max_f32 v%d, v%d, v%d' % (vMx, vMx, P + 15)))
        o.append(I('v_min_f32 v%d, v%d, v%d' % (vN, vN, P + 15)))
        o.append(I('v_xor_b32 v%d, 0x80000000, v%d' % (vN, vN)))
        o.append(I('v_permlane32_swap_b32 v%d, v%d' % (vMx, vN)))
        o.append(I('v_max_f32 v%d, v%d, v%d' % (vMx, vMx, vN)))
        o.append(I('v_mul_f32 v%d, v%d, v%d' % (vMx, vMx, s.vC)))
        o.append(I('v_xor_b32 v%d, 0x80000000, v%d' % (vMx, vMx)))
        o.append(I('v_mov_b32 v%d, v%d' % (vN, vMx)))
        o.append(I('v_permlane32_swap_b32 v%d, v%d' % (vMx, vN)))
        o.append(I('v_mov_b32 v%d, 0x%x' % (vZ, BIGNEG)))
        o.append(I('v_cndmask_b32 v%d, v%d, v%d, s[%d:%d]' % (vM2, vMx, vZ, s.sMh, s.sMh + 1)))
        o.append(I('v_cndmask_b32 v%d, v%d, v%d, s[%d:%d]' % (vN2, vN, vZ, s.sMh, s.sMh + 1)))
        for g0 in range(0, 16, 4):
            for i in range(g0, g0 + 4):
                o.append(I('v_fma_f32 v%d, v%d, v%d, v%d' % (EE + i, P + i, s.vC, vM2 if i >= 12 else vMx)))
            for i in range(g0, g0 + 4):
                o.append(I('v_fma_f32 v%d, -v%d, v%d, v%d' % (P + i, P + i, s.vC, vN2 if i >= 12 else vN)))
            for i in range(g0, g0 + 4):
                o.append(I('v_exp_f32 v%d, v%d' % (EE + i, EE + i)))
            for i in range(g0, g0 + 4):
                o.append(I('v_exp_f32 v%d, v%d' % (P + i, P + i)))
        return o

    s.barrier([('w', 1, c) for c in range(7)] + [('w', 2, 0), ('w', 2, 1), ('w', 'P', 0)], 'ldsw')
    pre = s.dma_w(2, 5) + s.dma_w(2, 6)
    t = s.tE
    P = s.acc[0]
    side = s.stats_read(t) + s.cs_read(0, t) + aug_col0(t, t + 2)
    side.append(s.mfma(P, s.augA, s.augB, P))
    side += feat_common(P)
    side.append(I('v_add_f32 v%d, v%d, v%d' % (vZ, EE, EE + 1)))
    side.append(I('v_add_f32 v%d, v%d, v%d' % (vZ2, P, P + 1)))
    for i in range(2, 16):
        side.append(I('v_add_f32 v%d, v%d, v%d' % (vZ, vZ, EE + i)))
        side.append(I('v_add_f32 v%d, v%d, v%d' % (vZ2, vZ2, P + i)))
    side.append(I('v_permlane32_swap_b32 v%d, v%d' % (vZ, vZ2)))
    side.append(I('v_add_f32 v%d, v%d, v%d' % (vZ, vZ, vZ2)))
    side.append(I('v_rcp_f32 v%d, v%d' % (vZ, vZ)))
    side.append(I('v_mul_f32 v%d, v%d, v%d' % (vZ, vZ, s.vC)))
    side.append(I('v_mov_b32 v%d, v%d' % (vZ2, vZ)))
    side.append(I('v_permlane32_swap_b32 v%d, v%d' % (vZ, vZ2)))
    for i in range(0, 16, 2):
        side.append(I('v_mul_f32 v%d, v%d, v%d' % (EE + i, EE + i, vZ)))
        side.append(I('v_mul_f32 v%d, v%d, v%d' % (EE + i + 1, EE + i + 1, vZ)))
        side.append(I('v_cvt_pk_bf16_f32 v%d, v%d, v%d' % (kb + i // 2, EE + i, EE + i + 1)))
    for i in range(0, 16, 2):
        side.append(I('v_mul_f32 v%d, v%d, v%d' % (P + i, P + i, vZ2)))
        side.append(I('v_mul_f32 v%d, v%d, v%d' % (P + i + 1, P + i + 1, vZ2)))
        side.append(I('v_cvt_pk_bf16_f32 v%d, v%d, v%d' % (EE + i // 2, P + i, P + i + 1)))
    side.append(s.mfma(P, kb, Id, None))
    side.append(s.mfma(P, kb + 4, Id + 4, P))
    for i in range(8):
        side.append(I('v_cvt_pk_bf16_f32 v%d, v%d, v%d' % (kb + i, P + 2 * i, P + 2 * i + 1)))
    side.append(s.mfma(P, EE, Id, None))
    side.append(s.mfma(P, EE + 4, Id + 4, P))
    for i in range(8):
        side.append(I('v_cvt_pk_bf16_f32 v%d, v%d, v%d' % (EE + 8 + i, P + 2 * i, P + 2 * i + 1)))
    main = []
    for c in range(1, 7):
        rds = s.chunk_reads(1, c + 1) if c < 6 else s.bump_tr(57344) + s.chunk_reads(2, 0)
        main += rm(rds, s.chunk_mfmas(1, c, swap=True), lead=(3 if c < 6 else 7))
    s.emit(pre)
    s.emit(interleave(main, side, 0, len(main) - 2))
    s.emit(s.cs_write(1))
    s.emit(rm(s.chunk_reads(2, 1), s.chunk_mfmas(2, 0)))

    s.barrier([('w', 2, c) for c in range(7)], 'lgkm')
    Vt = s.acc[1]
    vb = EE
    tt = s.csacc
    side = [I('ds_read_b128 v[%d:%d], v%d offset:%d' % (vb, vb + 3, s.vCSr, 2048)),
            I('v_add_f32 v%d, v%d, v%d' % (vb, vb, vb + 1)),
            I('v_add_f32 v%d, v%d, v%d' % (vb + 2, vb + 2, vb + 3)),
            I('v_add_f32 v%d, v%d, v%d' % (vb, vb, vb + 2))]
    side += aug_col0(vb, vb + 2, vB1a, vB1b)
    side.append(s.mfma(Vt, s.augB, s.augA, Vt))
    for i in range(8):
        side.append(I('v_cvt_pk_bf16_f32 v%d, v%d, v%d' % (vb + i, Vt + 2 * i, Vt + 2 * i + 1)))
    side.append(I('s_lshl_b32 s%d, s%d, 13' % (s.sT0, s.sWv)))
    side.append(I('v_add_u32 v%d, s%d, v%d' % (vMx, s.sT0, s.vLane16)))
    for blk in range(2):
        pT = kb if blk == 0 else EE + 8
        side.append(s.mfma(Vt, pT, vb, None))
        side.append(s.mfma(Vt, pT + 4, vb + 4, Vt))
        for q in range(4):
            side.append(I('ds_write_b128 v%d, v[%d:%d] offset:%d' % (vMx, Vt + 4 * q, Vt + 4 * q + 3, 4096 * blk + 1024 * q)))
    side.append(I('s_lshl_b32 s%d, s%d, 15' % (s.sT0, s.sG)))
    side.append(I('s_lshl_b32 s%d, s%d, 11' % (s.sT1, s.sT)))
    side.append(I('s_add_u32 s%d, s%d, s%d' % (s.sT0, s.sT0, s.sT1)))
    side.append(I('v_add_u32 v%d, s%d, v%d' % (vN, s.sT0, s.vLane16)))
    mainA = []
    for c in range(1, 4):
        mainA += rm(s.chunk_reads(2, c + 1), s.chunk_mfmas(2, c))
    s.emit(interleave(mainA, side, 0, len(mainA) - 2))
    s.barrier([], 'ldsw')
    side = []
    R = s.pool
    dst = [Vt, Vt + 8, s.pool, s.pool + 8]
    for tp in range(4):
        for q in range(2):
            side.append(I('ds_read_b128 v[%d:%d], v%d offset:%d' % (dst[tp] + 4 * q, dst[tp] + 4 * q + 3, vN, 8192 * tp + 1024 * q)))
    for i in range(8):
        side.append(I('v_add_f32 v%d, v%d, v%d' % (Vt + i, Vt + i, Vt + 8 + i)))
        side.append(I('v_add_f32 v%d, v%d, v%d' % (s.pool + i, s.pool + i, s.pool + 8 + i)))
    for i in range(8):
        side.append(I('v_add_f32 v%d, v%d, v%d' % (Vt + i, Vt + i, s.pool + i)))
    for i in range(4):
        side.append(I('v_cvt_pk_bf16_f32 v%d, v%d, v%d' % (Vt + 8 + i, Vt + 2 * i, Vt + 2 * i + 1)))
    side.append(I('buffer_store_dwordx4 v[%d:%d], v%d, s[%d:%d], s%d offen sc1' % (Vt + 8, Vt + 11, s.vLane16, s.sWS, s.sWS + 3, sKvp), tag='kvp'))
    mainB = rm(s.chunk_reads(2, 5), s.chunk_mfmas(2, 4))
    s.emit(interleave(mainB, side, 0, len(mainB) - 1))
    s.emit(rm(s.chunk_reads(2, 6), s.chunk_mfmas(2, 5)))
    s.emit(s.chunk_mfmas(2, 6))
    s.emit(s.cs_write(2))
    s.e.emit(WaitTag(['kvp']))
    E('v_mov_b32 v%d, 1' % vMx)
    E('v_mov_b32 v%d, 0' % vN)
    E('s_mov_b64 exec, 1')
    E('buffer_atomic_add v%d, v%d, s[%d:%d], s%d offen sc1' % (vMx, vN, s.sDbg, s.sDbg + 3, sFlag))
    E('s_mov_b64 exec, -1')

    s.barrier([], 'ldsw')
    P = s.acc[0]
    s.emit([I('ds_read_b128 v[%d:%d], v%d' % (vb, vb + 3, s.vCSr)),
            I('v_add_f32 v%d, v%d, v%d' % (vb, vb, vb + 1)),
            I('v_add_f32 v%d, v%d, v%d' % (vb + 2, vb + 2, vb + 3)),
            I('v_add_f32 v%d, v%d, v%d' % (vb, vb, vb + 2))])
    s.emit(aug_col0(vb, vb + 2))
    s.emit(s.mfma(P, s.augA, s.augB, P))
    s.e.emit(Drain(['vm', 'lgkm']))
    s.e.emit(Fence())
    lab = s.label + '_spin'
    E('s_mov_b32 s%d, 0' % sSpin)
    s.e.out.append(lab + ':')
    s.e._raw('buffer_load_dword v%d, v%d, s[%d:%d], s%d offen sc1' % (vMx, vN, s.sDbg, s.sDbg + 3, sFlag))
    s.e._raw('s_add_u32 s%d, s%d, 1' % (sSpin, sSpin))
    s.e._raw('s_waitcnt vmcnt(0)')
    s.e._raw('v_readfirstlane_b32 s%d, v%d' % (s.sT0, vMx))
    s.e._raw('s_cmp_ge_u32 s%d, 0x10000' % sSpin)
    s.e._raw('s_cbranch_scc1 %s_go' % lab)
    s.e._raw('s_cmp_lt_u32 s%d, 16' % s.sT0)
    s.e._raw('s_cbranch_scc1 %s' % lab)
    s.e.out.append(lab + '_go:')
    s.e.emit(Fence())
    G = s.xf
    for rb in range(16):
        E('buffer_load_dwordx4 v[%d:%d], v%d, s[%d:%d], s%d offen sc1' % (G + 4 * rb, G + 4 * rb + 3, s.vLane16, s.sWS, s.sWS + 3, sGat))
        if rb < 15:
            E('s_add_u32 s%d, s%d, 8192' % (sGat, sGat))
    s.emit(feat_common(P))
    for i in range(8):
        E('v_cvt_pk_bf16_f32 v%d, v%d, v%d' % (kb + i, EE + 2 * i, EE + 2 * i + 1))
    for i in range(8):
        E('v_cvt_pk_bf16_f32 v%d, v%d, v%d' % (EE + i, P + 2 * i, P + 2 * i + 1))
    lo, hi = s.acc[1], s.acc[1] + 4
    for rb in range(16):
        s.emit(s.mfma4(lo, Id4, G + 4 * rb, rb == 0))
        s.emit(s.mfma4(hi, Id4, G + 4 * rb + 2, rb == 0))
    red = s.acc[1] + 8
    for i in range(4):
        E('v_cvt_pk_bf16_f32 v%d, v%d, v%d' % (red + i, lo + 2 * i, lo + 2 * i + 1))
    for i in range(4):
        E('v_cndmask_b32 v%d, v%d, v%d, s[%d:%d]' % (red + i, red + i, s.ones, sMl30, sMl30 + 1))
    E('s_lshl_b32 s%d, s%d, 10' % (s.sT0, s.sWv))
    E('v_add_u32 v%d, s%d, v%d' % (vMx, s.sT0, s.vLane16))
    E('s_lshl_b32 s%d, s%d, 12' % (s.sT0, s.sG))
    E('v_add_u32 v%d, s%d, v%d' % (vN, s.sT0, s.vLane16))
    E('ds_write_b128 v%d, v[%d:%d]' % (vMx, red, red + 3))
    s.barrier([], 'lgkm')
    KA = G
    for f in range(4):
        E('ds_read_b128 v[%d:%d], v%d offset:%d' % (KA + 4 * f, KA + 4 * f + 3, vN, 1024 * f))
    Np, Nm = s.acc[0], s.acc[1]
    s.emit(s.mfma(Np, KA, kb, None))
    s.emit(s.mfma(Nm, KA + 8, EE, None))
    s.emit(s.mfma(Np, KA + 4, kb + 4, Np))
    s.emit(s.mfma(Nm, KA + 12, EE + 4, Nm))
    a, b, dn = vMx, vN, vZ
    E('v_rcp_f32 v%d, v%d' % (a, Np + 14))
    E('v_rcp_f32 v%d, v%d' % (b, Nm + 14))
    E('v_add_f32 v%d, v%d, v%d' % (dn, Np + 12, Np + 13))
    E('v_add_f32 v%d, v%d, v%d' % (vZ2, Nm + 12, Nm + 13))
    E('v_mov_b32 v%d, 0x%x' % (vM2, f2u(1e-6 * 1.4426950408889634)))
    E('v_fmac_f32 v%d, v%d, v%d' % (vM2, dn, a))
    E('v_fmac_f32 v%d, v%d, v%d' % (vM2, vZ2, b))
    E('v_rcp_f32 v%d, v%d' % (vM2, vM2))
    E('v_mul_f32 v%d, 0x%x, v%d' % (vM2, LOG2E, vM2))
    E('v_mul_f32 v%d, v%d, v%d' % (a, a, vM2))
    E('v_mul_f32 v%d, v%d, v%d' % (b, b, vM2))
    E('v_mov_b32 v%d, v%d' % (vZ, a))
    E('v_mov_b32 v%d, v%d' % (vZ2, b))
    E('v_permlane32_swap_b32 v%d, v%d' % (vZ, a))
    E('v_permlane32_swap_b32 v%d, v%d' % (vZ2, b))
    E('v_cndmask_b32 v%d, v%d, 0, s[%d:%d]' % (vM2, a, s.sMh, s.sMh + 1))
    E('v_cndmask_b32 v%d, v%d, 0, s[%d:%d]' % (vN2, b, s.sMh, s.sMh + 1))
    for i in range(16):
        fa, fb = (vM2, vN2) if i >= 12 else (a, b)
        E('v_mul_f32 v%d, v%d, v%d' % (Np + i, Np + i, fa))
        E('v_fmac_f32 v%d, v%d, v%d' % (Np + i, Nm + i, fb))
    for i in range(8):
        E('v_cvt_pk_bf16_f32 v%d, v%d, v%d' % (kb + i, Np + 2 * i, Np + 2 * i + 1))
        if i % 4 == 3:
            kk = i // 4
            E('buffer_store_dwordx4 v[%d:%d], v%d, s[%d:%d], s%d offen offset:%d' % (kb + 4 * kk, kb + 4 * kk + 3, s.vLane16, s.sWS, s.sWS + 3, s.sSt, 1024 * kk))
```

```python
from common import *

ACT_BYTES = 64 * 144 * 1024
LN2 = 0x3f317218

def gen_k2(label, NS=5, scale_ln2=True):
    e = Emitter()
    def E(text, tag=None):
        e.emit(I(text, tag))
    sX, sW2, sWO, sWS, sOUT = 8, 12, 16, 20, 24
    sWv, sKq, sTh, sTb, sCb = 28, 29, 30, 31, 32
    sM0, sOffO = 33, 34
    sT0, sT1, sT2, sT3 = 36, 37, 38, 39
    sQ = [40, 41, 42, 43]
    sQo = [44, 45, 46, 47]
    sAct, sActO = 48, 49
    va = RegAlloc('v', 1, 256)
    vOffW = va.alloc(); vOffWO = va.alloc(); vLane16 = va.alloc(); vXo = va.alloc()
    vT0 = va.alloc(); vT1 = va.alloc(); vT2 = va.alloc(); vRedR = va.alloc(); vRedW = va.alloc()
    vTr = [[va.alloc() for ct in range(2)] for b in range(3)]
    vXr = va.alloc(4, 4)
    acc = va.alloc(32, 4)
    wf = va.alloc(32, 4)
    act = va.alloc(144, 4)

    E('s_load_dwordx2 s[4:5], s[0:1], 80')
    E('s_load_dwordx2 s[6:7], s[0:1], 56')
    E('s_load_dwordx2 s[50:51], s[0:1], 24')
    E('s_load_dwordx2 s[52:53], s[0:1], 0')
    E('s_load_dwordx2 s[54:55], s[0:1], 64')
    E('s_cmp_ge_u32 s2, 224')
    E('s_cbranch_scc1 %s_end' % label)
    E('v_lshrrev_b32 v%d, 6, v0' % vT0)
    E('v_and_b32 v0, 63, v0')
    E('v_readfirstlane_b32 s%d, v%d' % (sWv, vT0))
    E('s_and_b32 s%d, s2, 7' % sT0)
    E('s_lshr_b32 s%d, s2, 3' % sT1)
    E('s_mul_i32 s%d, s%d, 37' % (sT2, sT1))
    E('s_lshr_b32 s%d, s%d, 8' % (sT2, sT2))
    E('s_mul_i32 s%d, s%d, 7' % (sT3, sT2))
    E('s_sub_u32 s%d, s%d, s%d' % (sCb, sT1, sT3))
    E('s_lshl_b32 s%d, s%d, 2' % (sT0, sT0))
    E('s_add_u32 s%d, s%d, s%d' % (sTb, sT0, sT2))
    E('s_lshr_b32 s%d, s%d, 1' % (sKq, sWv))
    E('s_and_b32 s%d, s%d, 1' % (sTh, sWv))
    E('s_lshl_b32 s%d, s%d, 10' % (sM0, sWv))
    E('v_lshrrev_b32 v%d, 3, v0' % vT0)
    E('v_and_b32 v%d, 7, v0' % vT1)
    E('v_lshrrev_b32 v%d, 2, v0' % vT2)
    E('v_and_b32 v%d, 4, v%d' % (vT2, vT2))
    E('v_xor_b32 v%d, v%d, v%d' % (vT1, vT1, vT2))
    E('v_lshlrev_b32 v%d, 4, v%d' % (vT1, vT1))
    E('s_lshl_b32 s%d, s%d, 3' % (sT0, sWv))
    E('v_add_u32 v%d, s%d, v%d' % (vT2, sT0, vT0))
    E('s_movk_i32 s%d, 896' % sT1)
    E('v_mad_u32_u24 v%d, v%d, s%d, v%d' % (vOffW, vT2, sT1, vT1))
    E('v_lshlrev_b32 v%d, 4, v0' % vLane16)
    E('s_lshl_b32 s%d, s%d, 7' % (sT0, sCb))
    for q in range(4):
        E('s_add_u32 s%d, s%d, %d' % (sQ[q], sT0, 448 * 896 * q))
    for q in range(4):
        E('s_add_u32 s%d, s%d, %d' % (sQo[q], sT0, 28 * 4 * 896 * q))
    E('s_lshl_b32 s%d, s%d, 1' % (sT0, sTb))
    E('s_add_u32 s%d, s%d, s%d' % (sT0, sT0, sTh))
    E('s_mul_i32 s%d, s%d, 144' % (sT0, sT0))
    E('s_mul_i32 s%d, s%d, 28' % (sT3, sKq))
    E('s_add_u32 s%d, s%d, s%d' % (sAct, sT0, sT3))
    E('s_lshl_b32 s%d, s%d, 10' % (sAct, sAct))
    E('s_lshl_b32 s%d, s%d, 3' % (sT3, sKq))
    E('s_add_u32 s%d, s%d, s%d' % (sT0, sT0, sT3))
    E('s_add_u32 s%d, s%d, 112' % (sT0, sT0))
    E('s_lshl_b32 s%d, s%d, 10' % (sActO, sT0))
    srd(e, sWS, 4, ACT_BYTES)
    srd(e, sW2, 6, 1792 * 896)

    def issue_w(s):
        slot = (s % NS) * 32768
        for q in range(4):
            E('s_add_u32 m0, s%d, %d' % (sM0, slot + q * 8192))
            if s < 7:
                E('buffer_load_dwordx4 v%d, s[%d:%d], s%d offen lds' % (vOffW, sW2, sW2 + 3, sQ[q]), tag=('w', s, q))
                if s < 6:
                    E('s_add_u32 s%d, s%d, %d' % (sQ[q], sQ[q], 64 * 896))
            else:
                E('buffer_load_dwordx4 v%d, s[%d:%d], s%d offen lds' % (vOffWO, sWO, sWO + 3, sQo[q]), tag=('w', s, q))
                if s == 7:
                    E('s_add_u32 s%d, s%d, %d' % (sQo[q], sQo[q], 56 * 896))

    def issue_a(s):
        so = sAct if s < 7 else sActO
        for k in range(4):
            r = act + 16 * s + 4 * k
            E('buffer_load_dwordx4 v[%d:%d], v%d, s[%d:%d], s%d offen offset:%d' % (r, r + 3, vLane16, sWS, sWS + 3, so, k * 1024))
        if s < 6 or s == 7:
            E('s_add_u32 s%d, s%d, 4096' % (so, so))

    for s in range(min(NS, 9)):
        issue_w(s)
        issue_a(s)
    srd(e, sWO, 50, 448 * 896)
    srd(e, sX, 52, 2048 * 896)
    srd(e, sOUT, 54, 2048 * 896)
    E('s_and_b32 s%d, s%d, 3' % (sT0, sWv))
    E('s_lshl_b32 s%d, s%d, 3' % (sT0, sT0))
    E('v_add_u32 v%d, s%d, v%d' % (vT2, sT0, vT0))
    E('v_min_u32 v%d, 27, v%d' % (vT2, vT2))
    E('s_lshr_b32 s%d, s%d, 2' % (sT0, sWv))
    E('s_mul_i32 s%d, s%d, 28' % (sT0, sT0))
    E('v_add_u32 v%d, s%d, v%d' % (vT2, sT0, vT2))
    E('v_mad_u32_u24 v%d, v%d, s%d, v%d' % (vOffWO, vT2, sT1, vT1))
    E('s_lshl_b32 s%d, s%d, 3' % (sT0, sWv))
    E('v_add_u32 v%d, s%d, v%d' % (vT0, sT0, vT0))
    E('v_and_b32 v%d, 7, v0' % vT1)
    E('v_lshlrev_b32 v%d, 4, v%d' % (vXo, vT1))
    E('v_mad_u32_u24 v%d, v%d, s%d, v%d' % (vXo, vT0, sT1, vXo))
    E('s_mul_i32 s%d, s%d, %d' % (sT0, sTb, 64 * 896))
    E('s_lshl_b32 s%d, s%d, 7' % (sT3, sCb))
    E('s_add_u32 s%d, s%d, s%d' % (sOffO, sT0, sT3))
    E('v_mul_u32_u24 v%d, 272, v%d' % (vRedR, vT0))
    E('v_lshl_add_u32 v%d, v%d, 5, v%d' % (vRedR, vT1, vRedR))
    E('v_and_b32 v%d, 31, v0' % vRedW)
    E('s_lshl_b32 s%d, s%d, 5' % (sT0, sTh))
    E('v_add_u32 v%d, s%d, v%d' % (vRedW, sT0, vRedW))
    E('v_mul_u32_u24 v%d, 272, v%d' % (vRedW, vRedW))
    E('s_mul_i32 s%d, s%d, 17408' % (sT0, sKq))
    E('v_add_u32 v%d, s%d, v%d' % (vRedW, sT0, vRedW))
    E('v_lshrrev_b32 v%d, 5, v0' % vT0)
    E('v_lshl_add_u32 v%d, v%d, 4, v%d' % (vRedW, vT0, vRedW))
    E('v_lshlrev_b32 v%d, 9, v%d' % (vT0, vT0))
    E('v_bfe_u32 v%d, v0, 2, 2' % vT1)
    E('v_lshl_add_u32 v%d, v%d, 7, v%d' % (vT0, vT1, vT0))
    E('v_bfe_u32 v%d, v0, 4, 1' % vT1)
    E('v_lshl_add_u32 v%d, v%d, 5, v%d' % (vT0, vT1, vT0))
    E('v_and_b32 v%d, 3, v0' % vT1)
    E('v_lshl_add_u32 v%d, v%d, 3, v%d' % (vT0, vT1, vT0))
    E('v_bfe_u32 v%d, v0, 3, 1' % vT1)
    E('v_lshl_add_u32 v%d, v%d, 6, v%d' % (vT0, vT1, vT0))
    E('s_lshl_b32 s%d, s%d, 13' % (sT0, sKq))
    E('v_add_u32 v%d, s%d, v%d' % (vTr[0][0], sT0, vT0))
    E('v_xor_b32 v%d, 64, v%d' % (vTr[0][1], vTr[0][0]))
    for b in (1, 2):
        for ct in range(2):
            E('v_add_u32 v%d, 0x%x, v%d' % (vTr[b][ct], 65536 * b, vTr[0][ct]))

    for s in range(9):
        e.emit(WaitTag([('w', s, 3)]))
        E('s_barrier')
        if s >= 1 and s + NS - 1 < 9:
            issue_w(s + NS - 1)
            issue_a(s + NS - 1)
        if s == 6:
            E('buffer_load_dwordx4 v[%d:%d], v%d, s[%d:%d], s%d offen' % (vXr, vXr + 3, vXo, sX, sX + 3, sOffO))
        slot = (s % NS) * 32768
        def rd(k):
            b = wf + (k % 2) * 8
            out = []
            for ct in range(2):
                for sec in range(2):
                    r = b + ct * 4 + sec * 2
                    out.append('ds_read_b64_tr_b16 v[%d:%d], v%d offset:%d' % (r, r + 1, vTr[slot // 65536][ct], (slot % 65536) + k * 2048 + sec * 1024))
            return out
        for t in rd(0): E(t)
        for k in range(4):
            if k < 3:
                for t in rd(k + 1): E(t)
            b = wf + (k % 2) * 8
            a = act + 16 * s + 4 * k
            for ct in range(2):
                c = acc + 16 * ct
                src = '0' if (s == 0 and k == 0) else 'v[%d:%d]' % (c, c + 15)
                E('v_mfma_f32_32x32x16_bf16 v[%d:%d], v[%d:%d], v[%d:%d], %s' % (c, c + 15, b + 4 * ct, b + 4 * ct + 3, a, a + 3, src))
    assert NS == 5
    for ct in range(2):
        for g4 in range(4):
            r = acc + 16 * ct + 4 * g4
            E('ds_write_b128 v%d, v[%d:%d] offset:%d' % (vRedW, r, r + 3, 128 * ct + 32 * g4))
    e.emit(Drain(['lgkm']))
    E('s_barrier')
    rb = wf
    for q in range(4):
        for hf in range(2):
            r = rb + 8 * q + 4 * hf
            E('ds_read_b128 v[%d:%d], v%d offset:%d' % (r, r + 3, vRedR, 17408 * q + 16 * hf))
    for j in range(8):
        E('v_add_f32 v%d, v%d, v%d' % (rb + j, rb + j, rb + 8 + j))
        E('v_add_f32 v%d, v%d, v%d' % (rb + 16 + j, rb + 16 + j, rb + 24 + j))
    for j in range(8):
        E('v_add_f32 v%d, v%d, v%d' % (rb + j, rb + j, rb + 16 + j))
    E('s_mov_b32 s%d, 0x%x' % (sT0, LN2 if scale_ln2 else 0x3f800000))
    for p in range(4):
        lo, hi = rb + 8 + 2 * p, rb + 9 + 2 * p
        E('v_lshlrev_b32 v%d, 16, v%d' % (lo, vXr + p))
        E('v_and_b32 v%d, 0xffff0000, v%d' % (hi, vXr + p))
        E('v_fmac_f32 v%d, s%d, v%d' % (lo, sT0, rb + 2 * p))
        E('v_fmac_f32 v%d, s%d, v%d' % (hi, sT0, rb + 2 * p + 1))
        E('v_cvt_pk_bf16_f32 v%d, v%d, v%d' % (rb + 16 + p, lo, hi))
    E('buffer_store_dwordx4 v[%d:%d], v%d, s[%d:%d], s%d offen' % (rb + 16, rb + 19, vXo, sOUT, sOUT + 3, sOffO))
    E('%s_end:' % label)
    E('s_endpgm')
    return e, va.next

if __name__ == '__main__':
    e, nv = gen_k2(KBASE + '_kernel')
    txt = file_text(['; @launch grid=(224,1,1) block=(512,1,1) lds=163840'], [kernel_text(KBASE + '_kernel', e.text(), nv)])
    open('k2only.s', 'w').write(txt)
    print('vgprs', nv, 'instrs', e.nins, 'nops', e.nnop, e.stats)
```

```python
import sys
from common import *
import k1, k2

def build(path):
    l1 = KBASE + '_kernel'
    l2 = 'hh_k2_kernel'
    e1, nv1 = k1.gen_k1(l1, True)
    e2, nv2 = k2.gen_k2(l2)
    lines = ['; @launch kernel=%s grid=(256,1,1) block=(512,1,1) lds=163840' % l1,
             '; @launch kernel=%s grid=(224,1,1) block=(512,1,1) lds=163840' % l2]
    txt = file_text(lines, [kernel_text(l1, e1.text(), nv1), kernel_text(l2, e2.text(), nv2)])
    open(path, 'w').write(txt)
    print('k1 vgprs', nv1, 'instrs', e1.nins, 'nops', e1.nnop, ' k2 vgprs', nv2, 'instrs', e2.nins)

if __name__ == '__main__':
    build(sys.argv[1] if len(sys.argv) > 1 else 'cdna_kernels/%s.s' % KBASE)
```

```python
from common import *

ACT_BYTES = 64 * 144 * 1024
KVP_OFF = 0x1000000
WS_BYTES = KVP_OFF + 8 * 16 * 8192
RINGA = 114688
MISC = 155648
M_CS = MISC
M_ST = MISC + 4096
LOG2E = 0x3fb8aa3b


def V(b, n=1):
    return vr(b, n)


PROF = False
import os
XF = set(os.environ.get('XF', '').split(','))
PROF_OFF = 0x2000000


class K1:
    def __init__(self, label):
        self.e = Emitter()
        self.label = label
        self.sX, self.sW, self.sWS, self.sB = 8, 12, 16, 20
        (self.sWv, self.sT, self.sG, self.sRb, self.sJ, self.sM0x, self.sM0w, self.sXoff) = range(24, 32)
        self.sT0, self.sT1, self.sT2, self.sT3 = 32, 33, 34, 35
        self.sWc = [36, 37, 38]
        self.sWs = 39
        self.sSt = 40
        self.sStS = 41
        self.sM = [42, 44, 46]
        self.sMh = 48
        self.sPi = 50
        self.sK = 51
        self.sW2, self.sB2, self.sDbg = 68, 72, 76
        va = self.va = RegAlloc('v', 1, 256)
        A = va.alloc
        self.xf = A(112, 4)
        self.acc = [A(16, 4), A(16, 4)]
        self.wf = [A(16, 4), A(16, 4)]
        self.vTr = [A() for _ in range(4)]
        self.vOffW = A(); self.vOffS = A()
        self.ones = A(2, 2)
        self.csacc = A(4, 4)
        self.augA = A(4, 4); self.augB = A(4, 4)
        self.vC = A(); self.vCSw = A(); self.vCSr = A(); self.vLane16 = A()
        self.vb1 = [A() for _ in range(4)]
        self.vT0 = A(); self.vT1 = A(); self.vT2 = A(); self.vT3 = A()
        pool = A(24, 4)
        self.pool = pool
        self.sumacc = pool; self.sqacc = pool + 4
        self.vXa = [pool + 8 + i for i in range(4)]
        self.vOffX = [pool + 12, pool + 13]
        self.vSTw = pool + 14; self.vSTr = pool + 15
        self.tE = pool + 16
        self.pk = pool
        self.vTrS = [A(), A()]
        self.rest = va.next
        self.prof = PROF
        self.nstamp = 0
        self.vProf = 255

    def E(self, text, tag=None):
        self.e.emit(I(text, tag))

    def emit(self, lst):
        self.e.emit(lst)

    def prologue(self):
        E = self.E; s = self
        E('s_load_dwordx2 s[52:53], s[0:1], 0')
        E('s_load_dwordx4 s[60:63], s[0:1], 8')
        E('s_load_dwordx4 s[56:59], s[0:1], 40')
        E('s_load_dwordx4 s[64:67], s[0:1], 72')
        s.stamp('karg')
        E('s_cmp_ge_u32 s2, 256')
        E('s_cbranch_scc1 %s_end' % s.label)
        E('v_lshrrev_b32 v%d, 6, v0' % s.vT0)
        E('v_and_b32 v0, 63, v0')
        E('v_readfirstlane_b32 s%d, v%d' % (s.sWv, s.vT0))
        E('s_and_b32 s%d, s2, 7' % s.sT0)
        E('s_lshr_b32 s%d, s2, 3' % s.sT1)
        E('s_and_b32 s%d, s%d, 1' % (s.sT2, s.sT0))
        E('s_lshl_b32 s%d, s%d, 3' % (s.sT2, s.sT2))
        E('s_and_b32 s%d, s%d, 7' % (s.sT3, s.sT1))
        E('s_add_u32 s%d, s%d, s%d' % (s.sRb, s.sT2, s.sT3))
        E('s_lshr_b32 s%d, s%d, 1' % (s.sT2, s.sT0))
        E('s_lshl_b32 s%d, s%d, 2' % (s.sT2, s.sT2))
        E('s_lshr_b32 s%d, s%d, 3' % (s.sT3, s.sT1))
        E('s_add_u32 s%d, s%d, s%d' % (s.sJ, s.sT2, s.sT3))
        E('s_lshl_b32 s%d, s%d, 11' % (s.sM0x, s.sWv))
        E('s_lshl_b32 s%d, s%d, 10' % (s.sM0w, s.sWv))
        E('s_mul_i32 s%d, s%d, %d' % (s.sXoff, s.sRb, 128 * 896))
        E('v_lshrrev_b32 v%d, 3, v0' % s.vT0)
        E('v_and_b32 v%d, 7, v0' % s.vT1)
        E('v_lshrrev_b32 v%d, 4, v0' % s.vT2)
        E('v_xor_b32 v%d, v%d, v%d' % (s.vT2, s.vT1, s.vT2))
        E('v_lshlrev_b32 v%d, 4, v%d' % (s.vT2, s.vT2))
        E('s_lshl_b32 s%d, s%d, 4' % (s.sT0, s.sWv))
        E('v_add_u32 v%d, s%d, v%d' % (s.vOffX[1], s.sT0, s.vT0))
        E('s_movk_i32 s%d, 896' % s.sT1)
        E('v_mad_u32_u24 v%d, v%d, s%d, v%d' % (s.vOffX[0], s.vOffX[1], s.sT1, s.vT2))
        E('v_xor_b32 v%d, 64, v%d' % (s.vOffX[1], s.vOffX[0]))
        E('v_add_u32 v%d, %d, v%d' % (s.vOffX[1], 8 * 896, s.vOffX[1]))
        E('v_lshrrev_b32 v%d, 2, v0' % s.vT2)
        E('v_and_b32 v%d, 4, v%d' % (s.vT2, s.vT2))
        E('v_xor_b32 v%d, v%d, v%d' % (s.vT1, s.vT1, s.vT2))
        E('s_lshl_b32 s%d, s%d, 3' % (s.sT0, s.sWv))
        E('v_add_u32 v%d, s%d, v%d' % (s.vT0, s.sT0, s.vT0))
        E('s_and_b32 s%d, s%d, 3' % (s.sT, s.sWv))
        E('s_lshr_b32 s%d, s%d, 2' % (s.sG, s.sWv))
        srd(s.e, s.sX, 52, 2048 * 896)

    def dma_x(self, c):
        s = self
        for e_ in range(2):
            self.E('s_add_u32 m0, s%d, %d' % (s.sM0x, c * 16384 + e_ * 1024 - c * 128))
            self.E('buffer_load_dwordx4 v%d, s[%d:%d], s%d offen offset:%d lds' % (s.vOffX[e_], s.sX, s.sX + 3, s.sXoff, c * 128), tag=('x', c))

    def dma_w(self, r, c):
        s = self
        out = [I('s_add_u32 m0, s%d, %d' % (s.sM0w, s.wdst(r, c)))]
        if r == 'S':
            out.append(I('buffer_load_dwordx4 v%d, s[%d:%d], s%d offen lds' % (s.vOffS, s.srdW, s.srdW + 3, s.sWs), tag=('w', r, c)))
            out.append(I('s_add_u32 s%d, s%d, %d' % (s.sWs, s.sWs, 128 * s.wstride)))
        else:
            out.append(I('buffer_load_dwordx4 v%d, s[%d:%d], s%d offen lds' % (s.vOffW, s.srdW, s.srdW + 3, s.sWc[r]), tag=('w', r, c)))
            out.append(I('s_add_u32 s%d, s%d, %d' % (s.sWc[r], s.sWc[r], 64 * s.wstride)))
        return out

    def wdst(self, r, c):
        if r == 0: return RINGA + (c % 5) * 8192
        if r == 'S': return RINGA + ((c + 2) % 5) * 8192
        return (r - 1) * 57344 + c * 8192

    def prologue_dma(self):
        self.stamp('predma')
        for c in range(5):
            self.dma_x(c)
            self.emit(self.dma_w(0, c))
        self.dma_x(5)
        self.dma_x(6)
        self.stamp('dma')

    def setup_addrs(self):
        E = self.E; s = self
        E('s_lshl_b32 s%d, s%d, 1' % (s.sPi, s.sG))
        E('s_xor_b32 s%d, s%d, s%d' % (s.sPi, s.sPi, s.sT))
        E('v_lshrrev_b32 v%d, 5, v0' % s.vT0)
        E('s_lshl_b32 s%d, s%d, 1' % (s.sT1, s.sPi))
        E('v_add_u32 v%d, s%d, v%d' % (s.vT1, s.sT1, s.vT0))
        E('v_bfe_u32 v%d, v0, 1, 3' % s.vT2)
        E('v_xor_b32 v%d, v%d, v%d' % (s.vT1, s.vT1, s.vT2))
        E('v_lshlrev_b32 v%d, 4, v%d' % (s.vT1, s.vT1))
        E('v_and_b32 v%d, 31, v0' % s.vT2)
        E('v_lshl_add_u32 v%d, v%d, 7, v%d' % (s.vT1, s.vT2, s.vT1))
        E('s_lshl_b32 s%d, s%d, 12' % (s.sT1, s.sT))
        E('v_add_u32 v%d, s%d, v%d' % (s.vXa[0], s.sT1, s.vT1))
        for q in range(1, 4):
            E('v_xor_b32 v%d, %d, v%d' % (s.vXa[q], q << 5, s.vXa[0]))
        E('v_lshlrev_b32 v%d, 4, v0' % s.vLane16)
        E('s_lshl_b32 s%d, s%d, 10' % (s.sT1, s.sG))
        E('s_add_u32 s%d, s%d, %d' % (s.sT1, s.sT1, M_CS))
        E('v_add_u32 v%d, s%d, v%d' % (s.vCSr, s.sT1, s.vLane16))
        E('s_lshl_b32 s%d, s%d, 2' % (s.sT1, s.sT))
        E('v_add_u32 v%d, s%d, v%d' % (s.vCSw, s.sT1, s.vCSr))
        E('s_lshl_b32 s%d, s%d, 10' % (s.sT1, s.sT))
        E('s_add_u32 s%d, s%d, %d' % (s.sT1, s.sT1, M_ST))
        E('v_lshlrev_b32 v%d, 5, v%d' % (s.vT2, s.vT2))
        E('v_add_u32 v%d, s%d, v%d' % (s.vSTr, s.sT1, s.vT2))
        E('s_lshl_b32 s%d, s%d, 4' % (s.sT1, s.sG))
        E('v_lshl_add_u32 v%d, v%d, 3, v%d' % (s.vSTw, s.vT0, s.vSTr))
        E('v_add_u32 v%d, s%d, v%d' % (s.vSTw, s.sT1, s.vSTw))
        E('v_mov_b32 v%d, 0x3f803f80' % s.ones)
        E('v_mov_b32 v%d, 0x3f803f80' % (s.ones + 1))
        E('v_mov_b32 v%d, 0' % (s.augA + 3))
        E('s_mov_b32 s%d, 0x22222222' % s.sM[0]); E('s_mov_b32 s%d, 0x22222222' % (s.sM[0] + 1))
        E('s_mov_b32 s%d, 0xcccccccc' % s.sM[1]); E('s_mov_b32 s%d, 0xcccccccc' % (s.sM[1] + 1))
        E('s_mov_b32 s%d, 0x88888888' % s.sM[2]); E('s_mov_b32 s%d, 0x88888888' % (s.sM[2] + 1))
        E('s_mov_b32 s%d, 0' % s.sMh); E('s_mov_b32 s%d, -1' % (s.sMh + 1))

    def tr_base(self, dst, vcol, spi, base):
        E = self.E; s = self
        E('v_lshrrev_b32 v%d, 5, v0' % s.vT0)
        E('v_lshlrev_b32 v%d, 10, v%d' % (s.vT0, s.vT0))
        E('v_bfe_u32 v%d, v0, 2, 2' % s.vT1)
        E('v_lshl_add_u32 v%d, v%d, 7, v%d' % (s.vT0, s.vT1, s.vT0))
        E('v_lshlrev_b32 v%d, 3, v0' % s.vT1)
        E('v_and_b32 v%d, 64, v%d' % (s.vT1, s.vT1))
        E('v_xor_b32 v%d, v%d, v%d' % (s.vT1, s.vT1, vcol))
        E('v_add_u32 v%d, v%d, v%d' % (s.vT0, s.vT0, s.vT1))
        E('s_lshl_b32 s%d, s%d, 11' % (s.sT1, spi))
        E('s_add_u32 s%d, s%d, %d' % (s.sT1, s.sT1, base))
        E('v_add_u32 v%d, s%d, v%d' % (dst, s.sT1, s.vT0))

    def lane_col(self, dst):
        E = self.E; s = self
        E('v_and_b32 v%d, 3, v0' % dst)
        E('v_lshlrev_b32 v%d, 3, v%d' % (dst, dst))
        E('v_bfe_u32 v%d, v0, 4, 1' % s.vT3)
        E('v_lshl_add_u32 v%d, v%d, 5, v%d' % (dst, s.vT3, dst))

    def rd_w(self, imm, slot, dst):
        s = self
        return [I('ds_read_b64_tr_b16 v[%d:%d], v%d offset:%d' % (dst, dst + 1, s.vTr[slot], imm)),
                I('ds_read_b64_tr_b16 v[%d:%d], v%d offset:%d' % (dst + 2, dst + 3, s.vTr[slot], imm + 512))]

    def rd_x(self, c, slot):
        s = self
        d = s.xf + 16 * c + 4 * slot
        return I('ds_read_b128 v[%d:%d], v%d offset:%d' % (d, d + 3, s.vXa[slot], (c % 4) * 16384))

    def mfma(self, d, a, b, c):
        cs = '0' if c is None else 'v[%d:%d]' % (c, c + 15)
        return I('v_mfma_f32_32x32x16_bf16 v[%d:%d], v[%d:%d], v[%d:%d], %s' % (d, d + 15, a, a + 3, b, b + 3, cs))

    def mfma4(self, d, a, b, first):
        cs = '0' if first else 'v[%d:%d]' % (d, d + 3)
        return I('v_mfma_f32_4x4x4_16b_bf16 v[%d:%d], v[%d:%d], v[%d:%d], %s' % (d, d + 3, a, a + 1, b, b + 1, cs))

    def bump_tr(self, delta, n=4):
        return [I('v_add_u32 v%d, 0x%x, v%d' % (self.vTr[q], delta & 0xffffffff, self.vTr[q])) for q in range(n)]

    def chunk_reads(self, r, c):
        s = self
        buf = s.wf[(7 * r + c) % 2]
        if r == 0:
            imm = (c % 5) * 8192
        else:
            imm = c * 8192
        out = []
        for q in range(4):
            if r == 0:
                out.append(s.rd_x(c, q))
            out += s.rd_w(imm, q, buf + 4 * q)
        return out

    def chunk_mfmas(self, r, c, swap=False):
        s = self
        buf = s.wf[(7 * r + c) % 2]
        acc = s.acc[r % 2]
        out = []
        for q in range(4):
            x = s.xf + 16 * c + 4 * q
            w = buf + 4 * q
            cs = None if (c == 0 and q == 0) else acc
            out.append(s.mfma(acc, x, w, cs) if swap else s.mfma(acc, w, x, cs))
            ex = []
            if r == 0 and q < 2:
                f = (c == 0 and q == 0)
                ex = [s.mfma4(s.sumacc, s.ones, x, f), s.mfma4(s.sqacc, x, x, f),
                      s.mfma4(s.sumacc, s.ones, x + 2, False), s.mfma4(s.sqacc, x + 2, x + 2, False)]
            if q == 0:
                c0 = s.mfma4(s.csacc, s.ones, w, c == 0)
                c1 = s.mfma4(s.csacc, s.ones, w + 2, False)
                if ex:
                    ex = [ex[0], c0, ex[1], ex[2], c1, ex[3]]
                else:
                    ex = [c0]
                    out.append(c0)
                    ex = []
                    out.append(('later', c1))
            out += ex
        res = []
        pend = []
        for it in out:
            if isinstance(it, tuple):
                pend.append(it[1])
            else:
                res.append(it)
                if pend and it.passes == 8:
                    res += pend
                    pend = []
        res += pend
        if 'nom4' in XF:
            res = [x for x in res if x.passes != 2]
        if 'nostat' in XF and r == 0:
            res = [x for x in res if not (x.passes == 2 and x.mf[0][0][1] != s.csacc)]
        return res

    def merge(self, main, side):
        return interleave(main, side)

    def stamp(self, name=''):
        if not self.prof:
            return
        i = self.nstamp
        self.nstamp += 1
        self.names = getattr(self, 'names', []) + [name]
        self.E(('s_memtime' if 'cyc' in XF else 's_memrealtime') + ' s[90:91]')
        self.e.emit(Drain(['lgkm']))
        self.E('s_nop 3')
        self.E('v_writelane_b32 v%d, s90, %d' % (self.vProf, i))

    def prof_store(self, base):
        if not self.prof:
            return
        E = self.E
        E('s_lshl_b32 s92, s2, 3')
        E('s_add_u32 s92, s92, s%d' % self.sWv)
        E('s_lshl_b32 s92, s92, 8')
        E('s_add_u32 s92, s92, 0x%x' % base)
        E('v_lshlrev_b32 v%d, 2, v0' % self.vT0)
        E('s_mov_b32 s%d, 0x%x' % (self.sWS + 2, 0x4000000))
        E('buffer_store_dword v%d, v%d, s[%d:%d], s92 offen' % (self.vProf, self.vT0, self.sWS, self.sWS + 3))

    def barrier(self, tags, drain='lgkm', name=''):
        if tags:
            self.e.emit(WaitTag(tags))
        self.e.emit(Drain([drain]))
        if name:
            self.stamp(name)
        self.E('s_barrier')

    def stats_write(self):
        s = self
        q = s.sqacc
        return [I('v_cndmask_b32 v%d, v%d, v%d, s[%d:%d]' % (q, q, q + 1, s.sM[0], s.sM[0] + 1)),
                I('v_cndmask_b32 v%d, v%d, v%d, s[%d:%d]' % (q + 2, q + 2, q + 3, s.sM[2], s.sM[2] + 1)),
                I('v_cndmask_b32 v%d, v%d, v%d, s[%d:%d]' % (s.sumacc + 1, q, q + 2, s.sM[1], s.sM[1] + 1)),
                I('ds_write_b64 v%d, v[%d:%d]' % (s.vSTw, s.sumacc, s.sumacc + 1))]

    def cs_write(self, r):
        s = self
        return [I('ds_write_b32 v%d, v%d offset:%d' % (s.vCSw, s.csacc, (r % 2) * 2048))]

    def stats_read(self, t):
        s = self
        o = []
        o.append(I('ds_read_b128 v[%d:%d], v%d' % (t, t + 3, s.vSTr)))
        o.append(I('ds_read_b128 v[%d:%d], v%d offset:16' % (t + 4, t + 7, s.vSTr)))
        o.append(I('v_add_f32 v%d, v%d, v%d' % (t, t, t + 2)))
        o.append(I('v_add_f32 v%d, v%d, v%d' % (t + 4, t + 4, t + 6)))
        o.append(I('v_add_f32 v%d, v%d, v%d' % (t + 1, t + 1, t + 3)))
        o.append(I('v_add_f32 v%d, v%d, v%d' % (t + 5, t + 5, t + 7)))
        o.append(I('v_add_f32 v%d, v%d, v%d' % (t, t, t + 4)))
        o.append(I('v_add_f32 v%d, v%d, v%d' % (t + 1, t + 1, t + 5)))
        o.append(I('v_mul_f32 v%d, 0x%x, v%d' % (t, f2u(1.0 / 448), t)))
        o.append(I('v_mul_f32 v%d, v%d, v%d' % (t + 2, t, t)))
        o.append(I('v_fma_f32 v%d, v%d, s%d, -v%d' % (t + 1, t + 1, s.sK, t + 2)))
        o.append(I('v_max_f32 v%d, 0, v%d' % (t + 1, t + 1)))
        o.append(I('v_add_f32 v%d, 0x%x, v%d' % (t + 1, f2u(1e-5), t + 1)))
        o.append(I('v_rsq_f32 v%d, v%d' % (t + 7, t + 1)))
        o.append(I('v_cvt_pk_bf16_f32 v%d, v%d, v%d' % (t + 2, t, t)))
        o.append(I('v_and_b32 v%d, 0xffff0000, v%d' % (t + 2, t + 2)))
        o.append(I('v_sub_f32 v%d, v%d, v%d' % (t + 2, t, t + 2)))
        o.append(I('v_cvt_pk_bf16_f32 v%d, v%d, v%d' % (s.augB, t, t + 2)))
        o.append(I('v_mul_f32 v%d, v%d, v%d' % (t + 1, t + 1, t + 7)))
        o.append(I('v_mul_f32 v%d, 0x%x, v%d' % (s.vC, LOG2E, t + 7)))
        o.append(I('v_cndmask_b32 v%d, v%d, 0, s[%d:%d]' % (t + 1, t + 1, s.sMh, s.sMh + 1)))
        o.append(I('v_cvt_pk_bf16_f32 v%d, v%d, v%d' % (t + 3, t + 1, t + 1)))
        o.append(I('v_and_b32 v%d, 0xffff0000, v%d' % (t + 3, t + 3)))
        o.append(I('v_sub_f32 v%d, v%d, v%d' % (t + 3, t + 1, t + 3)))
        o.append(I('v_cvt_pk_bf16_f32 v%d, v%d, v%d' % (s.augB + 1, t, t + 1)))
        o.append(I('v_cvt_pk_bf16_f32 v%d, v%d, 0' % (s.augB + 2, t + 3)))
        o.append(I('v_mov_b32 v%d, 0' % (s.augB + 3)))
        return o

    def aug_col(self, cs, b1, t, half=False):
        s = self
        o = []
        o.append(I('v_cvt_pk_bf16_f32 v%d, -v%d, -v%d' % (s.augA, cs, cs)))
        o.append(I('v_lshlrev_b32 v%d, 16, v%d' % (t + 1, b1)))
        o.append(I('v_and_b32 v%d, 0xffff0000, v%d' % (t, s.augA)))
        o.append(I('v_add_f32 v%d, v%d, v%d' % (t, cs, t)))
        if half:
            o.append(I('v_mul_f32 v%d, 0.5, v%d' % (t + 1, t + 1)))
        o.append(I('v_cvt_pk_bf16_f32 v%d, -v%d, v%d' % (s.augA + 1, t, t + 1)))
        if half:
            o.append(I('v_lshrrev_b32 v%d, 16, v%d' % (s.augA + 2, t + 1)))
        else:
            o.append(I('v_mov_b32 v%d, v%d' % (s.augA + 2, b1)))
        return o

    def cs_read(self, r, t):
        s = self
        return [I('ds_read_b128 v[%d:%d], v%d offset:%d' % (t, t + 3, s.vCSr, (r % 2) * 2048)),
                I('v_add_f32 v%d, v%d, v%d' % (t, t, t + 1)),
                I('v_add_f32 v%d, v%d, v%d' % (t + 2, t + 2, t + 3)),
                I('v_add_f32 v%d, v%d, v%d' % (t, t, t + 2))]

    def mish(self, src, n, t, pk, stores):
        s = self
        o = []
        G = 4
        for g0 in range(0, n, G):
            a = [src + g0 + i for i in range(G)]
            u = [t + i for i in range(G)]
            w = [t + G + i for i in range(G)]
            for i in range(G): o.append(I('v_mul_f32 v%d, v%d, v%d' % (a[i], a[i], s.vC)))
            for i in range(G): o.append(I('v_exp_f32 v%d, v%d' % (u[i], a[i])))
            for i in range(G): o.append(I('v_fma_f32 v%d, v%d, -0.5, -1.0' % (w[i], u[i])))
            for i in range(G): o.append(I('v_fma_f32 v%d, v%d, v%d, -1.0' % (u[i], u[i], w[i])))
            for i in range(G): o.append(I('v_rcp_f32 v%d, v%d' % (u[i], u[i])))
            for i in range(G): o.append(I('v_fmac_f32 v%d, v%d, v%d' % (a[i], a[i], u[i])))
            for i in range(0, G, 2):
                o.append(I('v_cvt_pk_bf16_f32 v%d, v%d, v%d' % (pk + (g0 + i) // 2, a[i], a[i + 1])))
            if (g0 + G) in stores:
                o += stores[g0 + G]
        return o


import struct
def f2u(x):
    return struct.unpack('<I', struct.pack('<f', x))[0]


def rm(reads, mf, lead=3):
    if not mf:
        return list(reads)
    big = [i for i, m in enumerate(mf) if m.passes == 8]
    out = list(reads[:lead])
    rest = list(reads[lead:])
    n = len(mf)
    return out + interleave(mf, rest, 0, max(1, n - 1))


def round0(s, sched, extra_wait6, swap=False):
    for st in range(7):
        tags = [('x', st), ('w', 0, st)]
        if st == 6:
            tags += extra_wait6
        if st == 0: s.stamp('setup')
        s.barrier(tags, name=({0: 'c0', 1: 'c1', 3: 'c3', 6: 'c6'}.get(st, '')))
        pre = []
        for (r, c) in sched.get(st, []):
            pre += s.dma_w(r, c)
        if st == 4:
            pre = [I('v_add_u32 v%d, 0x10000, v%d' % (s.vXa[q], s.vXa[q])) for q in range(4)] + pre
        reads = s.chunk_reads(0, st)
        mf = s.chunk_mfmas(0, st - 1, swap) if st > 0 else []
        if st == 4:
            s.emit(pre[:4]); pre = pre[4:]
        s.emit(reads[:3])
        s.emit(pre)
        s.emit(rm(reads[3:], mf, lead=2))


def ffn_path(s):
    E = s.E
    s.srdW = s.sW; s.wstride = 3584
    srd(s.e, s.sW, 56, 448 * 3584)
    E('s_sub_u32 s%d, s%d, 8' % (s.sJ, s.sJ))
    E('s_mul_i32 s%d, s%d, 7' % (s.sT0, s.sJ))
    E('s_and_b32 s%d, s%d, 1' % (s.sT1, s.sJ))
    E('s_add_u32 s%d, s%d, s%d' % (s.sT2, s.sT0, s.sT1))
    E('s_lshl_b32 s%d, s%d, 6' % (s.sWc[0], s.sT2))
    E('s_add_u32 s%d, s%d, 128' % (s.sWc[1], s.sWc[0]))
    E('s_add_u32 s%d, s%d, 256' % (s.sWc[2], s.sWc[0]))
    E('s_movk_i32 s%d, 3584' % s.sK)
    E('v_lshlrev_b32 v%d, 4, v%d' % (s.vT2, s.vT1))
    E('v_mad_u32_u24 v%d, v%d, s%d, v%d' % (s.vOffW, s.vT0, s.sK, s.vT2))
    s.prologue_dma()
    E('s_mul_i32 s%d, s%d, 6' % (s.sT1, s.sT1))
    E('s_sub_u32 s%d, s%d, s%d' % (s.sT0, s.sT0, s.sT1))
    E('s_add_u32 s%d, s%d, 6' % (s.sT0, s.sT0))
    E('s_lshl_b32 s%d, s%d, 6' % (s.sWs, s.sT0))
    E('s_lshl_b32 s%d, s%d, 5' % (s.sT1, s.sG))
    E('v_add_u32 v%d, s%d, v%d' % (s.vT0, s.sT1, s.vT0))
    E('v_lshrrev_b32 v%d, 2, v%d' % (s.vT2, s.vT1))
    E('v_lshl_add_u32 v%d, v%d, 5, v%d' % (s.vT0, s.vT2, s.vT0))
    E('v_and_b32 v%d, 3, v%d' % (s.vT2, s.vT1))
    E('v_lshlrev_b32 v%d, 4, v%d' % (s.vT2, s.vT2))
    E('v_mad_u32_u24 v%d, v%d, s%d, v%d' % (s.vOffS, s.vT0, s.sK, s.vT2))
    srd(s.e, s.sB, 58, 1792 * 2)
    E('v_and_b32 v%d, 31, v0' % s.vT2)
    E('v_lshlrev_b32 v%d, 1, v%d' % (s.vT2, s.vT2))
    E('s_add_u32 s%d, s%d, s%d' % (s.sT2, s.sT2, s.sG))
    E('s_lshl_b32 s%d, s%d, 6' % (s.sT1, s.sT2))
    for r in range(3):
        E('buffer_load_ushort v%d, v%d, s[%d:%d], s%d offen offset:%d' % (s.vb1[r], s.vT2, s.sB, s.sB + 3, s.sT1, 128 * r))
    E('buffer_load_ushort v%d, v%d, s[%d:%d], s%d offen' % (s.vb1[3], s.vT2, s.sB, s.sB + 3, s.sWs))
    E('s_lshl_b32 s%d, s%d, 2' % (s.sT1, s.sRb))
    E('s_add_u32 s%d, s%d, s%d' % (s.sT1, s.sT1, s.sT))
    E('s_mul_i32 s%d, s%d, 144' % (s.sT1, s.sT1))
    E('s_lshl_b32 s%d, s%d, 1' % (s.sT2, s.sT2))
    E('s_add_u32 s%d, s%d, s%d' % (s.sSt, s.sT1, s.sT2))
    E('s_lshl_b32 s%d, s%d, 10' % (s.sSt, s.sSt))
    E('s_lshl_b32 s%d, s%d, 1' % (s.sT0, s.sT0))
    E('s_add_u32 s%d, s%d, s%d' % (s.sT0, s.sT0, s.sG))
    E('s_add_u32 s%d, s%d, s%d' % (s.sStS, s.sT1, s.sT0))
    E('s_lshl_b32 s%d, s%d, 10' % (s.sStS, s.sStS))
    srd(s.e, s.sWS, 66, WS_BYTES)
    s.setup_addrs()
    s.lane_col(s.vT2)
    E('s_lshl_b32 s%d, s%d, 6' % (s.sT0, s.sG))
    E('v_add_u32 v%d, s%d, v%d' % (s.vTrS[1], s.sT0, s.vT2))
    s.tr_base(s.vTr[0], s.vTrS[1], s.sPi, RINGA)
    for q in range(1, 4):
        E('v_xor_b32 v%d, %d, v%d' % (s.vTr[q], q << 11, s.vTr[0]))
    E('s_lshr_b32 s%d, s%d, 1' % (s.sT0, s.sPi))
    E('s_lshl_b32 s%d, s%d, 6' % (s.sT0, s.sT0))
    E('v_add_u32 v%d, s%d, v%d' % (s.vTrS[1], s.sT0, s.vT2))
    E('s_and_b32 s%d, s%d, 1' % (s.sT0, s.sT))
    s.tr_base(s.vTrS[0], s.vTrS[1], s.sT0, RINGA)
    E('v_xor_b32 v%d, %d, v%d' % (s.vTrS[1], 1 << 11, s.vTrS[0]))
    E('s_mov_b32 s%d, 0x%x' % (s.sK, f2u(1.0 / 448)))

    sched = {1: [(0, 5), (1, 0), (1, 1)], 2: [(0, 6), (1, 2), (1, 3)], 3: [(1, 4), (1, 5), ('S', 0)],
             4: [(1, 6), (2, 0), ('S', 1)], 5: [(2, 1), (2, 2), ('S', 2)], 6: [(2, 3), (2, 4), ('S', 3)]}
    round0(s, sched, [('w', 1, c) for c in range(2)])
    s.emit(s.bump_tr(-RINGA))
    s.emit(rm(s.chunk_reads(1, 0), s.chunk_mfmas(0, 6)))
    s.emit(s.stats_write() + s.cs_write(0))
    s.emit(rm(s.chunk_reads(1, 1), s.chunk_mfmas(1, 0)))

    def s_reads(u):
        buf = s.wf[(21 + u) % 2]
        out = []
        for ci in (2 * u, 2 * u + 1):
            if ci > 6: continue
            for rho in range(2):
                d = buf + 4 * (2 * (ci % 2) + rho)
                imm = ((u + 2) % 5) * 8192 + (ci % 2) * 4096
                out.append(I('ds_read_b64_tr_b16 v[%d:%d], v%d offset:%d' % (d, d + 1, s.vTrS[rho], imm)))
                out.append(I('ds_read_b64_tr_b16 v[%d:%d], v%d offset:%d' % (d + 2, d + 3, s.vTrS[rho], imm + 512)))
        return out

    def s_mfmas(u):
        buf = s.wf[(21 + u) % 2]
        acc = s.acc[1]
        out = []
        for ci in (2 * u, 2 * u + 1):
            if ci > 6: continue
            for rho in range(2):
                w = buf + 4 * (2 * (ci % 2) + rho)
                x = s.xf + 16 * ci + 4 * rho
                first = (ci == 0 and rho == 0)
                out.append(s.mfma4(s.csacc, s.ones, w, first))
                out.append(s.mfma(acc, w, x, None if first else acc))
                out.append(s.mfma4(s.csacc, s.ones, w + 2, False))
        return out

    for r in (1, 2, 3):
        if r == 1:
            s.barrier([('w', 1, c) for c in range(7)] + [('w', 2, 0), ('w', 2, 1)], 'ldsw', name='R1')
            pre = s.dma_w(2, 5) + s.dma_w(2, 6)
        elif r == 2:
            s.barrier([('w', 2, c) for c in range(7)] + [('w', 'S', c) for c in range(4)], 'ldsw', name='R2')
            pre = []
        else:
            s.barrier([], 'ldsw', name='R3')
            pre = []
        p = r - 1
        t = s.tE
        side = []
        if r == 1:
            side += s.stats_read(t)
        side += s.cs_read(p, t)
        side += s.aug_col(t, s.vb1[p], t + 2)
        accp = s.acc[p % 2]
        side.append(s.mfma(accp, s.augA, s.augB, accp))
        st = []
        for kk in range(2):
            ins = [I('buffer_store_dwordx4 v[%d:%d], v%d, s[%d:%d], s%d offen offset:%d' % (s.pk + 4 * kk, s.pk + 4 * kk + 3, s.vLane16, s.sWS, s.sWS + 3, s.sSt, 1024 * kk))]
            if kk == 1 and p < 2:
                ins.append(I('s_add_u32 s%d, s%d, 4096' % (s.sSt, s.sSt)))
            st.append(ins)
        side += s.mish(accp, 16, t, s.pk, {8: st[0], 16: st[1]})
        if 'noside' in XF:
            side = st[0] + st[1]
        if 'noaug' in XF:
            side = s.mish(accp, 16, t, s.pk, {8: st[0], 16: st[1]})
        main = []
        if r < 3:
            for c in range(1, 7):
                if c < 6:
                    rds = s.chunk_reads(r, c + 1)
                elif r == 1:
                    rds = s.bump_tr(57344) + s.chunk_reads(2, 0)
                else:
                    rds = s_reads(0)
                main += rm(rds, s.chunk_mfmas(r, c), lead=(3 if not (c == 6 and r == 1) else 7))
        else:
            for u in range(1, 4):
                rds = s_reads(u + 1) if u < 3 else []
                main += rm(rds, s_mfmas(u))
        s.emit(pre)
        s.emit(interleave(main, side, 0, len(main) - 4))
        if r < 3:
            s.emit(s.cs_write(r))
            if r == 1:
                s.emit(rm(s.chunk_reads(2, 1), s.chunk_mfmas(2, 0)))
            else:
                s.emit(rm(s_reads(1), s_mfmas(0)))
    t = s.tE
    s.emit(s.aug_col(s.csacc, s.vb1[3], t, half=True))
    acc = s.acc[1]
    s.emit(s.mfma(acc, s.augA, s.augB, acc))
    E('s_lshl_b32 s%d, s%d, 12' % (s.sT0, s.sWv))
    E('v_add_u32 v%d, s%d, v%d' % (s.vT0, s.sT0, s.vLane16))
    E('s_lshl_b32 s%d, s%d, 12' % (s.sT0, s.sT))
    E('s_lshl_b32 s%d, s%d, 11' % (s.sT1, s.sG))
    E('s_add_u32 s%d, s%d, s%d' % (s.sT0, s.sT0, s.sT1))
    E('v_add_u32 v%d, s%d, v%d' % (s.vT1, s.sT0, s.vLane16))
    for q in range(4):
        E('ds_write_b128 v%d, v[%d:%d] offset:%d' % (s.vT0, acc + 4 * q, acc + 4 * q + 3, 1024 * q))
    s.barrier([], 'lgkm', name='XCH')
    a0 = s.acc[0]
    for gp in range(2):
        for q in range(2):
            d = a0 + 8 * gp + 4 * q
            E('ds_read_b128 v[%d:%d], v%d offset:%d' % (d, d + 3, s.vT1, 16384 * gp + 1024 * q))
    for i in range(8):
        E('v_add_f32 v%d, v%d, v%d' % (a0 + i, a0 + i, a0 + 8 + i))
    st = [I('buffer_store_dwordx4 v[%d:%d], v%d, s[%d:%d], s%d offen' % (s.pk, s.pk + 3, s.vLane16, s.sWS, s.sWS + 3, s.sStS))]
    s.emit(s.mish(a0, 8, t, s.pk, {8: st}))


def gen_k1(label, attn=True, prof=False, twice=False):
    import k1
    k1.PROF = prof
    globals()['PROF'] = prof
    s = K1(label)
    if prof:
        s.E('s_mov_b32 s93, 0')
        s.E('v_mov_b32 v254, v0')
        s.E('v_mov_b32 v255, 0')
        s.e.out.append('%s_again:' % label)
        s.E('v_mov_b32 v0, v254')
        s.E(('s_memtime' if 'cyc' in XF else 's_memrealtime') + ' s[90:91]')
        s.e.emit(Drain(['lgkm']))
        s.E('v_writelane_b32 v255, s90, 0')
        s.nstamp = 1
        s.names = ['start']
    s.prologue()
    s.E('s_cmp_lt_u32 s%d, 8' % s.sJ)
    s.E('s_cbranch_scc1 %s_attn' % label)
    s.e.emit(Fence())
    save = (list(s.e.lg), list(s.e.vm))
    ns = s.nstamp
    nm = list(getattr(s, 'names', []))
    def again():
        if not twice: return
        s.e.emit(Drain(['vm', 'lgkm']))
        s.e.emit(Fence())
        s.E('s_barrier')
        s.E('s_add_u32 s93, s93, 1')
        s.E('s_cmp_lt_u32 s93, 2')
        s.E('s_cbranch_scc1 %s_again' % label)
    ffn_path(s)
    s.stamp('end')
    again()
    s.prof_store(PROF_OFF)
    s.ffn_names = list(getattr(s, 'names', []))
    s.E('s_endpgm')
    s.e.out.append('%s_attn:' % label)
    s.e.lg, s.e.vm = save
    s.e.hist = []
    s.nstamp = ns
    s.names = nm
    if attn:
        import k1_attn
        k1_attn.attn_path(s)
        s.stamp('end')
        again()
        s.prof_store(PROF_OFF)
    s.attn_names = list(getattr(s, 'names', []))
    s.E('%s_end:' % label)
    s.E('s_endpgm')
    s.e.k1 = s
    return s.e, (256 if prof else s.va.next)


if __name__ == '__main__':
    import sys
    attn = len(sys.argv) > 1 and sys.argv[1] == 'attn'
    e, nv = gen_k1(KBASE + '_kernel', attn)
    txt = file_text(['; @launch grid=(256,1,1) block=(512,1,1) lds=163840'], [kernel_text(KBASE + '_kernel', e.text(), nv)])
    open('k1only.s', 'w').write(txt)
    print('vgprs', nv, 'instrs', e.nins, 'nops', e.nnop, e.stats)
```

```python
from k1 import *

BIGNEG = 0xf149f2ca


def attn_path(s):
    E = s.E
    A = s.va.alloc
    Id = A(8, 4)
    Id4 = A(2, 2)
    vWp = s.vOffS
    vMx, vN, vZ, vZ2 = s.vb1[0], s.vb1[1], s.vb1[2], s.vb1[3]
    vB1a, vB1b = s.vTrS[0], s.vTrS[1]
    vM2 = A(); vN2 = A()
    kb = s.pool; EE = s.pool + 8
    s.srdW = s.sW2; s.wstride = 2688
    sFlag = 80; sGat = 81; sSpin = 82; sKvp = 83; sMl30 = 84
    srd(s.e, s.sW2, 60, 448 * 2688)
    hp = s.sJ
    E('s_mul_i32 s%d, s%d, 112' % (s.sWc[2], hp))
    E('s_add_u32 s%d, s%d, 896' % (s.sWc[0], s.sWc[2]))
    E('s_add_u32 s%d, s%d, 1792' % (s.sWc[1], s.sWc[2]))
    E('s_movk_i32 s%d, 2688' % s.sK)
    E('v_lshlrev_b32 v%d, 4, v%d' % (s.vT2, s.vT1))
    E('v_mad_u32_u24 v%d, v%d, s%d, v%d' % (s.vOffW, s.vT0, s.sK, s.vT2))
    E('v_cmp_eq_u32 vcc, 7, v%d' % s.vT1)
    E('v_mov_b32 v%d, 0x40000000' % s.vT2)
    E('v_cndmask_b32 v%d, v%d, v%d, vcc' % (s.vOffW, s.vOffW, s.vT2))
    s.prologue_dma()
    srd(s.e, s.sB2, 62, 16 * 1568)
    srd(s.e, s.sWS, 66, WS_BYTES)
    srd(s.e, s.sDbg, 64, 256)
    s.setup_addrs()
    s.lane_col(s.vT2)
    E('s_mul_i32 s%d, s%d, 56' % (s.sT0, s.sG))
    E('v_add_u32 v%d, s%d, v%d' % (vWp, s.sT0, s.vT2))
    E('v_cmp_eq_u32 vcc, 56, v%d' % s.vT2)
    E('v_mov_b32 v%d, 112' % s.vT3)
    E('v_cndmask_b32 v%d, v%d, v%d, vcc' % (vWp, vWp, s.vT3))
    s.tr_base(s.vTr[0], vWp, s.sPi, RINGA)
    for q in range(1, 4):
        E('v_xor_b32 v%d, %d, v%d' % (s.vTr[q], q << 11, s.vTr[0]))
    E('v_min_u32 v%d, 48, v%d' % (s.vT2, s.vT2))
    E('v_lshrrev_b32 v%d, 5, v0' % s.vT0)
    E('v_bfe_u32 v%d, v0, 2, 2' % s.vT1)
    E('v_lshl_add_u32 v%d, v%d, 2, v%d' % (s.vT0, s.vT0, s.vT1))
    E('v_mad_u32_u24 v%d, v%d, 56, v%d' % (vWp, s.vT0, s.vT2))
    E('s_mul_i32 s%d, s%d, 1568' % (s.sT0, s.sG))
    E('s_add_u32 s%d, s%d, %d' % (s.sT0, s.sT0, RINGA + 2 * 8192))
    E('v_add_u32 v%d, s%d, v%d' % (vWp, s.sT0, vWp))
    E('v_and_b32 v%d, 31, v0' % s.vT0)
    E('v_lshrrev_b32 v%d, 5, v0' % s.vT1)
    E('v_lshlrev_b32 v%d, 2, v%d' % (s.vT1, s.vT1))
    E('v_sub_u32 v%d, v%d, v%d' % (s.vT1, s.vT0, s.vT1))
    E('v_lshlrev_b32 v%d, 4, v%d' % (s.vT1, s.vT1))
    E('s_movk_i32 s%d, 0x3f80' % s.sT0)
    for kk in range(2):
        for m in range(4):
            cst = 16 * kk + 8 * (m // 2) + 2 * (m % 2)
            d = Id + 4 * kk + m
            E('v_subrev_u32 v%d, %d, v%d' % (s.vT2, 16 * cst, s.vT1))
            E('v_lshlrev_b32 v%d, v%d, s%d' % (d, s.vT2, s.sT0))
            E('v_cmp_gt_u32 vcc, 32, v%d' % s.vT2)
            E('v_cndmask_b32 v%d, 0, v%d, vcc' % (d, d))
    E('v_and_b32 v%d, 1, v0' % s.vT2)
    E('v_lshlrev_b32 v%d, 4, v%d' % (s.vT2, s.vT2))
    E('v_lshlrev_b32 v%d, v%d, s%d' % (s.vT2, s.vT2, s.sT0))
    E('v_cndmask_b32 v%d, v%d, 0, s[%d:%d]' % (Id4, s.vT2, s.sM[1], s.sM[1] + 1))
    E('v_cndmask_b32 v%d, 0, v%d, s[%d:%d]' % (Id4 + 1, s.vT2, s.sM[1], s.sM[1] + 1))
    E('v_cmp_eq_u32 vcc, 28, v%d' % s.vT0)
    E('v_cndmask_b32 v%d, 0, 1.0, vcc' % vB1a)
    E('v_cmp_eq_u32 vcc, 29, v%d' % s.vT0)
    E('v_mov_b32 v%d, 0x3f80' % s.vT2)
    E('v_cndmask_b32 v%d, 0, v%d, vcc' % (vB1b, s.vT2))
    E('v_cmp_eq_u32 s[%d:%d], 30, v%d' % (sMl30, sMl30 + 1, s.vT0))
    E('s_lshl_b32 s%d, s%d, 2' % (s.sT1, s.sRb))
    E('s_add_u32 s%d, s%d, s%d' % (s.sT1, s.sT1, s.sT))
    E('s_mul_i32 s%d, s%d, 144' % (s.sT1, s.sT1))
    E('s_lshl_b32 s%d, s%d, 2' % (s.sT2, hp))
    E('s_lshl_b32 s%d, s%d, 1' % (s.sT3, s.sG))
    E('s_add_u32 s%d, s%d, s%d' % (s.sT2, s.sT2, s.sT3))
    E('s_add_u32 s%d, s%d, s%d' % (s.sSt, s.sT1, s.sT2))
    E('s_add_u32 s%d, s%d, 112' % (s.sSt, s.sSt))
    E('s_lshl_b32 s%d, s%d, 10' % (s.sSt, s.sSt))
    E('s_lshl_b32 s%d, s%d, 17' % (sGat, hp))
    E('s_lshl_b32 s%d, s%d, 12' % (s.sT2, s.sG))
    E('s_add_u32 s%d, s%d, s%d' % (sGat, sGat, s.sT2))
    E('s_lshl_b32 s%d, s%d, 10' % (s.sT2, s.sT))
    E('s_add_u32 s%d, s%d, s%d' % (sGat, sGat, s.sT2))
    E('s_add_u32 s%d, s%d, 0x%x' % (sGat, sGat, KVP_OFF))
    E('s_lshl_b32 s%d, s%d, 13' % (s.sT2, s.sRb))
    E('s_add_u32 s%d, s%d, s%d' % (sKvp, sGat, s.sT2))
    E('s_lshl_b32 s%d, s%d, 3' % (sFlag, hp))
    E('s_add_u32 s%d, s%d, s%d' % (sFlag, sFlag, s.sWv))
    E('s_lshl_b32 s%d, s%d, 2' % (sFlag, sFlag))
    E('s_mul_i32 s%d, s%d, 3136' % (s.sWs, hp))
    E('s_lshl_b32 s%d, s%d, 10' % (s.sT2, s.sT))
    E('s_add_u32 s%d, s%d, s%d' % (s.sWs, s.sWs, s.sT2))
    E('s_add_u32 s%d, s%d, %d' % (s.sStS, s.sT2, RINGA + 2 * 8192))
    E('s_mov_b32 s%d, 0x%x' % (s.sK, f2u(1.0 / 448)))

    sched = {1: [(0, 5), (1, 0), (1, 1)], 2: [(0, 6), (1, 2), (1, 3)], 3: [(1, 4), (1, 5), 'P'],
             4: [(1, 6), (2, 0)], 5: [(2, 1), (2, 2)], 6: [(2, 3), (2, 4)]}
    dma_w0 = s.dma_w
    def dma_w(r, c=None):
        if r == 'P':
            return [I('s_mov_b32 m0, s%d' % s.sStS),
                    I('buffer_load_dwordx4 v%d, s[%d:%d], s%d offen lds' % (s.vLane16, s.sB2, s.sB2 + 3, s.sWs), tag=('w', 'P', 0))]
        return dma_w0(r, c)
    s.dma_w = dma_w
    sched[3] = [(1, 4), (1, 5), ('P', 0)]
    round0(s, sched, [('w', 1, c) for c in range(2)])
    s.emit(s.bump_tr(-RINGA))
    s.emit(rm(s.chunk_reads(1, 0), s.chunk_mfmas(0, 6)))
    s.emit(s.stats_write() + s.cs_write(0))
    s.emit(rm(s.chunk_reads(1, 1), s.chunk_mfmas(1, 0, swap=True)))

    def aug_col0(cs, t, b1a=None, b1b=None):
        o = []
        o.append(I('v_cvt_pk_bf16_f32 v%d, -v%d, -v%d' % (s.augA, cs, cs)))
        o.append(I('v_and_b32 v%d, 0xffff0000, v%d' % (t, s.augA)))
        o.append(I('v_add_f32 v%d, v%d, v%d' % (t, cs, t)))
        if b1a is None:
            o.append(I('v_cvt_pk_bf16_f32 v%d, -v%d, 0' % (s.augA + 1, t)))
            o.append(I('v_mov_b32 v%d, 0' % (s.augA + 2)))
        else:
            o.append(I('v_cvt_pk_bf16_f32 v%d, -v%d, v%d' % (s.augA + 1, t, b1a)))
            o.append(I('v_mov_b32 v%d, v%d' % (s.augA + 2, b1b)))
        return o

    def feat_common(P):
        o = []
        for kk in range(2):
            for sec in range(2):
                d = EE + 4 * kk + 2 * sec
                o.append(I('ds_read_b64_tr_b16 v[%d:%d], v%d offset:%d' % (d, d + 1, vWp, 896 * kk + 448 * sec)))
        for i in range(8):
            o.append(I('v_cvt_pk_bf16_f32 v%d, v%d, v%d' % (kb + i, P + 2 * i, P + 2 * i + 1)))
        o.append(s.mfma(P, EE, kb, None))
        o.append(s.mfma(P, EE + 4, kb + 4, P))
        o.append(I('v_max3_f32 v%d, v%d, v%d, v%d' % (vMx, P, P + 1, P + 2)))
        o.append(I('v_min3_f32 v%d, v%d, v%d, v%d' % (vN, P, P + 1, P + 2)))
        for i in range(3, 15, 2):
            o.append(I('v_max3_f32 v%d, v%d, v%d, v%d' % (vMx, vMx, P + i, P + i + 1)))
            o.append(I('v_min3_f32 v%d, v%d, v%d, v%d' % (vN, vN, P + i, P + i + 1)))
        o.append(I('v_max_f32 v%d, v%d, v%d' % (vMx, vMx, P + 15)))
        o.append(I('v_min_f32 v%d, v%d, v%d' % (vN, vN, P + 15)))
        o.append(I('v_xor_b32 v%d, 0x80000000, v%d' % (vN, vN)))
        o.append(I('v_permlane32_swap_b32 v%d, v%d' % (vMx, vN)))
        o.append(I('v_max_f32 v%d, v%d, v%d' % (vMx, vMx, vN)))
        o.append(I('v_mul_f32 v%d, v%d, v%d' % (vMx, vMx, s.vC)))
        o.append(I('v_xor_b32 v%d, 0x80000000, v%d' % (vMx, vMx)))
        o.append(I('v_mov_b32 v%d, v%d' % (vN, vMx)))
        o.append(I('v_permlane32_swap_b32 v%d, v%d' % (vMx, vN)))
        o.append(I('v_mov_b32 v%d, 0x%x' % (vZ, BIGNEG)))
        o.append(I('v_cndmask_b32 v%d, v%d, v%d, s[%d:%d]' % (vM2, vMx, vZ, s.sMh, s.sMh + 1)))
        o.append(I('v_cndmask_b32 v%d, v%d, v%d, s[%d:%d]' % (vN2, vN, vZ, s.sMh, s.sMh + 1)))
        for g0 in range(0, 16, 4):
            for i in range(g0, g0 + 4):
                o.append(I('v_fma_f32 v%d, v%d, v%d, v%d' % (EE + i, P + i, s.vC, vM2 if i >= 12 else vMx)))
            for i in range(g0, g0 + 4):
                o.append(I('v_fma_f32 v%d, -v%d, v%d, v%d' % (P + i, P + i, s.vC, vN2 if i >= 12 else vN)))
            for i in range(g0, g0 + 4):
                o.append(I('v_exp_f32 v%d, v%d' % (EE + i, EE + i)))
            for i in range(g0, g0 + 4):
                o.append(I('v_exp_f32 v%d, v%d' % (P + i, P + i)))
        return o

    s.barrier([('w', 1, c) for c in range(7)] + [('w', 2, 0), ('w', 2, 1), ('w', 'P', 0)], 'ldsw', name='R1')
    pre = s.dma_w(2, 5) + s.dma_w(2, 6)
    t = s.tE
    P = s.acc[0]
    side = s.stats_read(t) + s.cs_read(0, t) + aug_col0(t, t + 2)
    side.append(s.mfma(P, s.augA, s.augB, P))
    side += feat_common(P)
    side.append(I('v_add_f32 v%d, v%d, v%d' % (vZ, EE, EE + 1)))
    side.append(I('v_add_f32 v%d, v%d, v%d' % (vZ2, P, P + 1)))
    for i in range(2, 16):
        side.append(I('v_add_f32 v%d, v%d, v%d' % (vZ, vZ, EE + i)))
        side.append(I('v_add_f32 v%d, v%d, v%d' % (vZ2, vZ2, P + i)))
    side.append(I('v_permlane32_swap_b32 v%d, v%d' % (vZ, vZ2)))
    side.append(I('v_add_f32 v%d, v%d, v%d' % (vZ, vZ, vZ2)))
    side.append(I('v_rcp_f32 v%d, v%d' % (vZ, vZ)))
    side.append(I('v_mul_f32 v%d, v%d, v%d' % (vZ, vZ, s.vC)))
    side.append(I('v_mov_b32 v%d, v%d' % (vZ2, vZ)))
    side.append(I('v_permlane32_swap_b32 v%d, v%d' % (vZ, vZ2)))
    for i in range(0, 16, 2):
        side.append(I('v_mul_f32 v%d, v%d, v%d' % (EE + i, EE + i, vZ)))
        side.append(I('v_mul_f32 v%d, v%d, v%d' % (EE + i + 1, EE + i + 1, vZ)))
        side.append(I('v_cvt_pk_bf16_f32 v%d, v%d, v%d' % (kb + i // 2, EE + i, EE + i + 1)))
    for i in range(0, 16, 2):
        side.append(I('v_mul_f32 v%d, v%d, v%d' % (P + i, P + i, vZ2)))
        side.append(I('v_mul_f32 v%d, v%d, v%d' % (P + i + 1, P + i + 1, vZ2)))
        side.append(I('v_cvt_pk_bf16_f32 v%d, v%d, v%d' % (EE + i // 2, P + i, P + i + 1)))
    side.append(s.mfma(P, kb, Id, None))
    side.append(s.mfma(P, kb + 4, Id + 4, P))
    for i in range(8):
        side.append(I('v_cvt_pk_bf16_f32 v%d, v%d, v%d' % (kb + i, P + 2 * i, P + 2 * i + 1)))
    side.append(s.mfma(P, EE, Id, None))
    side.append(s.mfma(P, EE + 4, Id + 4, P))
    for i in range(8):
        side.append(I('v_cvt_pk_bf16_f32 v%d, v%d, v%d' % (EE + 8 + i, P + 2 * i, P + 2 * i + 1)))
    main = []
    for c in range(1, 7):
        rds = s.chunk_reads(1, c + 1) if c < 6 else s.bump_tr(57344) + s.chunk_reads(2, 0)
        main += rm(rds, s.chunk_mfmas(1, c, swap=True), lead=(3 if c < 6 else 7))
    s.emit(pre)
    s.emit(interleave(main, side, 0, len(main) - 2))
    s.emit(s.cs_write(1))
    s.emit(rm(s.chunk_reads(2, 1), s.chunk_mfmas(2, 0)))

    s.barrier([('w', 2, c) for c in range(7)], 'lgkm', name='R2')
    Vt = s.acc[1]
    vb = EE
    tt = s.csacc
    side = [I('ds_read_b128 v[%d:%d], v%d offset:%d' % (vb, vb + 3, s.vCSr, 2048)),
            I('v_add_f32 v%d, v%d, v%d' % (vb, vb, vb + 1)),
            I('v_add_f32 v%d, v%d, v%d' % (vb + 2, vb + 2, vb + 3)),
            I('v_add_f32 v%d, v%d, v%d' % (vb, vb, vb + 2))]
    side += aug_col0(vb, vb + 2, vB1a, vB1b)
    side.append(s.mfma(Vt, s.augB, s.augA, Vt))
    for i in range(8):
        side.append(I('v_cvt_pk_bf16_f32 v%d, v%d, v%d' % (vb + i, Vt + 2 * i, Vt + 2 * i + 1)))
    side.append(I('s_lshl_b32 s%d, s%d, 13' % (s.sT0, s.sWv)))
    side.append(I('v_add_u32 v%d, s%d, v%d' % (vMx, s.sT0, s.vLane16)))
    for blk in range(2):
        pT = kb if blk == 0 else EE + 8
        side.append(s.mfma(Vt, pT, vb, None))
        side.append(s.mfma(Vt, pT + 4, vb + 4, Vt))
        for q in range(4):
            side.append(I('ds_write_b128 v%d, v[%d:%d] offset:%d' % (vMx, Vt + 4 * q, Vt + 4 * q + 3, 4096 * blk + 1024 * q)))
    side.append(I('s_lshl_b32 s%d, s%d, 15' % (s.sT0, s.sG)))
    side.append(I('s_lshl_b32 s%d, s%d, 11' % (s.sT1, s.sT)))
    side.append(I('s_add_u32 s%d, s%d, s%d' % (s.sT0, s.sT0, s.sT1)))
    side.append(I('v_add_u32 v%d, s%d, v%d' % (vN, s.sT0, s.vLane16)))
    mainA = []
    for c in range(1, 4):
        mainA += rm(s.chunk_reads(2, c + 1), s.chunk_mfmas(2, c))
    s.emit(interleave(mainA, side, 0, len(mainA) - 2))
    s.barrier([], 'ldsw', name='KVR')
    side = []
    R = s.pool
    dst = [Vt, Vt + 8, s.pool, s.pool + 8]
    for tp in range(4):
        for q in range(2):
            side.append(I('ds_read_b128 v[%d:%d], v%d offset:%d' % (dst[tp] + 4 * q, dst[tp] + 4 * q + 3, vN, 8192 * tp + 1024 * q)))
    for i in range(8):
        side.append(I('v_add_f32 v%d, v%d, v%d' % (Vt + i, Vt + i, Vt + 8 + i)))
        side.append(I('v_add_f32 v%d, v%d, v%d' % (s.pool + i, s.pool + i, s.pool + 8 + i)))
    for i in range(8):
        side.append(I('v_add_f32 v%d, v%d, v%d' % (Vt + i, Vt + i, s.pool + i)))
    for i in range(4):
        side.append(I('v_cvt_pk_bf16_f32 v%d, v%d, v%d' % (Vt + 8 + i, Vt + 2 * i, Vt + 2 * i + 1)))
    side.append(I('buffer_store_dwordx4 v[%d:%d], v%d, s[%d:%d], s%d offen sc1' % (Vt + 8, Vt + 11, s.vLane16, s.sWS, s.sWS + 3, sKvp), tag='kvp'))
    mainB = rm(s.chunk_reads(2, 5), s.chunk_mfmas(2, 4))
    s.emit(interleave(mainB, side, 0, len(mainB) - 1))
    s.emit(rm(s.chunk_reads(2, 6), s.chunk_mfmas(2, 5)))
    s.emit(s.chunk_mfmas(2, 6))
    s.emit(s.cs_write(2))
    s.stamp('prepub')
    s.e.emit(WaitTag(['kvp']))
    s.stamp('kvpdone')
    E('v_mov_b32 v%d, 1' % vMx)
    E('v_mov_b32 v%d, 0' % vN)
    E('s_mov_b64 exec, 1')
    E('buffer_atomic_add v%d, v%d, s[%d:%d], s%d offen sc1' % (vMx, vN, s.sDbg, s.sDbg + 3, sFlag))
    E('s_mov_b64 exec, -1')

    s.barrier([], 'ldsw', name='R3')
    P = s.acc[0]
    s.emit([I('ds_read_b128 v[%d:%d], v%d' % (vb, vb + 3, s.vCSr)),
            I('v_add_f32 v%d, v%d, v%d' % (vb, vb, vb + 1)),
            I('v_add_f32 v%d, v%d, v%d' % (vb + 2, vb + 2, vb + 3)),
            I('v_add_f32 v%d, v%d, v%d' % (vb, vb, vb + 2))])
    s.emit(aug_col0(vb, vb + 2))
    s.emit(s.mfma(P, s.augA, s.augB, P))
    s.e.emit(Drain(['vm', 'lgkm']))
    s.e.emit(Fence())
    lab = s.label + '_spin'
    E('s_mov_b32 s%d, 0' % sSpin)
    s.e.out.append(lab + ':')
    s.e._raw('buffer_load_dword v%d, v%d, s[%d:%d], s%d offen sc1' % (vMx, vN, s.sDbg, s.sDbg + 3, sFlag))
    s.e._raw('s_add_u32 s%d, s%d, 1' % (sSpin, sSpin))
    s.e._raw('s_waitcnt vmcnt(0)')
    s.e._raw('v_readfirstlane_b32 s%d, v%d' % (s.sT0, vMx))
    s.e._raw('s_cmp_ge_u32 s%d, 0x10000' % sSpin)
    s.e._raw('s_cbranch_scc1 %s_go' % lab)
    s.e._raw('s_cmp_lt_u32 s%d, 16' % s.sT0)
    s.e._raw('s_cbranch_scc1 %s' % lab)
    s.e.out.append(lab + '_go:')
    s.e.emit(Fence())
    s.stamp('spun')
    G = s.xf
    for rb in range(16):
        E('buffer_load_dwordx4 v[%d:%d], v%d, s[%d:%d], s%d offen sc1' % (G + 4 * rb, G + 4 * rb + 3, s.vLane16, s.sWS, s.sWS + 3, sGat))
        if rb < 15:
            E('s_add_u32 s%d, s%d, 8192' % (sGat, sGat))
    s.emit(feat_common(P))
    for i in range(8):
        E('v_cvt_pk_bf16_f32 v%d, v%d, v%d' % (kb + i, EE + 2 * i, EE + 2 * i + 1))
    for i in range(8):
        E('v_cvt_pk_bf16_f32 v%d, v%d, v%d' % (EE + i, P + 2 * i, P + 2 * i + 1))
    s.stamp('feat')
    s.e.emit(Drain(['vm']))
    s.stamp('gath')
    lo, hi = s.acc[1], s.acc[1] + 4
    for rb in range(16):
        s.emit(s.mfma4(lo, Id4, G + 4 * rb, rb == 0))
        s.emit(s.mfma4(hi, Id4, G + 4 * rb + 2, rb == 0))
    red = s.acc[1] + 8
    for i in range(4):
        E('v_cvt_pk_bf16_f32 v%d, v%d, v%d' % (red + i, lo + 2 * i, lo + 2 * i + 1))
    for i in range(4):
        E('v_cndmask_b32 v%d, v%d, v%d, s[%d:%d]' % (red + i, red + i, s.ones, sMl30, sMl30 + 1))
    E('s_lshl_b32 s%d, s%d, 10' % (s.sT0, s.sWv))
    E('v_add_u32 v%d, s%d, v%d' % (vMx, s.sT0, s.vLane16))
    E('s_lshl_b32 s%d, s%d, 12' % (s.sT0, s.sG))
    E('v_add_u32 v%d, s%d, v%d' % (vN, s.sT0, s.vLane16))
    E('ds_write_b128 v%d, v[%d:%d]' % (vMx, red, red + 3))
    s.barrier([], 'lgkm', name='share')
    KA = G
    for f in range(4):
        E('ds_read_b128 v[%d:%d], v%d offset:%d' % (KA + 4 * f, KA + 4 * f + 3, vN, 1024 * f))
    Np, Nm = s.acc[0], s.acc[1]
    s.emit(s.mfma(Np, KA, kb, None))
    s.emit(s.mfma(Nm, KA + 8, EE, None))
    s.emit(s.mfma(Np, KA + 4, kb + 4, Np))
    s.emit(s.mfma(Nm, KA + 12, EE + 4, Nm))
    a, b, dn = vMx, vN, vZ
    E('v_rcp_f32 v%d, v%d' % (a, Np + 14))
    E('v_rcp_f32 v%d, v%d' % (b, Nm + 14))
    E('v_add_f32 v%d, v%d, v%d' % (dn, Np + 12, Np + 13))
    E('v_add_f32 v%d, v%d, v%d' % (vZ2, Nm + 12, Nm + 13))
    E('v_mov_b32 v%d, 0x%x' % (vM2, f2u(1e-6 * 1.4426950408889634)))
    E('v_fmac_f32 v%d, v%d, v%d' % (vM2, dn, a))
    E('v_fmac_f32 v%d, v%d, v%d' % (vM2, vZ2, b))
    E('v_rcp_f32 v%d, v%d' % (vM2, vM2))
    E('v_mul_f32 v%d, 0x%x, v%d' % (vM2, LOG2E, vM2))
    E('v_mul_f32 v%d, v%d, v%d' % (a, a, vM2))
    E('v_mul_f32 v%d, v%d, v%d' % (b, b, vM2))
    E('v_mov_b32 v%d, v%d' % (vZ, a))
    E('v_mov_b32 v%d, v%d' % (vZ2, b))
    E('v_permlane32_swap_b32 v%d, v%d' % (vZ, a))
    E('v_permlane32_swap_b32 v%d, v%d' % (vZ2, b))
    E('v_cndmask_b32 v%d, v%d, 0, s[%d:%d]' % (vM2, a, s.sMh, s.sMh + 1))
    E('v_cndmask_b32 v%d, v%d, 0, s[%d:%d]' % (vN2, b, s.sMh, s.sMh + 1))
    for i in range(16):
        fa, fb = (vM2, vN2) if i >= 12 else (a, b)
        E('v_mul_f32 v%d, v%d, v%d' % (Np + i, Np + i, fa))
        E('v_fmac_f32 v%d, v%d, v%d' % (Np + i, Nm + i, fb))
    for i in range(8):
        E('v_cvt_pk_bf16_f32 v%d, v%d, v%d' % (kb + i, Np + 2 * i, Np + 2 * i + 1))
        if i % 4 == 3:
            kk = i // 4
            E('buffer_store_dwordx4 v[%d:%d], v%d, s[%d:%d], s%d offen offset:%d' % (kb + 4 * kk, kb + 4 * kk + 3, s.vLane16, s.sWS, s.sWS + 3, s.sSt, 1024 * kk))
```

```python
from common import *

ACT_BYTES = 64 * 144 * 1024
LN2 = 0x3f317218

def gen_k2(label, NS=5, scale_ln2=True, prof=False):
    e = Emitter()
    names = []
    def stamp(name):
        if not prof: return
        i = len(names); names.append(name)
        e.emit(I('s_memrealtime s[90:91]'))
        e.emit(Drain(['lgkm']))
        e.emit(I('s_nop 3'))
        e.emit(I('v_writelane_b32 v255, s90, %d' % i))
    e.names = names
    def E(text, tag=None):
        e.emit(I(text, tag))
    sX, sW2, sWO, sWS, sOUT = 8, 12, 16, 20, 24
    sWv, sKq, sTh, sTb, sCb = 28, 29, 30, 31, 32
    sM0, sOffO = 33, 34
    sT0, sT1, sT2, sT3 = 36, 37, 38, 39
    sQ = [40, 41, 42, 43]
    sQo = [44, 45, 46, 47]
    sAct, sActO = 48, 49
    va = RegAlloc('v', 1, 256)
    vOffW = va.alloc(); vOffWO = va.alloc(); vLane16 = va.alloc(); vXo = va.alloc()
    vT0 = va.alloc(); vT1 = va.alloc(); vT2 = va.alloc(); vRedR = va.alloc(); vRedW = va.alloc()
    vTr = [[va.alloc() for ct in range(2)] for b in range(3)]
    vXr = va.alloc(4, 4)
    acc = va.alloc(32, 4)
    wf = va.alloc(32, 4)
    act = va.alloc(144, 4)

    if prof:
        E('v_mov_b32 v255, 0')
        stamp('start')
    E('s_load_dwordx2 s[4:5], s[0:1], 80')
    E('s_load_dwordx2 s[6:7], s[0:1], 56')
    E('s_load_dwordx2 s[50:51], s[0:1], 24')
    E('s_load_dwordx2 s[52:53], s[0:1], 0')
    E('s_load_dwordx2 s[54:55], s[0:1], 64')
    E('s_cmp_ge_u32 s2, 224')
    E('s_cbranch_scc1 %s_end' % label)
    E('v_lshrrev_b32 v%d, 6, v0' % vT0)
    E('v_and_b32 v0, 63, v0')
    E('v_readfirstlane_b32 s%d, v%d' % (sWv, vT0))
    E('s_and_b32 s%d, s2, 7' % sT0)
    E('s_lshr_b32 s%d, s2, 3' % sT1)
    E('s_mul_i32 s%d, s%d, 37' % (sT2, sT1))
    E('s_lshr_b32 s%d, s%d, 8' % (sT2, sT2))
    E('s_mul_i32 s%d, s%d, 7' % (sT3, sT2))
    E('s_sub_u32 s%d, s%d, s%d' % (sCb, sT1, sT3))
    E('s_lshl_b32 s%d, s%d, 2' % (sT0, sT0))
    E('s_add_u32 s%d, s%d, s%d' % (sTb, sT0, sT2))
    E('s_lshr_b32 s%d, s%d, 1' % (sKq, sWv))
    E('s_and_b32 s%d, s%d, 1' % (sTh, sWv))
    E('s_lshl_b32 s%d, s%d, 10' % (sM0, sWv))
    E('v_lshrrev_b32 v%d, 3, v0' % vT0)
    E('v_and_b32 v%d, 7, v0' % vT1)
    E('v_lshrrev_b32 v%d, 2, v0' % vT2)
    E('v_and_b32 v%d, 4, v%d' % (vT2, vT2))
    E('v_xor_b32 v%d, v%d, v%d' % (vT1, vT1, vT2))
    E('v_lshlrev_b32 v%d, 4, v%d' % (vT1, vT1))
    E('s_lshl_b32 s%d, s%d, 3' % (sT0, sWv))
    E('v_add_u32 v%d, s%d, v%d' % (vT2, sT0, vT0))
    E('s_movk_i32 s%d, 896' % sT1)
    E('v_mad_u32_u24 v%d, v%d, s%d, v%d' % (vOffW, vT2, sT1, vT1))
    E('v_lshlrev_b32 v%d, 4, v0' % vLane16)
    E('s_lshl_b32 s%d, s%d, 7' % (sT0, sCb))
    for q in range(4):
        E('s_add_u32 s%d, s%d, %d' % (sQ[q], sT0, 448 * 896 * q))
    for q in range(4):
        E('s_add_u32 s%d, s%d, %d' % (sQo[q], sT0, 28 * 4 * 896 * q))
    E('s_lshl_b32 s%d, s%d, 1' % (sT0, sTb))
    E('s_add_u32 s%d, s%d, s%d' % (sT0, sT0, sTh))
    E('s_mul_i32 s%d, s%d, 144' % (sT0, sT0))
    E('s_mul_i32 s%d, s%d, 28' % (sT3, sKq))
    E('s_add_u32 s%d, s%d, s%d' % (sAct, sT0, sT3))
    E('s_lshl_b32 s%d, s%d, 10' % (sAct, sAct))
    E('s_lshl_b32 s%d, s%d, 3' % (sT3, sKq))
    E('s_add_u32 s%d, s%d, s%d' % (sT0, sT0, sT3))
    E('s_add_u32 s%d, s%d, 112' % (sT0, sT0))
    E('s_lshl_b32 s%d, s%d, 10' % (sActO, sT0))
    srd(e, sWS, 4, ACT_BYTES)
    srd(e, sW2, 6, 1792 * 896)

    def issue_w(s):
        slot = (s % NS) * 32768
        for q in range(4):
            E('s_add_u32 m0, s%d, %d' % (sM0, slot + q * 8192))
            if s < 7:
                E('buffer_load_dwordx4 v%d, s[%d:%d], s%d offen lds' % (vOffW, sW2, sW2 + 3, sQ[q]), tag=('w', s, q))
                if s < 6:
                    E('s_add_u32 s%d, s%d, %d' % (sQ[q], sQ[q], 64 * 896))
            else:
                E('buffer_load_dwordx4 v%d, s[%d:%d], s%d offen lds' % (vOffWO, sWO, sWO + 3, sQo[q]), tag=('w', s, q))
                if s == 7:
                    E('s_add_u32 s%d, s%d, %d' % (sQo[q], sQo[q], 56 * 896))

    def issue_a(s):
        so = sAct if s < 7 else sActO
        for k in range(4):
            r = act + 16 * s + 4 * k
            E('buffer_load_dwordx4 v[%d:%d], v%d, s[%d:%d], s%d offen offset:%d' % (r, r + 3, vLane16, sWS, sWS + 3, so, k * 1024))
        if s < 6 or s == 7:
            E('s_add_u32 s%d, s%d, 4096' % (so, so))

    for s in range(min(NS, 9)):
        issue_w(s)
        issue_a(s)
    srd(e, sWO, 50, 448 * 896)
    srd(e, sX, 52, 2048 * 896)
    srd(e, sOUT, 54, 2048 * 896)
    E('s_and_b32 s%d, s%d, 3' % (sT0, sWv))
    E('s_lshl_b32 s%d, s%d, 3' % (sT0, sT0))
    E('v_add_u32 v%d, s%d, v%d' % (vT2, sT0, vT0))
    E('v_min_u32 v%d, 27, v%d' % (vT2, vT2))
    E('s_lshr_b32 s%d, s%d, 2' % (sT0, sWv))
    E('s_mul_i32 s%d, s%d, 28' % (sT0, sT0))
    E('v_add_u32 v%d, s%d, v%d' % (vT2, sT0, vT2))
    E('v_mad_u32_u24 v%d, v%d, s%d, v%d' % (vOffWO, vT2, sT1, vT1))
    E('s_lshl_b32 s%d, s%d, 3' % (sT0, sWv))
    E('v_add_u32 v%d, s%d, v%d' % (vT0, sT0, vT0))
    E('v_and_b32 v%d, 7, v0' % vT1)
    E('v_lshlrev_b32 v%d, 4, v%d' % (vXo, vT1))
    E('v_mad_u32_u24 v%d, v%d, s%d, v%d' % (vXo, vT0, sT1, vXo))
    E('s_mul_i32 s%d, s%d, %d' % (sT0, sTb, 64 * 896))
    E('s_lshl_b32 s%d, s%d, 7' % (sT3, sCb))
    E('s_add_u32 s%d, s%d, s%d' % (sOffO, sT0, sT3))
    E('v_mul_u32_u24 v%d, 272, v%d' % (vRedR, vT0))
    E('v_lshl_add_u32 v%d, v%d, 5, v%d' % (vRedR, vT1, vRedR))
    E('v_and_b32 v%d, 31, v0' % vRedW)
    E('s_lshl_b32 s%d, s%d, 5' % (sT0, sTh))
    E('v_add_u32 v%d, s%d, v%d' % (vRedW, sT0, vRedW))
    E('v_mul_u32_u24 v%d, 272, v%d' % (vRedW, vRedW))
    E('s_mul_i32 s%d, s%d, 17408' % (sT0, sKq))
    E('v_add_u32 v%d, s%d, v%d' % (vRedW, sT0, vRedW))
    E('v_lshrrev_b32 v%d, 5, v0' % vT0)
    E('v_lshl_add_u32 v%d, v%d, 4, v%d' % (vRedW, vT0, vRedW))
    E('v_lshlrev_b32 v%d, 9, v%d' % (vT0, vT0))
    E('v_bfe_u32 v%d, v0, 2, 2' % vT1)
    E('v_lshl_add_u32 v%d, v%d, 7, v%d' % (vT0, vT1, vT0))
    E('v_bfe_u32 v%d, v0, 4, 1' % vT1)
    E('v_lshl_add_u32 v%d, v%d, 5, v%d' % (vT0, vT1, vT0))
    E('v_and_b32 v%d, 3, v0' % vT1)
    E('v_lshl_add_u32 v%d, v%d, 3, v%d' % (vT0, vT1, vT0))
    E('v_bfe_u32 v%d, v0, 3, 1' % vT1)
    E('v_lshl_add_u32 v%d, v%d, 6, v%d' % (vT0, vT1, vT0))
    E('s_lshl_b32 s%d, s%d, 13' % (sT0, sKq))
    E('v_add_u32 v%d, s%d, v%d' % (vTr[0][0], sT0, vT0))
    E('v_xor_b32 v%d, 64, v%d' % (vTr[0][1], vTr[0][0]))
    for b in (1, 2):
        for ct in range(2):
            E('v_add_u32 v%d, 0x%x, v%d' % (vTr[b][ct], 65536 * b, vTr[0][ct]))

    for s in range(9):
        e.emit(WaitTag([('w', s, 3)]))
        if s in (0, 1, 4, 8): stamp('bar%d' % s)
        E('s_barrier')
        if s >= 1 and s + NS - 1 < 9:
            issue_w(s + NS - 1)
            issue_a(s + NS - 1)
        if s == 6:
            E('buffer_load_dwordx4 v[%d:%d], v%d, s[%d:%d], s%d offen' % (vXr, vXr + 3, vXo, sX, sX + 3, sOffO))
        slot = (s % NS) * 32768
        def rd(k):
            b = wf + (k % 2) * 8
            out = []
            for ct in range(2):
                for sec in range(2):
                    r = b + ct * 4 + sec * 2
                    out.append('ds_read_b64_tr_b16 v[%d:%d], v%d offset:%d' % (r, r + 1, vTr[slot // 65536][ct], (slot % 65536) + k * 2048 + sec * 1024))
            return out
        for t in rd(0): E(t)
        for k in range(4):
            if k < 3:
                for t in rd(k + 1): E(t)
            b = wf + (k % 2) * 8
            a = act + 16 * s + 4 * k
            for ct in range(2):
                c = acc + 16 * ct
                src = '0' if (s == 0 and k == 0) else 'v[%d:%d]' % (c, c + 15)
                E('v_mfma_f32_32x32x16_bf16 v[%d:%d], v[%d:%d], v[%d:%d], %s' % (c, c + 15, b + 4 * ct, b + 4 * ct + 3, a, a + 3, src))
    assert NS == 5
    for ct in range(2):
        for g4 in range(4):
            r = acc + 16 * ct + 4 * g4
            E('ds_write_b128 v%d, v[%d:%d] offset:%d' % (vRedW, r, r + 3, 128 * ct + 32 * g4))
    e.emit(Drain(['lgkm']))
    stamp('red')
    E('s_barrier')
    rb = wf
    for q in range(4):
        for hf in range(2):
            r = rb + 8 * q + 4 * hf
            E('ds_read_b128 v[%d:%d], v%d offset:%d' % (r, r + 3, vRedR, 17408 * q + 16 * hf))
    for j in range(8):
        E('v_add_f32 v%d, v%d, v%d' % (rb + j, rb + j, rb + 8 + j))
        E('v_add_f32 v%d, v%d, v%d' % (rb + 16 + j, rb + 16 + j, rb + 24 + j))
    for j in range(8):
        E('v_add_f32 v%d, v%d, v%d' % (rb + j, rb + j, rb + 16 + j))
    E('s_mov_b32 s%d, 0x%x' % (sT0, LN2 if scale_ln2 else 0x3f800000))
    for p in range(4):
        lo, hi = rb + 8 + 2 * p, rb + 9 + 2 * p
        E('v_lshlrev_b32 v%d, 16, v%d' % (lo, vXr + p))
        E('v_and_b32 v%d, 0xffff0000, v%d' % (hi, vXr + p))
        E('v_fmac_f32 v%d, s%d, v%d' % (lo, sT0, rb + 2 * p))
        E('v_fmac_f32 v%d, s%d, v%d' % (hi, sT0, rb + 2 * p + 1))
        E('v_cvt_pk_bf16_f32 v%d, v%d, v%d' % (rb + 16 + p, lo, hi))
    E('buffer_store_dwordx4 v[%d:%d], v%d, s[%d:%d], s%d offen' % (rb + 16, rb + 19, vXo, sOUT, sOUT + 3, sOffO))
    if prof:
        stamp('end')
        E('s_lshl_b32 s92, s2, 3')
        E('s_add_u32 s92, s92, s%d' % sWv)
        E('s_lshl_b32 s92, s92, 8')
        E('s_add_u32 s92, s92, 0x2100000')
        E('v_lshlrev_b32 v%d, 2, v0' % vT0)
        E('s_mov_b32 s%d, 0x4000000' % (sWS + 2))
        E('buffer_store_dword v255, v%d, s[%d:%d], s92 offen' % (vT0, sWS, sWS + 3))
    E('%s_end:' % label)
    E('s_endpgm')
    return e, (256 if prof else va.next)

if __name__ == '__main__':
    e, nv = gen_k2(KBASE + '_kernel')
    txt = file_text(['; @launch grid=(224,1,1) block=(512,1,1) lds=163840'], [kernel_text(KBASE + '_kernel', e.text(), nv)])
    open('k2only.s', 'w').write(txt)
    print('vgprs', nv, 'instrs', e.nins, 'nops', e.nnop, e.stats)
```

```python
import sys
from common import *
import k1, k2
def build(path, nextra):
    l1 = KBASE + '_kernel'
    l2 = 'hh_k2_kernel'
    e1, nv1 = k1.gen_k1(l1, True, False, False)
    e2, nv2 = k2.gen_k2(l2, prof=False)
    lines = ['; @launch kernel=%s grid=(256,1,1) block=(512,1,1) lds=163840' % l1,
             '; @launch kernel=%s grid=(224,1,1) block=(512,1,1) lds=163840' % l2]
    ks = [kernel_text(l1, e1.text(), nv1), kernel_text(l2, e2.text(), nv2)]
    if nextra:
        ks.append(kernel_text('hh_nop_kernel', '\ts_endpgm\n', 8))
    for i in range(nextra):
        lines.append('; @launch kernel=hh_nop_kernel grid=(256,1,1) block=(512,1,1) lds=163840')
    open(path, 'w').write(file_text(lines, ks))
build('x0.s', 0)
build('x1.s', 1)
build('x2.s', 2)
```

```python
from common import *

ACT_BYTES = 64 * 144 * 1024
KVP_OFF = 0x1000000
WS_BYTES = KVP_OFF + 8 * 16 * 8192
FLAGS_OFF = 0x1200000
RINGA = 114688
MISC = 155648
M_CS = MISC
M_ST = MISC + 4096
LOG2E = 0x3fb8aa3b


def V(b, n=1):
    return vr(b, n)


PROF = False
import os
XF = set(os.environ.get('XF', '').split(','))
PROF_OFF = 0x2000000


class K1:
    def __init__(self, label):
        self.e = Emitter()
        self.label = label
        self.sX, self.sW, self.sWS, self.sB = 8, 12, 16, 20
        (self.sWv, self.sT, self.sG, self.sRb, self.sJ, self.sM0x, self.sM0w, self.sXoff) = range(24, 32)
        self.sT0, self.sT1, self.sT2, self.sT3 = 32, 33, 34, 35
        self.sWc = [36, 37, 38]
        self.sWs = 39
        self.sSt = 40
        self.sStS = 41
        self.sM = [42, 44, 46]
        self.sMh = 48
        self.sPi = 50
        self.sK = 51
        self.pX, self.pWQKV, self.pWPHI, self.pWO, self.pW1, self.pB1, self.pW2, self.pOUT, self.pDBG, self.pWS = 52, 54, 56, 58, 60, 62, 64, 66, 96, 98
        self.sW2, self.sB2 = 68, 72
        self.sTok, self.sFlagOff = 100, 101
        va = self.va = RegAlloc('v', 1, 256)
        A = va.alloc
        self.xf = A(112, 4)
        self.acc = [A(16, 4), A(16, 4)]
        self.wf = [A(16, 4), A(16, 4)]
        self.vTr = [A() for _ in range(4)]
        self.vOffW = A(); self.vOffS = A()
        self.ones = A(2, 2)
        self.csacc = A(4, 4)
        self.augA = A(4, 4); self.augB = A(4, 4)
        self.vC = A(); self.vCSw = A(); self.vCSr = A(); self.vLane16 = A()
        self.vb1 = [A() for _ in range(4)]
        self.vT0 = A(); self.vT1 = A(); self.vT2 = A(); self.vT3 = A()
        pool = A(24, 4)
        self.pool = pool
        self.sumacc = pool; self.sqacc = pool + 4
        self.vXa = [pool + 8 + i for i in range(4)]
        self.vOffX = [pool + 12, pool + 13]
        self.vSTw = pool + 14; self.vSTr = pool + 15
        self.tE = pool + 16
        self.pk = pool
        self.vTrS = [A(), A()]
        self.vTok = A()
        self.rest = va.next
        self.prof = PROF
        self.nstamp = 0
        self.vProf = 255

    def E(self, text, tag=None):
        self.e.emit(I(text, tag))

    def emit(self, lst):
        self.e.emit(lst)

    def prologue(self):
        E = self.E; s = self
        E('s_load_dwordx8 s[52:59], s[0:1], 0')
        E('s_load_dwordx8 s[60:67], s[0:1], 40')
        E('s_load_dwordx4 s[96:99], s[0:1], 72')
        s.stamp('karg')
        E('s_cmp_ge_u32 s2, 256')
        E('s_cbranch_scc1 %s_end' % s.label)
        E('v_lshrrev_b32 v%d, 6, v0' % s.vT0)
        E('v_and_b32 v0, 63, v0')
        E('v_readfirstlane_b32 s%d, v%d' % (s.sWv, s.vT0))
        E('s_and_b32 s%d, s2, 7' % s.sT0)
        E('s_lshr_b32 s%d, s2, 3' % s.sT1)
        E('s_and_b32 s%d, s%d, 1' % (s.sT2, s.sT0))
        E('s_lshl_b32 s%d, s%d, 3' % (s.sT2, s.sT2))
        E('s_and_b32 s%d, s%d, 7' % (s.sT3, s.sT1))
        E('s_add_u32 s%d, s%d, s%d' % (s.sRb, s.sT2, s.sT3))
        E('s_lshr_b32 s%d, s%d, 1' % (s.sT2, s.sT0))
        E('s_lshl_b32 s%d, s%d, 2' % (s.sT2, s.sT2))
        E('s_lshr_b32 s%d, s%d, 3' % (s.sT3, s.sT1))
        E('s_add_u32 s%d, s%d, s%d' % (s.sJ, s.sT2, s.sT3))
        E('s_lshl_b32 s%d, s%d, 4' % (s.sT2, s.sRb))
        E('s_add_u32 s%d, s%d, s%d' % (s.sT2, s.sT2, s.sJ))
        E('s_lshl_b32 s%d, s%d, 7' % (s.sT2, s.sT2))
        E('s_add_u32 s%d, s%d, 0x%x' % (s.sFlagOff, s.sT2, FLAGS_OFF))
        E('s_mov_b32 s%d, 0' % s.sTok)
        E('s_lshl_b32 s%d, s%d, 11' % (s.sM0x, s.sWv))
        E('s_lshl_b32 s%d, s%d, 10' % (s.sM0w, s.sWv))
        E('s_mul_i32 s%d, s%d, %d' % (s.sXoff, s.sRb, 128 * 896))
        E('v_lshrrev_b32 v%d, 3, v0' % s.vT0)
        E('v_and_b32 v%d, 7, v0' % s.vT1)
        E('v_lshrrev_b32 v%d, 4, v0' % s.vT2)
        E('v_xor_b32 v%d, v%d, v%d' % (s.vT2, s.vT1, s.vT2))
        E('v_lshlrev_b32 v%d, 4, v%d' % (s.vT2, s.vT2))
        E('s_lshl_b32 s%d, s%d, 4' % (s.sT0, s.sWv))
        E('v_add_u32 v%d, s%d, v%d' % (s.vOffX[1], s.sT0, s.vT0))
        E('s_movk_i32 s%d, 896' % s.sT1)
        E('v_mad_u32_u24 v%d, v%d, s%d, v%d' % (s.vOffX[0], s.vOffX[1], s.sT1, s.vT2))
        E('v_xor_b32 v%d, 64, v%d' % (s.vOffX[1], s.vOffX[0]))
        E('v_add_u32 v%d, %d, v%d' % (s.vOffX[1], 8 * 896, s.vOffX[1]))
        E('v_lshrrev_b32 v%d, 2, v0' % s.vT2)
        E('v_and_b32 v%d, 4, v%d' % (s.vT2, s.vT2))
        E('v_xor_b32 v%d, v%d, v%d' % (s.vT1, s.vT1, s.vT2))
        E('s_lshl_b32 s%d, s%d, 3' % (s.sT0, s.sWv))
        E('v_add_u32 v%d, s%d, v%d' % (s.vT0, s.sT0, s.vT0))
        E('s_and_b32 s%d, s%d, 3' % (s.sT, s.sWv))
        E('s_lshr_b32 s%d, s%d, 2' % (s.sG, s.sWv))
        srd(s.e, s.sX, s.pX, 2048 * 896)

    def dma_x(self, c):
        s = self
        for e_ in range(2):
            self.E('s_add_u32 m0, s%d, %d' % (s.sM0x, c * 16384 + e_ * 1024 - c * 128))
            self.E('buffer_load_dwordx4 v%d, s[%d:%d], s%d offen offset:%d lds' % (s.vOffX[e_], s.sX, s.sX + 3, s.sXoff, c * 128), tag=('x', c))

    def dma_w(self, r, c):
        s = self
        out = [I('s_add_u32 m0, s%d, %d' % (s.sM0w, s.wdst(r, c)))]
        if r == 'S':
            out.append(I('buffer_load_dwordx4 v%d, s[%d:%d], s%d offen lds' % (s.vOffS, s.srdW, s.srdW + 3, s.sWs), tag=('w', r, c)))
            out.append(I('s_add_u32 s%d, s%d, %d' % (s.sWs, s.sWs, 128 * s.wstride)))
        else:
            out.append(I('buffer_load_dwordx4 v%d, s[%d:%d], s%d offen lds' % (s.vOffW, s.srdW, s.srdW + 3, s.sWc[r]), tag=('w', r, c)))
            out.append(I('s_add_u32 s%d, s%d, %d' % (s.sWc[r], s.sWc[r], 64 * s.wstride)))
        return out

    def wdst(self, r, c):
        if r == 0: return RINGA + (c % 5) * 8192
        if r == 'S': return RINGA + ((c + 2) % 5) * 8192
        return (r - 1) * 57344 + c * 8192

    def prologue_dma(self):
        self.stamp('predma')
        for c in range(5):
            self.dma_x(c)
            self.emit(self.dma_w(0, c))
        self.dma_x(5)
        self.dma_x(6)
        self.stamp('dma')

    def setup_addrs(self):
        E = self.E; s = self
        E('s_lshl_b32 s%d, s%d, 1' % (s.sPi, s.sG))
        E('s_xor_b32 s%d, s%d, s%d' % (s.sPi, s.sPi, s.sT))
        E('v_lshrrev_b32 v%d, 5, v0' % s.vT0)
        E('s_lshl_b32 s%d, s%d, 1' % (s.sT1, s.sPi))
        E('v_add_u32 v%d, s%d, v%d' % (s.vT1, s.sT1, s.vT0))
        E('v_bfe_u32 v%d, v0, 1, 3' % s.vT2)
        E('v_xor_b32 v%d, v%d, v%d' % (s.vT1, s.vT1, s.vT2))
        E('v_lshlrev_b32 v%d, 4, v%d' % (s.vT1, s.vT1))
        E('v_and_b32 v%d, 31, v0' % s.vT2)
        E('v_lshl_add_u32 v%d, v%d, 7, v%d' % (s.vT1, s.vT2, s.vT1))
        E('s_lshl_b32 s%d, s%d, 12' % (s.sT1, s.sT))
        E('v_add_u32 v%d, s%d, v%d' % (s.vXa[0], s.sT1, s.vT1))
        for q in range(1, 4):
            E('v_xor_b32 v%d, %d, v%d' % (s.vXa[q], q << 5, s.vXa[0]))
        E('v_lshlrev_b32 v%d, 4, v0' % s.vLane16)
        E('s_lshl_b32 s%d, s%d, 10' % (s.sT1, s.sG))
        E('s_add_u32 s%d, s%d, %d' % (s.sT1, s.sT1, M_CS))
        E('v_add_u32 v%d, s%d, v%d' % (s.vCSr, s.sT1, s.vLane16))
        E('s_lshl_b32 s%d, s%d, 2' % (s.sT1, s.sT))
        E('v_add_u32 v%d, s%d, v%d' % (s.vCSw, s.sT1, s.vCSr))
        E('s_lshl_b32 s%d, s%d, 10' % (s.sT1, s.sT))
        E('s_add_u32 s%d, s%d, %d' % (s.sT1, s.sT1, M_ST))
        E('v_lshlrev_b32 v%d, 5, v%d' % (s.vT2, s.vT2))
        E('v_add_u32 v%d, s%d, v%d' % (s.vSTr, s.sT1, s.vT2))
        E('s_lshl_b32 s%d, s%d, 4' % (s.sT1, s.sG))
        E('v_lshl_add_u32 v%d, v%d, 3, v%d' % (s.vSTw, s.vT0, s.vSTr))
        E('v_add_u32 v%d, s%d, v%d' % (s.vSTw, s.sT1, s.vSTw))
        E('v_mov_b32 v%d, 0x3f803f80' % s.ones)
        E('v_mov_b32 v%d, 0x3f803f80' % (s.ones + 1))
        E('v_mov_b32 v%d, 0' % (s.augA + 3))
        E('s_mov_b32 s%d, 0x22222222' % s.sM[0]); E('s_mov_b32 s%d, 0x22222222' % (s.sM[0] + 1))
        E('s_mov_b32 s%d, 0xcccccccc' % s.sM[1]); E('s_mov_b32 s%d, 0xcccccccc' % (s.sM[1] + 1))
        E('s_mov_b32 s%d, 0x88888888' % s.sM[2]); E('s_mov_b32 s%d, 0x88888888' % (s.sM[2] + 1))
        E('s_mov_b32 s%d, 0' % s.sMh); E('s_mov_b32 s%d, -1' % (s.sMh + 1))

    def tr_base(self, dst, vcol, spi, base):
        E = self.E; s = self
        E('v_lshrrev_b32 v%d, 5, v0' % s.vT0)
        E('v_lshlrev_b32 v%d, 10, v%d' % (s.vT0, s.vT0))
        E('v_bfe_u32 v%d, v0, 2, 2' % s.vT1)
        E('v_lshl_add_u32 v%d, v%d, 7, v%d' % (s.vT0, s.vT1, s.vT0))
        E('v_lshlrev_b32 v%d, 3, v0' % s.vT1)
        E('v_and_b32 v%d, 64, v%d' % (s.vT1, s.vT1))
        E('v_xor_b32 v%d, v%d, v%d' % (s.vT1, s.vT1, vcol))
        E('v_add_u32 v%d, v%d, v%d' % (s.vT0, s.vT0, s.vT1))
        E('s_lshl_b32 s%d, s%d, 11' % (s.sT1, spi))
        E('s_add_u32 s%d, s%d, %d' % (s.sT1, s.sT1, base))
        E('v_add_u32 v%d, s%d, v%d' % (dst, s.sT1, s.vT0))

    def lane_col(self, dst):
        E = self.E; s = self
        E('v_and_b32 v%d, 3, v0' % dst)
        E('v_lshlrev_b32 v%d, 3, v%d' % (dst, dst))
        E('v_bfe_u32 v%d, v0, 4, 1' % s.vT3)
        E('v_lshl_add_u32 v%d, v%d, 5, v%d' % (dst, s.vT3, dst))

    def rd_w(self, imm, slot, dst):
        s = self
        return [I('ds_read_b64_tr_b16 v[%d:%d], v%d offset:%d' % (dst, dst + 1, s.vTr[slot], imm)),
                I('ds_read_b64_tr_b16 v[%d:%d], v%d offset:%d' % (dst + 2, dst + 3, s.vTr[slot], imm + 512))]

    def rd_x(self, c, slot):
        s = self
        d = s.xf + 16 * c + 4 * slot
        return I('ds_read_b128 v[%d:%d], v%d offset:%d' % (d, d + 3, s.vXa[slot], (c % 4) * 16384))

    def mfma(self, d, a, b, c):
        cs = '0' if c is None else 'v[%d:%d]' % (c, c + 15)
        return I('v_mfma_f32_32x32x16_bf16 v[%d:%d], v[%d:%d], v[%d:%d], %s' % (d, d + 15, a, a + 3, b, b + 3, cs))

    def mfma4(self, d, a, b, first):
        cs = '0' if first else 'v[%d:%d]' % (d, d + 3)
        return I('v_mfma_f32_4x4x4_16b_bf16 v[%d:%d], v[%d:%d], v[%d:%d], %s' % (d, d + 3, a, a + 1, b, b + 1, cs))

    def bump_tr(self, delta, n=4):
        return [I('v_add_u32 v%d, 0x%x, v%d' % (self.vTr[q], delta & 0xffffffff, self.vTr[q])) for q in range(n)]

    def chunk_reads(self, r, c):
        s = self
        buf = s.wf[(7 * r + c) % 2]
        if r == 0:
            imm = (c % 5) * 8192
        else:
            imm = c * 8192
        out = []
        for q in range(4):
            if r == 0:
                out.append(s.rd_x(c, q))
            out += s.rd_w(imm, q, buf + 4 * q)
        return out

    def chunk_mfmas(self, r, c, swap=False):
        s = self
        buf = s.wf[(7 * r + c) % 2]
        acc = s.acc[r % 2]
        out = []
        for q in range(4):
            x = s.xf + 16 * c + 4 * q
            w = buf + 4 * q
            cs = None if (c == 0 and q == 0) else acc
            out.append(s.mfma(acc, x, w, cs) if swap else s.mfma(acc, w, x, cs))
            ex = []
            if r == 0 and q < 2:
                f = (c == 0 and q == 0)
                ex = [s.mfma4(s.sumacc, s.ones, x, f), s.mfma4(s.sqacc, x, x, f),
                      s.mfma4(s.sumacc, s.ones, x + 2, False), s.mfma4(s.sqacc, x + 2, x + 2, False)]
            if q == 0:
                c0 = s.mfma4(s.csacc, s.ones, w, c == 0)
                c1 = s.mfma4(s.csacc, s.ones, w + 2, False)
                if ex:
                    ex = [ex[0], c0, ex[1], ex[2], c1, ex[3]]
                else:
                    ex = [c0]
                    out.append(c0)
                    ex = []
                    out.append(('later', c1))
            out += ex
        res = []
        pend = []
        for it in out:
            if isinstance(it, tuple):
                pend.append(it[1])
            else:
                res.append(it)
                if pend and it.passes == 8:
                    res += pend
                    pend = []
        res += pend
        if 'nom4' in XF:
            res = [x for x in res if x.passes != 2]
        if 'nostat' in XF and r == 0:
            res = [x for x in res if not (x.passes == 2 and x.mf[0][0][1] != s.csacc)]
        return res

    def merge(self, main, side):
        return interleave(main, side)

    def stamp(self, name=''):
        if not self.prof:
            return
        i = self.nstamp
        self.nstamp += 1
        self.names = getattr(self, 'names', []) + [name]
        self.E(('s_memtime' if 'cyc' in XF else 's_memrealtime') + ' s[90:91]')
        self.e.emit(Drain(['lgkm']))
        self.E('s_nop 3')
        self.E('v_writelane_b32 v%d, s90, %d' % (self.vProf, i))

    def prof_store(self, base):
        if not self.prof:
            return
        E = self.E
        E('s_lshl_b32 s92, s2, 3')
        E('s_add_u32 s92, s92, s%d' % self.sWv)
        E('s_lshl_b32 s92, s92, 8')
        E('s_add_u32 s92, s92, 0x%x' % base)
        E('v_lshlrev_b32 v%d, 2, v0' % self.vT0)
        E('s_mov_b32 s%d, 0x%x' % (self.sWS + 2, 0x4000000))
        E('buffer_store_dword v%d, v%d, s[%d:%d], s92 offen' % (self.vProf, self.vT0, self.sWS, self.sWS + 3))


    def R(self, text):
        self.e._raw(text)

    def L(self, name):
        self.e.out.append(name + ':')

    def uid(self, base):
        self._uid = getattr(self, '_uid', 0) + 1
        return '%s_%s%d' % (self.label, base, self._uid)

    def tok_write(self):
        s = self; R = s.R
        lab = s.uid('tw')
        s.e.emit(Fence())
        R('s_or_b32 s80, s2, s%d' % s.sWv)
        R('s_cbranch_scc1 %s' % lab)
        R('s_memrealtime s[80:81]')
        R('v_mov_b32 v%d, 0' % s.vT3)
        R('s_waitcnt lgkmcnt(0)')
        R('s_or_b32 s80, s80, 1')
        R('v_mov_b32 v%d, s80' % s.vTok)
        R('s_mov_b64 exec, 1')
        R('global_store_dword v%d, v%d, s[%d:%d] sc1' % (s.vT3, s.vTok, s.pDBG, s.pDBG + 1))
        R('s_mov_b64 exec, -1')
        R('s_nop 1')
        s.L(lab)

    def tok_load(self):
        s = self; R = s.R
        lab = s.uid('tl')
        s.e.emit(Fence())
        R('s_cmp_lg_u32 s%d, 0' % s.sWv)
        R('s_cbranch_scc1 %s' % lab)
        R('v_mov_b32 v%d, 0' % s.vTok)
        R('s_mov_b64 exec, 1')
        R('global_load_dword v%d, v%d, s[%d:%d] sc1' % (s.vTok, s.vTok, s.pDBG, s.pDBG + 1))
        R('s_mov_b64 exec, -1')
        s.L(lab)

    def publish(self, word, vt):
        s = self; R = s.R
        skip = s.uid('pb'); got = s.uid('pg'); lp = s.uid('pl')
        s.e.emit(Fence())
        R('s_cmp_lg_u32 s%d, 0' % s.sWv)
        R('s_cbranch_scc1 %s' % skip)
        R('s_cmp_lg_u32 s%d, 0' % s.sTok)
        R('s_cbranch_scc1 %s' % got)
        R('s_waitcnt vmcnt(0)')
        R('s_mov_b32 s80, 0')
        s.L(lp)
        R('v_readfirstlane_b32 s%d, v%d' % (s.sTok, s.vTok))
        R('s_add_u32 s80, s80, 1')
        R('s_cmp_lg_u32 s%d, 0' % s.sTok)
        R('s_cbranch_scc1 %s' % got)
        R('v_mov_b32 v%d, 0' % s.vTok)
        R('global_load_dword v%d, v%d, s[%d:%d] sc1' % (s.vTok, s.vTok, s.pDBG, s.pDBG + 1))
        R('s_waitcnt vmcnt(0)')
        R('s_cmp_lt_u32 s80, 0x1000')
        R('s_cbranch_scc1 %s' % lp)
        R('s_mov_b32 s%d, 1' % s.sTok)
        s.L(got)
        R('v_mov_b32 v%d, s%d' % (vt[0], s.sFlagOff))
        R('v_mov_b32 v%d, s%d' % (vt[1], s.sTok))
        R('s_mov_b64 exec, 1')
        R('global_store_dword v%d, v%d, s[%d:%d] offset:%d sc1' % (vt[0], vt[1], s.pWS, s.pWS + 1, 4 * word))
        R('s_mov_b64 exec, -1')
        R('s_nop 1')
        s.L(skip)

    def poll_issue(self, va, vv):
        s = self; R = s.R
        skip = s.uid('pi')
        s.e.emit(Fence())
        R('s_cmp_lg_u32 s%d, 0' % s.sWv)
        R('s_cbranch_scc1 %s' % skip)
        R('s_mov_b64 exec, 0xffff')
        R('global_load_dword v%d, v%d, s[%d:%d] sc1' % (vv, va, s.pWS, s.pWS + 1))
        R('s_mov_b64 exec, -1')
        s.L(skip)

    def poll_wait(self, va, vv, mask, issued=False):
        s = self; R = s.R
        skip = s.uid('pw'); lp = s.uid('pwl'); chk = s.uid('pwc'); done = s.uid('pwd')
        s.e.emit(Fence())
        R('s_cmp_lg_u32 s%d, 0' % s.sWv)
        R('s_cbranch_scc1 %s' % skip)
        R('s_mov_b64 exec, 0xffff')
        R('s_mov_b32 s80, 0')
        if issued:
            R('s_branch %s' % chk)
        s.L(lp)
        R('global_load_dword v%d, v%d, s[%d:%d] sc1' % (vv, va, s.pWS, s.pWS + 1))
        s.L(chk)
        R('s_add_u32 s80, s80, 1')
        R('s_waitcnt vmcnt(0)')
        R('v_cmp_eq_u32 vcc, s%d, v%d' % (s.sTok, vv))
        R('s_and_b32 s82, vcc_lo, 0x%x' % mask)
        R('s_cmp_eq_u32 s82, 0x%x' % mask)
        R('s_cbranch_scc1 %s' % done)
        R('s_cmp_lt_u32 s80, 0x1000')
        R('s_cbranch_scc1 %s' % lp)
        s.L(done)
        R('s_mov_b64 exec, -1')
        s.L(skip)

    def barrier(self, tags, drain='lgkm', name=''):
        if tags:
            self.e.emit(WaitTag(tags))
        self.e.emit(Drain([drain]))
        if name:
            self.stamp(name)
        self.E('s_barrier')

    def stats_write(self):
        s = self
        q = s.sqacc
        return [I('v_cndmask_b32 v%d, v%d, v%d, s[%d:%d]' % (q, q, q + 1, s.sM[0], s.sM[0] + 1)),
                I('v_cndmask_b32 v%d, v%d, v%d, s[%d:%d]' % (q + 2, q + 2, q + 3, s.sM[2], s.sM[2] + 1)),
                I('v_cndmask_b32 v%d, v%d, v%d, s[%d:%d]' % (s.sumacc + 1, q, q + 2, s.sM[1], s.sM[1] + 1)),
                I('ds_write_b64 v%d, v[%d:%d]' % (s.vSTw, s.sumacc, s.sumacc + 1))]

    def cs_write(self, r):
        s = self
        return [I('ds_write_b32 v%d, v%d offset:%d' % (s.vCSw, s.csacc, (r % 2) * 2048))]

    def stats_read(self, t):
        s = self
        o = []
        o.append(I('ds_read_b128 v[%d:%d], v%d' % (t, t + 3, s.vSTr)))
        o.append(I('ds_read_b128 v[%d:%d], v%d offset:16' % (t + 4, t + 7, s.vSTr)))
        o.append(I('v_add_f32 v%d, v%d, v%d' % (t, t, t + 2)))
        o.append(I('v_add_f32 v%d, v%d, v%d' % (t + 4, t + 4, t + 6)))
        o.append(I('v_add_f32 v%d, v%d, v%d' % (t + 1, t + 1, t + 3)))
        o.append(I('v_add_f32 v%d, v%d, v%d' % (t + 5, t + 5, t + 7)))
        o.append(I('v_add_f32 v%d, v%d, v%d' % (t, t, t + 4)))
        o.append(I('v_add_f32 v%d, v%d, v%d' % (t + 1, t + 1, t + 5)))
        o.append(I('v_mul_f32 v%d, 0x%x, v%d' % (t, f2u(1.0 / 448), t)))
        o.append(I('v_mul_f32 v%d, v%d, v%d' % (t + 2, t, t)))
        o.append(I('v_fma_f32 v%d, v%d, s%d, -v%d' % (t + 1, t + 1, s.sK, t + 2)))
        o.append(I('v_max_f32 v%d, 0, v%d' % (t + 1, t + 1)))
        o.append(I('v_add_f32 v%d, 0x%x, v%d' % (t + 1, f2u(1e-5), t + 1)))
        o.append(I('v_rsq_f32 v%d, v%d' % (t + 7, t + 1)))
        o.append(I('v_cvt_pk_bf16_f32 v%d, v%d, v%d' % (t + 2, t, t)))
        o.append(I('v_and_b32 v%d, 0xffff0000, v%d' % (t + 2, t + 2)))
        o.append(I('v_sub_f32 v%d, v%d, v%d' % (t + 2, t, t + 2)))
        o.append(I('v_cvt_pk_bf16_f32 v%d, v%d, v%d' % (s.augB, t, t + 2)))
        o.append(I('v_mul_f32 v%d, v%d, v%d' % (t + 1, t + 1, t + 7)))
        o.append(I('v_mul_f32 v%d, 0x%x, v%d' % (s.vC, LOG2E, t + 7)))
        o.append(I('v_cndmask_b32 v%d, v%d, 0, s[%d:%d]' % (t + 1, t + 1, s.sMh, s.sMh + 1)))
        o.append(I('v_cvt_pk_bf16_f32 v%d, v%d, v%d' % (t + 3, t + 1, t + 1)))
        o.append(I('v_and_b32 v%d, 0xffff0000, v%d' % (t + 3, t + 3)))
        o.append(I('v_sub_f32 v%d, v%d, v%d' % (t + 3, t + 1, t + 3)))
        o.append(I('v_cvt_pk_bf16_f32 v%d, v%d, v%d' % (s.augB + 1, t, t + 1)))
        o.append(I('v_cvt_pk_bf16_f32 v%d, v%d, 0' % (s.augB + 2, t + 3)))
        o.append(I('v_mov_b32 v%d, 0' % (s.augB + 3)))
        return o

    def aug_col(self, cs, b1, t, half=False):
        s = self
        o = []
        o.append(I('v_cvt_pk_bf16_f32 v%d, -v%d, -v%d' % (s.augA, cs, cs)))
        o.append(I('v_lshlrev_b32 v%d, 16, v%d' % (t + 1, b1)))
        o.append(I('v_and_b32 v%d, 0xffff0000, v%d' % (t, s.augA)))
        o.append(I('v_add_f32 v%d, v%d, v%d' % (t, cs, t)))
        if half:
            o.append(I('v_mul_f32 v%d, 0.5, v%d' % (t + 1, t + 1)))
        o.append(I('v_cvt_pk_bf16_f32 v%d, -v%d, v%d' % (s.augA + 1, t, t + 1)))
        if half:
            o.append(I('v_lshrrev_b32 v%d, 16, v%d' % (s.augA + 2, t + 1)))
        else:
            o.append(I('v_mov_b32 v%d, v%d' % (s.augA + 2, b1)))
        return o

    def cs_read(self, r, t):
        s = self
        return [I('ds_read_b128 v[%d:%d], v%d offset:%d' % (t, t + 3, s.vCSr, (r % 2) * 2048)),
                I('v_add_f32 v%d, v%d, v%d' % (t, t, t + 1)),
                I('v_add_f32 v%d, v%d, v%d' % (t + 2, t + 2, t + 3)),
                I('v_add_f32 v%d, v%d, v%d' % (t, t, t + 2))]

    def mish(self, src, n, t, pk, stores):
        s = self
        o = []
        G = 4
        for g0 in range(0, n, G):
            a = [src + g0 + i for i in range(G)]
            u = [t + i for i in range(G)]
            w = [t + G + i for i in range(G)]
            for i in range(G): o.append(I('v_mul_f32 v%d, v%d, v%d' % (a[i], a[i], s.vC)))
            for i in range(G): o.append(I('v_exp_f32 v%d, v%d' % (u[i], a[i])))
            for i in range(G): o.append(I('v_fma_f32 v%d, v%d, -0.5, -1.0' % (w[i], u[i])))
            for i in range(G): o.append(I('v_fma_f32 v%d, v%d, v%d, -1.0' % (u[i], u[i], w[i])))
            for i in range(G): o.append(I('v_rcp_f32 v%d, v%d' % (u[i], u[i])))
            for i in range(G): o.append(I('v_fmac_f32 v%d, v%d, v%d' % (a[i], a[i], u[i])))
            for i in range(0, G, 2):
                o.append(I('v_cvt_pk_bf16_f32 v%d, v%d, v%d' % (pk + (g0 + i) // 2, a[i], a[i + 1])))
            if (g0 + G) in stores:
                o += stores[g0 + G]
        return o


import struct
def f2u(x):
    return struct.unpack('<I', struct.pack('<f', x))[0]


def rm(reads, mf, lead=3):
    if not mf:
        return list(reads)
    big = [i for i, m in enumerate(mf) if m.passes == 8]
    out = list(reads[:lead])
    rest = list(reads[lead:])
    n = len(mf)
    return out + interleave(mf, rest, 0, max(1, n - 1))


def round0(s, sched, extra_wait6, swap=False):
    for st in range(7):
        tags = [('x', st), ('w', 0, st)]
        if st == 6:
            tags += extra_wait6
        if st == 0: s.stamp('setup')
        s.barrier(tags, name=({0: 'c0', 1: 'c1', 3: 'c3', 6: 'c6'}.get(st, '')))
        pre = []
        for (r, c) in sched.get(st, []):
            pre += s.dma_w(r, c)
        if st == 4:
            pre = [I('v_add_u32 v%d, 0x10000, v%d' % (s.vXa[q], s.vXa[q])) for q in range(4)] + pre
        reads = s.chunk_reads(0, st)
        mf = s.chunk_mfmas(0, st - 1, swap) if st > 0 else []
        if st == 4:
            s.emit(pre[:4]); pre = pre[4:]
        s.emit(reads[:3])
        s.emit(pre)
        s.emit(rm(reads[3:], mf, lead=2))


def ffn_path(s):
    E = s.E
    s.srdW = s.sW; s.wstride = 3584
    srd(s.e, s.sW, s.pW1, 448 * 3584)
    E('s_sub_u32 s%d, s%d, 8' % (s.sJ, s.sJ))
    E('s_mul_i32 s%d, s%d, 7' % (s.sT0, s.sJ))
    E('s_and_b32 s%d, s%d, 1' % (s.sT1, s.sJ))
    E('s_add_u32 s%d, s%d, s%d' % (s.sT2, s.sT0, s.sT1))
    E('s_lshl_b32 s%d, s%d, 6' % (s.sWc[0], s.sT2))
    E('s_add_u32 s%d, s%d, 128' % (s.sWc[1], s.sWc[0]))
    E('s_add_u32 s%d, s%d, 256' % (s.sWc[2], s.sWc[0]))
    E('s_movk_i32 s%d, 3584' % s.sK)
    E('v_lshlrev_b32 v%d, 4, v%d' % (s.vT2, s.vT1))
    E('v_mad_u32_u24 v%d, v%d, s%d, v%d' % (s.vOffW, s.vT0, s.sK, s.vT2))
    s.prologue_dma()
    E('s_mul_i32 s%d, s%d, 6' % (s.sT1, s.sT1))
    E('s_sub_u32 s%d, s%d, s%d' % (s.sT0, s.sT0, s.sT1))
    E('s_add_u32 s%d, s%d, 6' % (s.sT0, s.sT0))
    E('s_lshl_b32 s%d, s%d, 6' % (s.sWs, s.sT0))
    E('s_lshl_b32 s%d, s%d, 5' % (s.sT1, s.sG))
    E('v_add_u32 v%d, s%d, v%d' % (s.vT0, s.sT1, s.vT0))
    E('v_lshrrev_b32 v%d, 2, v%d' % (s.vT2, s.vT1))
    E('v_lshl_add_u32 v%d, v%d, 5, v%d' % (s.vT0, s.vT2, s.vT0))
    E('v_and_b32 v%d, 3, v%d' % (s.vT2, s.vT1))
    E('v_lshlrev_b32 v%d, 4, v%d' % (s.vT2, s.vT2))
    E('v_mad_u32_u24 v%d, v%d, s%d, v%d' % (s.vOffS, s.vT0, s.sK, s.vT2))
    srd(s.e, s.sB, s.pB1, 1792 * 2)
    E('v_and_b32 v%d, 31, v0' % s.vT2)
    E('v_lshlrev_b32 v%d, 1, v%d' % (s.vT2, s.vT2))
    E('s_add_u32 s%d, s%d, s%d' % (s.sT2, s.sT2, s.sG))
    E('s_lshl_b32 s%d, s%d, 6' % (s.sT1, s.sT2))
    for r in range(3):
        E('buffer_load_ushort v%d, v%d, s[%d:%d], s%d offen offset:%d' % (s.vb1[r], s.vT2, s.sB, s.sB + 3, s.sT1, 128 * r))
    E('buffer_load_ushort v%d, v%d, s[%d:%d], s%d offen' % (s.vb1[3], s.vT2, s.sB, s.sB + 3, s.sWs))
    E('s_lshl_b32 s%d, s%d, 2' % (s.sT1, s.sRb))
    E('s_add_u32 s%d, s%d, s%d' % (s.sT1, s.sT1, s.sT))
    E('s_mul_i32 s%d, s%d, 144' % (s.sT1, s.sT1))
    E('s_lshl_b32 s%d, s%d, 1' % (s.sT2, s.sT2))
    E('s_add_u32 s%d, s%d, s%d' % (s.sSt, s.sT1, s.sT2))
    E('s_lshl_b32 s%d, s%d, 10' % (s.sSt, s.sSt))
    E('s_lshl_b32 s%d, s%d, 1' % (s.sT0, s.sT0))
    E('s_add_u32 s%d, s%d, s%d' % (s.sT0, s.sT0, s.sG))
    E('s_add_u32 s%d, s%d, s%d' % (s.sStS, s.sT1, s.sT0))
    E('s_lshl_b32 s%d, s%d, 10' % (s.sStS, s.sStS))
    srd(s.e, s.sWS, s.pWS, WS_BYTES)
    s.setup_addrs()
    s.lane_col(s.vT2)
    E('s_lshl_b32 s%d, s%d, 6' % (s.sT0, s.sG))
    E('v_add_u32 v%d, s%d, v%d' % (s.vTrS[1], s.sT0, s.vT2))
    s.tr_base(s.vTr[0], s.vTrS[1], s.sPi, RINGA)
    for q in range(1, 4):
        E('v_xor_b32 v%d, %d, v%d' % (s.vTr[q], q << 11, s.vTr[0]))
    E('s_lshr_b32 s%d, s%d, 1' % (s.sT0, s.sPi))
    E('s_lshl_b32 s%d, s%d, 6' % (s.sT0, s.sT0))
    E('v_add_u32 v%d, s%d, v%d' % (s.vTrS[1], s.sT0, s.vT2))
    E('s_and_b32 s%d, s%d, 1' % (s.sT0, s.sT))
    s.tr_base(s.vTrS[0], s.vTrS[1], s.sT0, RINGA)
    E('v_xor_b32 v%d, %d, v%d' % (s.vTrS[1], 1 << 11, s.vTrS[0]))
    E('s_mov_b32 s%d, 0x%x' % (s.sK, f2u(1.0 / 448)))

    sched = {1: [(0, 5), (1, 0), (1, 1)], 2: [(0, 6), (1, 2), (1, 3)], 3: [(1, 4), (1, 5), ('S', 0)],
             4: [(1, 6), (2, 0), ('S', 1)], 5: [(2, 1), (2, 2), ('S', 2)], 6: [(2, 3), (2, 4), ('S', 3)]}
    round0(s, sched, [('w', 1, c) for c in range(2)])
    s.emit(s.bump_tr(-RINGA))
    s.emit(rm(s.chunk_reads(1, 0), s.chunk_mfmas(0, 6)))
    s.emit(s.stats_write() + s.cs_write(0))
    s.emit(rm(s.chunk_reads(1, 1), s.chunk_mfmas(1, 0)))

    def s_reads(u):
        buf = s.wf[(21 + u) % 2]
        out = []
        for ci in (2 * u, 2 * u + 1):
            if ci > 6: continue
            for rho in range(2):
                d = buf + 4 * (2 * (ci % 2) + rho)
                imm = ((u + 2) % 5) * 8192 + (ci % 2) * 4096
                out.append(I('ds_read_b64_tr_b16 v[%d:%d], v%d offset:%d' % (d, d + 1, s.vTrS[rho], imm)))
                out.append(I('ds_read_b64_tr_b16 v[%d:%d], v%d offset:%d' % (d + 2, d + 3, s.vTrS[rho], imm + 512)))
        return out

    def s_mfmas(u):
        buf = s.wf[(21 + u) % 2]
        acc = s.acc[1]
        out = []
        for ci in (2 * u, 2 * u + 1):
            if ci > 6: continue
            for rho in range(2):
                w = buf + 4 * (2 * (ci % 2) + rho)
                x = s.xf + 16 * ci + 4 * rho
                first = (ci == 0 and rho == 0)
                out.append(s.mfma4(s.csacc, s.ones, w, first))
                out.append(s.mfma(acc, w, x, None if first else acc))
                out.append(s.mfma4(s.csacc, s.ones, w + 2, False))
        return out

    for r in (1, 2, 3):
        if r == 1:
            s.barrier([('w', 1, c) for c in range(7)] + [('w', 2, 0), ('w', 2, 1)], 'ldsw', name='R1')
            pre = s.dma_w(2, 5) + s.dma_w(2, 6)
        elif r == 2:
            s.barrier([('w', 2, c) for c in range(7)] + [('w', 'S', c) for c in range(4)], 'ldsw', name='R2')
            s.tok_load()
            pre = []
        else:
            s.barrier([], 'ldsw', name='R3')
            pre = []
        p = r - 1
        t = s.tE
        side = []
        if r == 1:
            side += s.stats_read(t)
        side += s.cs_read(p, t)
        side += s.aug_col(t, s.vb1[p], t + 2)
        accp = s.acc[p % 2]
        side.append(s.mfma(accp, s.augA, s.augB, accp))
        st = []
        for kk in range(2):
            ins = [I('buffer_store_dwordx4 v[%d:%d], v%d, s[%d:%d], s%d offen offset:%d sc1' % (s.pk + 4 * kk, s.pk + 4 * kk + 3, s.vLane16, s.sWS, s.sWS + 3, s.sSt, 1024 * kk))]
            if kk == 1 and p < 2:
                ins.append(I('s_add_u32 s%d, s%d, 4096' % (s.sSt, s.sSt)))
            st.append(ins)
        side += s.mish(accp, 16, t, s.pk, {8: st[0], 16: st[1]})
        if 'noside' in XF:
            side = st[0] + st[1]
        if 'noaug' in XF:
            side = s.mish(accp, 16, t, s.pk, {8: st[0], 16: st[1]})
        main = []
        if r < 3:
            for c in range(1, 7):
                if c < 6:
                    rds = s.chunk_reads(r, c + 1)
                elif r == 1:
                    rds = s.bump_tr(57344) + s.chunk_reads(2, 0)
                else:
                    rds = s_reads(0)
                main += rm(rds, s.chunk_mfmas(r, c), lead=(3 if not (c == 6 and r == 1) else 7))
        else:
            for u in range(1, 4):
                rds = s_reads(u + 1) if u < 3 else []
                main += rm(rds, s_mfmas(u))
        s.emit(pre)
        s.emit(interleave(main, side, 0, len(main) - 4))
        if r < 3:
            s.emit(s.cs_write(r))
            if r == 1:
                s.emit(rm(s.chunk_reads(2, 1), s.chunk_mfmas(2, 0)))
            else:
                s.emit(rm(s_reads(1), s_mfmas(0)))
    t = s.tE
    s.emit(s.aug_col(s.csacc, s.vb1[3], t, half=True))
    acc = s.acc[1]
    s.emit(s.mfma(acc, s.augA, s.augB, acc))
    E('s_lshl_b32 s%d, s%d, 12' % (s.sT0, s.sWv))
    E('v_add_u32 v%d, s%d, v%d' % (s.vT0, s.sT0, s.vLane16))
    E('s_lshl_b32 s%d, s%d, 12' % (s.sT0, s.sT))
    E('s_lshl_b32 s%d, s%d, 11' % (s.sT1, s.sG))
    E('s_add_u32 s%d, s%d, s%d' % (s.sT0, s.sT0, s.sT1))
    E('v_add_u32 v%d, s%d, v%d' % (s.vT1, s.sT0, s.vLane16))
    for q in range(4):
        E('ds_write_b128 v%d, v[%d:%d] offset:%d' % (s.vT0, acc + 4 * q, acc + 4 * q + 3, 1024 * q))
    s.barrier([], 'lgkm', name='XCH')
    a0 = s.acc[0]
    for gp in range(2):
        for q in range(2):
            d = a0 + 8 * gp + 4 * q
            E('ds_read_b128 v[%d:%d], v%d offset:%d' % (d, d + 3, s.vT1, 16384 * gp + 1024 * q))
    for i in range(8):
        E('v_add_f32 v%d, v%d, v%d' % (a0 + i, a0 + i, a0 + 8 + i))
    st = [I('buffer_store_dwordx4 v[%d:%d], v%d, s[%d:%d], s%d offen sc1' % (s.pk, s.pk + 3, s.vLane16, s.sWS, s.sWS + 3, s.sStS))]
    s.emit(s.mish(a0, 8, t, s.pk, {8: st}))


def gen_fused(label, prof=False):
    import f1, f1_attn, f2
    f1.PROF = prof
    globals()['PROF'] = prof
    s = K1(label)
    if prof:
        s.E('v_mov_b32 v255, 0')
        s.E(('s_memtime' if 'cyc' in XF else 's_memrealtime') + ' s[90:91]')
        s.e.emit(Drain(['lgkm']))
        s.E('v_writelane_b32 v255, s90, 0')
        s.nstamp = 1
        s.names = ['start']
    s.prologue()
    s.E('s_cmp_lt_u32 s%d, 8' % s.sJ)
    s.E('s_cbranch_scc1 %s_attn' % label)
    s.e.emit(Fence())
    save = (list(s.e.lg), list(s.e.vm))
    ns = s.nstamp
    nm = list(getattr(s, 'names', []))
    ffn_path(s)
    s.stamp('end')
    s.ffn_names = list(getattr(s, 'names', []))
    s.e.emit(Fence())
    s.E('s_branch %s_p2' % label)
    s.e.out.append('%s_attn:' % label)
    s.e.lg, s.e.vm = save
    s.e.hist = []
    s.nstamp = ns
    s.names = nm
    f1_attn.attn_path(s)
    s.stamp('end')
    s.attn_names = list(getattr(s, 'names', []))
    s.e.emit(Fence())
    nv1 = s.va.next
    s.e.out.append('%s_p2:' % label)
    s.e.vm = [{'tag': 'p1', 'wr': set(), 'smem': False}]
    s.e.lg = [{'tag': 'p1l', 'wr': set(), 'smem': True}]
    s.e.hist = []
    s.nstamp = 32
    s.names = []
    nv2 = f2.phase2(s)
    s.p2_names = list(s.names)
    s.E('%s_end:' % label)
    s.E('s_endpgm')
    s.e.k1 = s
    return s.e, (256 if prof else max(nv1, nv2))
```

```python
from f1 import *

BIGNEG = 0xf149f2ca


def attn_path(s):
    E = s.E
    A = s.va.alloc
    Id = A(8, 4)
    Id4 = A(2, 2)
    vWp = s.vOffS
    vMx, vN, vZ, vZ2 = s.vb1[0], s.vb1[1], s.vb1[2], s.vb1[3]
    vB1a, vB1b = s.vTrS[0], s.vTrS[1]
    vM2 = A(); vN2 = A()
    kb = s.pool; EE = s.pool + 8
    s.srdW = s.sW2; s.wstride = 2688
    sGat = 81; sKvp = 83; sMl30 = 84
    srd(s.e, s.sW2, s.pWQKV, 448 * 2688)
    hp = s.sJ
    E('s_mul_i32 s%d, s%d, 112' % (s.sWc[2], hp))
    E('s_add_u32 s%d, s%d, 896' % (s.sWc[0], s.sWc[2]))
    E('s_add_u32 s%d, s%d, 1792' % (s.sWc[1], s.sWc[2]))
    E('s_movk_i32 s%d, 2688' % s.sK)
    E('v_lshlrev_b32 v%d, 4, v%d' % (s.vT2, s.vT1))
    E('v_mad_u32_u24 v%d, v%d, s%d, v%d' % (s.vOffW, s.vT0, s.sK, s.vT2))
    E('v_cmp_eq_u32 vcc, 7, v%d' % s.vT1)
    E('v_mov_b32 v%d, 0x40000000' % s.vT2)
    E('v_cndmask_b32 v%d, v%d, v%d, vcc' % (s.vOffW, s.vOffW, s.vT2))
    s.prologue_dma()
    s.tok_write()
    srd(s.e, s.sB2, s.pWPHI, 16 * 1568)
    srd(s.e, s.sWS, s.pWS, WS_BYTES)
    s.setup_addrs()
    s.lane_col(s.vT2)
    E('s_mul_i32 s%d, s%d, 56' % (s.sT0, s.sG))
    E('v_add_u32 v%d, s%d, v%d' % (vWp, s.sT0, s.vT2))
    E('v_cmp_eq_u32 vcc, 56, v%d' % s.vT2)
    E('v_mov_b32 v%d, 112' % s.vT3)
    E('v_cndmask_b32 v%d, v%d, v%d, vcc' % (vWp, vWp, s.vT3))
    s.tr_base(s.vTr[0], vWp, s.sPi, RINGA)
    for q in range(1, 4):
        E('v_xor_b32 v%d, %d, v%d' % (s.vTr[q], q << 11, s.vTr[0]))
    E('v_min_u32 v%d, 48, v%d' % (s.vT2, s.vT2))
    E('v_lshrrev_b32 v%d, 5, v0' % s.vT0)
    E('v_bfe_u32 v%d, v0, 2, 2' % s.vT1)
    E('v_lshl_add_u32 v%d, v%d, 2, v%d' % (s.vT0, s.vT0, s.vT1))
    E('v_mad_u32_u24 v%d, v%d, 56, v%d' % (vWp, s.vT0, s.vT2))
    E('s_mul_i32 s%d, s%d, 1568' % (s.sT0, s.sG))
    E('s_add_u32 s%d, s%d, %d' % (s.sT0, s.sT0, RINGA + 2 * 8192))
    E('v_add_u32 v%d, s%d, v%d' % (vWp, s.sT0, vWp))
    E('v_and_b32 v%d, 31, v0' % s.vT0)
    E('v_lshrrev_b32 v%d, 5, v0' % s.vT1)
    E('v_lshlrev_b32 v%d, 2, v%d' % (s.vT1, s.vT1))
    E('v_sub_u32 v%d, v%d, v%d' % (s.vT1, s.vT0, s.vT1))
    E('v_lshlrev_b32 v%d, 4, v%d' % (s.vT1, s.vT1))
    E('s_movk_i32 s%d, 0x3f80' % s.sT0)
    for kk in range(2):
        for m in range(4):
            cst = 16 * kk + 8 * (m // 2) + 2 * (m % 2)
            d = Id + 4 * kk + m
            E('v_subrev_u32 v%d, %d, v%d' % (s.vT2, 16 * cst, s.vT1))
            E('v_lshlrev_b32 v%d, v%d, s%d' % (d, s.vT2, s.sT0))
            E('v_cmp_gt_u32 vcc, 32, v%d' % s.vT2)
            E('v_cndmask_b32 v%d, 0, v%d, vcc' % (d, d))
    E('v_and_b32 v%d, 1, v0' % s.vT2)
    E('v_lshlrev_b32 v%d, 4, v%d' % (s.vT2, s.vT2))
    E('v_lshlrev_b32 v%d, v%d, s%d' % (s.vT2, s.vT2, s.sT0))
    E('v_cndmask_b32 v%d, v%d, 0, s[%d:%d]' % (Id4, s.vT2, s.sM[1], s.sM[1] + 1))
    E('v_cndmask_b32 v%d, 0, v%d, s[%d:%d]' % (Id4 + 1, s.vT2, s.sM[1], s.sM[1] + 1))
    E('v_cmp_eq_u32 vcc, 28, v%d' % s.vT0)
    E('v_cndmask_b32 v%d, 0, 1.0, vcc' % vB1a)
    E('v_cmp_eq_u32 vcc, 29, v%d' % s.vT0)
    E('v_mov_b32 v%d, 0x3f80' % s.vT2)
    E('v_cndmask_b32 v%d, 0, v%d, vcc' % (vB1b, s.vT2))
    E('v_cmp_eq_u32 s[%d:%d], 30, v%d' % (sMl30, sMl30 + 1, s.vT0))
    E('s_lshl_b32 s%d, s%d, 2' % (s.sT1, s.sRb))
    E('s_add_u32 s%d, s%d, s%d' % (s.sT1, s.sT1, s.sT))
    E('s_mul_i32 s%d, s%d, 144' % (s.sT1, s.sT1))
    E('s_lshl_b32 s%d, s%d, 2' % (s.sT2, hp))
    E('s_lshl_b32 s%d, s%d, 1' % (s.sT3, s.sG))
    E('s_add_u32 s%d, s%d, s%d' % (s.sT2, s.sT2, s.sT3))
    E('s_add_u32 s%d, s%d, s%d' % (s.sSt, s.sT1, s.sT2))
    E('s_add_u32 s%d, s%d, 112' % (s.sSt, s.sSt))
    E('s_lshl_b32 s%d, s%d, 10' % (s.sSt, s.sSt))
    E('s_lshl_b32 s%d, s%d, 17' % (sGat, hp))
    E('s_lshl_b32 s%d, s%d, 12' % (s.sT2, s.sG))
    E('s_add_u32 s%d, s%d, s%d' % (sGat, sGat, s.sT2))
    E('s_lshl_b32 s%d, s%d, 10' % (s.sT2, s.sT))
    E('s_add_u32 s%d, s%d, s%d' % (sGat, sGat, s.sT2))
    E('s_add_u32 s%d, s%d, 0x%x' % (sGat, sGat, KVP_OFF))
    E('s_lshl_b32 s%d, s%d, 13' % (s.sT2, s.sRb))
    E('s_add_u32 s%d, s%d, s%d' % (sKvp, sGat, s.sT2))
    E('s_mul_i32 s%d, s%d, 3136' % (s.sWs, hp))
    E('s_lshl_b32 s%d, s%d, 10' % (s.sT2, s.sT))
    E('s_add_u32 s%d, s%d, s%d' % (s.sWs, s.sWs, s.sT2))
    E('s_add_u32 s%d, s%d, %d' % (s.sStS, s.sT2, RINGA + 2 * 8192))
    E('s_mov_b32 s%d, 0x%x' % (s.sK, f2u(1.0 / 448)))

    sched = {1: [(0, 5), (1, 0), (1, 1)], 2: [(0, 6), (1, 2), (1, 3)], 3: [(1, 4), (1, 5), 'P'],
             4: [(1, 6), (2, 0)], 5: [(2, 1), (2, 2)], 6: [(2, 3), (2, 4)]}
    dma_w0 = s.dma_w
    def dma_w(r, c=None):
        if r == 'P':
            return [I('s_mov_b32 m0, s%d' % s.sStS),
                    I('buffer_load_dwordx4 v%d, s[%d:%d], s%d offen lds' % (s.vLane16, s.sB2, s.sB2 + 3, s.sWs), tag=('w', 'P', 0))]
        return dma_w0(r, c)
    s.dma_w = dma_w
    sched[3] = [(1, 4), (1, 5), ('P', 0)]
    round0(s, sched, [('w', 1, c) for c in range(2)])
    s.emit(s.bump_tr(-RINGA))
    s.emit(rm(s.chunk_reads(1, 0), s.chunk_mfmas(0, 6)))
    s.emit(s.stats_write() + s.cs_write(0))
    s.emit(rm(s.chunk_reads(1, 1), s.chunk_mfmas(1, 0, swap=True)))

    def aug_col0(cs, t, b1a=None, b1b=None):
        o = []
        o.append(I('v_cvt_pk_bf16_f32 v%d, -v%d, -v%d' % (s.augA, cs, cs)))
        o.append(I('v_and_b32 v%d, 0xffff0000, v%d' % (t, s.augA)))
        o.append(I('v_add_f32 v%d, v%d, v%d' % (t, cs, t)))
        if b1a is None:
            o.append(I('v_cvt_pk_bf16_f32 v%d, -v%d, 0' % (s.augA + 1, t)))
            o.append(I('v_mov_b32 v%d, 0' % (s.augA + 2)))
        else:
            o.append(I('v_cvt_pk_bf16_f32 v%d, -v%d, v%d' % (s.augA + 1, t, b1a)))
            o.append(I('v_mov_b32 v%d, v%d' % (s.augA + 2, b1b)))
        return o

    def feat_common(P):
        o = []
        for kk in range(2):
            for sec in range(2):
                d = EE + 4 * kk + 2 * sec
                o.append(I('ds_read_b64_tr_b16 v[%d:%d], v%d offset:%d' % (d, d + 1, vWp, 896 * kk + 448 * sec)))
        for i in range(8):
            o.append(I('v_cvt_pk_bf16_f32 v%d, v%d, v%d' % (kb + i, P + 2 * i, P + 2 * i + 1)))
        o.append(s.mfma(P, EE, kb, None))
        o.append(s.mfma(P, EE + 4, kb + 4, P))
        o.append(I('v_max3_f32 v%d, v%d, v%d, v%d' % (vMx, P, P + 1, P + 2)))
        o.append(I('v_min3_f32 v%d, v%d, v%d, v%d' % (vN, P, P + 1, P + 2)))
        for i in range(3, 15, 2):
            o.append(I('v_max3_f32 v%d, v%d, v%d, v%d' % (vMx, vMx, P + i, P + i + 1)))
            o.append(I('v_min3_f32 v%d, v%d, v%d, v%d' % (vN, vN, P + i, P + i + 1)))
        o.append(I('v_max_f32 v%d, v%d, v%d' % (vMx, vMx, P + 15)))
        o.append(I('v_min_f32 v%d, v%d, v%d' % (vN, vN, P + 15)))
        o.append(I('v_xor_b32 v%d, 0x80000000, v%d' % (vN, vN)))
        o.append(I('v_permlane32_swap_b32 v%d, v%d' % (vMx, vN)))
        o.append(I('v_max_f32 v%d, v%d, v%d' % (vMx, vMx, vN)))
        o.append(I('v_mul_f32 v%d, v%d, v%d' % (vMx, vMx, s.vC)))
        o.append(I('v_xor_b32 v%d, 0x80000000, v%d' % (vMx, vMx)))
        o.append(I('v_mov_b32 v%d, v%d' % (vN, vMx)))
        o.append(I('v_permlane32_swap_b32 v%d, v%d' % (vMx, vN)))
        o.append(I('v_mov_b32 v%d, 0x%x' % (vZ, BIGNEG)))
        o.append(I('v_cndmask_b32 v%d, v%d, v%d, s[%d:%d]' % (vM2, vMx, vZ, s.sMh, s.sMh + 1)))
        o.append(I('v_cndmask_b32 v%d, v%d, v%d, s[%d:%d]' % (vN2, vN, vZ, s.sMh, s.sMh + 1)))
        for g0 in range(0, 16, 4):
            for i in range(g0, g0 + 4):
                o.append(I('v_fma_f32 v%d, v%d, v%d, v%d' % (EE + i, P + i, s.vC, vM2 if i >= 12 else vMx)))
            for i in range(g0, g0 + 4):
                o.append(I('v_fma_f32 v%d, -v%d, v%d, v%d' % (P + i, P + i, s.vC, vN2 if i >= 12 else vN)))
            for i in range(g0, g0 + 4):
                o.append(I('v_exp_f32 v%d, v%d' % (EE + i, EE + i)))
            for i in range(g0, g0 + 4):
                o.append(I('v_exp_f32 v%d, v%d' % (P + i, P + i)))
        return o

    s.barrier([('w', 1, c) for c in range(7)] + [('w', 2, 0), ('w', 2, 1), ('w', 'P', 0)], 'ldsw', name='R1')
    s.tok_load()
    pre = s.dma_w(2, 5) + s.dma_w(2, 6)
    t = s.tE
    P = s.acc[0]
    side = s.stats_read(t) + s.cs_read(0, t) + aug_col0(t, t + 2)
    side.append(s.mfma(P, s.augA, s.augB, P))
    side += feat_common(P)
    side.append(I('v_add_f32 v%d, v%d, v%d' % (vZ, EE, EE + 1)))
    side.append(I('v_add_f32 v%d, v%d, v%d' % (vZ2, P, P + 1)))
    for i in range(2, 16):
        side.append(I('v_add_f32 v%d, v%d, v%d' % (vZ, vZ, EE + i)))
        side.append(I('v_add_f32 v%d, v%d, v%d' % (vZ2, vZ2, P + i)))
    side.append(I('v_permlane32_swap_b32 v%d, v%d' % (vZ, vZ2)))
    side.append(I('v_add_f32 v%d, v%d, v%d' % (vZ, vZ, vZ2)))
    side.append(I('v_rcp_f32 v%d, v%d' % (vZ, vZ)))
    side.append(I('v_mul_f32 v%d, v%d, v%d' % (vZ, vZ, s.vC)))
    side.append(I('v_mov_b32 v%d, v%d' % (vZ2, vZ)))
    side.append(I('v_permlane32_swap_b32 v%d, v%d' % (vZ, vZ2)))
    for i in range(0, 16, 2):
        side.append(I('v_mul_f32 v%d, v%d, v%d' % (EE + i, EE + i, vZ)))
        side.append(I('v_mul_f32 v%d, v%d, v%d' % (EE + i + 1, EE + i + 1, vZ)))
        side.append(I('v_cvt_pk_bf16_f32 v%d, v%d, v%d' % (kb + i // 2, EE + i, EE + i + 1)))
    for i in range(0, 16, 2):
        side.append(I('v_mul_f32 v%d, v%d, v%d' % (P + i, P + i, vZ2)))
        side.append(I('v_mul_f32 v%d, v%d, v%d' % (P + i + 1, P + i + 1, vZ2)))
        side.append(I('v_cvt_pk_bf16_f32 v%d, v%d, v%d' % (EE + i // 2, P + i, P + i + 1)))
    side.append(s.mfma(P, kb, Id, None))
    side.append(s.mfma(P, kb + 4, Id + 4, P))
    for i in range(8):
        side.append(I('v_cvt_pk_bf16_f32 v%d, v%d, v%d' % (kb + i, P + 2 * i, P + 2 * i + 1)))
    side.append(s.mfma(P, EE, Id, None))
    side.append(s.mfma(P, EE + 4, Id + 4, P))
    for i in range(8):
        side.append(I('v_cvt_pk_bf16_f32 v%d, v%d, v%d' % (EE + 8 + i, P + 2 * i, P + 2 * i + 1)))
    main = []
    for c in range(1, 7):
        rds = s.chunk_reads(1, c + 1) if c < 6 else s.bump_tr(57344) + s.chunk_reads(2, 0)
        main += rm(rds, s.chunk_mfmas(1, c, swap=True), lead=(3 if c < 6 else 7))
    s.emit(pre)
    s.emit(interleave(main, side, 0, len(main) - 2))
    s.emit(s.cs_write(1))
    s.emit(rm(s.chunk_reads(2, 1), s.chunk_mfmas(2, 0)))

    s.barrier([('w', 2, c) for c in range(7)], 'lgkm', name='R2')
    Vt = s.acc[1]
    vb = EE
    tt = s.csacc
    side = [I('ds_read_b128 v[%d:%d], v%d offset:%d' % (vb, vb + 3, s.vCSr, 2048)),
            I('v_add_f32 v%d, v%d, v%d' % (vb, vb, vb + 1)),
            I('v_add_f32 v%d, v%d, v%d' % (vb + 2, vb + 2, vb + 3)),
            I('v_add_f32 v%d, v%d, v%d' % (vb, vb, vb + 2))]
    side += aug_col0(vb, vb + 2, vB1a, vB1b)
    side.append(s.mfma(Vt, s.augB, s.augA, Vt))
    for i in range(8):
        side.append(I('v_cvt_pk_bf16_f32 v%d, v%d, v%d' % (vb + i, Vt + 2 * i, Vt + 2 * i + 1)))
    side.append(I('s_lshl_b32 s%d, s%d, 13' % (s.sT0, s.sWv)))
    side.append(I('v_add_u32 v%d, s%d, v%d' % (vMx, s.sT0, s.vLane16)))
    for blk in range(2):
        pT = kb if blk == 0 else EE + 8
        side.append(s.mfma(Vt, pT, vb, None))
        side.append(s.mfma(Vt, pT + 4, vb + 4, Vt))
        for q in range(4):
            side.append(I('ds_write_b128 v%d, v[%d:%d] offset:%d' % (vMx, Vt + 4 * q, Vt + 4 * q + 3, 4096 * blk + 1024 * q)))
    side.append(I('s_lshl_b32 s%d, s%d, 15' % (s.sT0, s.sG)))
    side.append(I('s_lshl_b32 s%d, s%d, 11' % (s.sT1, s.sT)))
    side.append(I('s_add_u32 s%d, s%d, s%d' % (s.sT0, s.sT0, s.sT1)))
    side.append(I('v_add_u32 v%d, s%d, v%d' % (vN, s.sT0, s.vLane16)))
    mainA = []
    for c in range(1, 4):
        mainA += rm(s.chunk_reads(2, c + 1), s.chunk_mfmas(2, c))
    s.emit(interleave(mainA, side, 0, len(mainA) - 2))
    s.barrier([], 'ldsw', name='KVR')
    side = []
    R = s.pool
    dst = [Vt, Vt + 8, s.pool, s.pool + 8]
    for tp in range(4):
        for q in range(2):
            side.append(I('ds_read_b128 v[%d:%d], v%d offset:%d' % (dst[tp] + 4 * q, dst[tp] + 4 * q + 3, vN, 8192 * tp + 1024 * q)))
    for i in range(8):
        side.append(I('v_add_f32 v%d, v%d, v%d' % (Vt + i, Vt + i, Vt + 8 + i)))
        side.append(I('v_add_f32 v%d, v%d, v%d' % (s.pool + i, s.pool + i, s.pool + 8 + i)))
    for i in range(8):
        side.append(I('v_add_f32 v%d, v%d, v%d' % (Vt + i, Vt + i, s.pool + i)))
    for i in range(4):
        side.append(I('v_cvt_pk_bf16_f32 v%d, v%d, v%d' % (Vt + 8 + i, Vt + 2 * i, Vt + 2 * i + 1)))
    side.append(I('buffer_store_dwordx4 v[%d:%d], v%d, s[%d:%d], s%d offen sc1' % (Vt + 8, Vt + 11, s.vLane16, s.sWS, s.sWS + 3, sKvp), tag='kvp'))
    mainB = rm(s.chunk_reads(2, 5), s.chunk_mfmas(2, 4))
    s.emit(interleave(mainB, side, 0, len(mainB) - 1))
    s.emit(rm(s.chunk_reads(2, 6), s.chunk_mfmas(2, 5)))
    s.emit(s.chunk_mfmas(2, 6))
    s.emit(s.cs_write(2))
    s.e.emit(WaitTag(['kvp']))
    s.barrier([], 'ldsw', name='R3')
    s.publish(1, (vMx, vN))
    vPa, vPv = vM2, vN2
    E('v_lshlrev_b32 v%d, 11, v0' % s.vT3)
    E('s_lshl_b32 s%d, s%d, 7' % (s.sT0, hp))
    E('s_add_u32 s%d, s%d, 0x%x' % (s.sT0, s.sT0, FLAGS_OFF + 4))
    E('v_add_u32 v%d, s%d, v%d' % (s.vT3, s.sT0, s.vT3))
    s.poll_issue(s.vT3, s.vT2)
    P = s.acc[0]
    s.emit([I('ds_read_b128 v[%d:%d], v%d' % (vb, vb + 3, s.vCSr)),
            I('v_add_f32 v%d, v%d, v%d' % (vb, vb, vb + 1)),
            I('v_add_f32 v%d, v%d, v%d' % (vb + 2, vb + 2, vb + 3)),
            I('v_add_f32 v%d, v%d, v%d' % (vb, vb, vb + 2))])
    s.emit(aug_col0(vb, vb + 2))
    s.emit(s.mfma(P, s.augA, s.augB, P))
    s.emit(feat_common(P))
    for i in range(8):
        E('v_cvt_pk_bf16_f32 v%d, v%d, v%d' % (kb + i, EE + 2 * i, EE + 2 * i + 1))
    for i in range(8):
        E('v_cvt_pk_bf16_f32 v%d, v%d, v%d' % (EE + i, P + 2 * i, P + 2 * i + 1))
    s.stamp('feat')
    s.poll_wait(s.vT3, s.vT2, 0xffff, issued=True)
    s.barrier([], 'lgkm', name='spun')
    G = s.xf
    for rb in range(16):
        E('buffer_load_dwordx4 v[%d:%d], v%d, s[%d:%d], s%d offen sc1' % (G + 4 * rb, G + 4 * rb + 3, s.vLane16, s.sWS, s.sWS + 3, sGat))
        if rb < 15:
            E('s_add_u32 s%d, s%d, 8192' % (sGat, sGat))
    s.e.emit(Drain(['vm']))
    s.stamp('gath')
    lo, hi = s.acc[1], s.acc[1] + 4
    for rb in range(16):
        s.emit(s.mfma4(lo, Id4, G + 4 * rb, rb == 0))
        s.emit(s.mfma4(hi, Id4, G + 4 * rb + 2, rb == 0))
    red = s.acc[1] + 8
    for i in range(4):
        E('v_cvt_pk_bf16_f32 v%d, v%d, v%d' % (red + i, lo + 2 * i, lo + 2 * i + 1))
    for i in range(4):
        E('v_cndmask_b32 v%d, v%d, v%d, s[%d:%d]' % (red + i, red + i, s.ones, sMl30, sMl30 + 1))
    E('s_lshl_b32 s%d, s%d, 10' % (s.sT0, s.sWv))
    E('v_add_u32 v%d, s%d, v%d' % (vMx, s.sT0, s.vLane16))
    E('s_lshl_b32 s%d, s%d, 12' % (s.sT0, s.sG))
    E('v_add_u32 v%d, s%d, v%d' % (vN, s.sT0, s.vLane16))
    E('ds_write_b128 v%d, v[%d:%d]' % (vMx, red, red + 3))
    s.barrier([], 'lgkm', name='share')
    KA = G
    for f in range(4):
        E('ds_read_b128 v[%d:%d], v%d offset:%d' % (KA + 4 * f, KA + 4 * f + 3, vN, 1024 * f))
    Np, Nm = s.acc[0], s.acc[1]
    s.emit(s.mfma(Np, KA, kb, None))
    s.emit(s.mfma(Nm, KA + 8, EE, None))
    s.emit(s.mfma(Np, KA + 4, kb + 4, Np))
    s.emit(s.mfma(Nm, KA + 12, EE + 4, Nm))
    a, b, dn = vMx, vN, vZ
    E('v_rcp_f32 v%d, v%d' % (a, Np + 14))
    E('v_rcp_f32 v%d, v%d' % (b, Nm + 14))
    E('v_add_f32 v%d, v%d, v%d' % (dn, Np + 12, Np + 13))
    E('v_add_f32 v%d, v%d, v%d' % (vZ2, Nm + 12, Nm + 13))
    E('v_mov_b32 v%d, 0x%x' % (vM2, f2u(1e-6 * 1.4426950408889634)))
    E('v_fmac_f32 v%d, v%d, v%d' % (vM2, dn, a))
    E('v_fmac_f32 v%d, v%d, v%d' % (vM2, vZ2, b))
    E('v_rcp_f32 v%d, v%d' % (vM2, vM2))
    E('v_mul_f32 v%d, 0x%x, v%d' % (vM2, LOG2E, vM2))
    E('v_mul_f32 v%d, v%d, v%d' % (a, a, vM2))
    E('v_mul_f32 v%d, v%d, v%d' % (b, b, vM2))
    E('v_mov_b32 v%d, v%d' % (vZ, a))
    E('v_mov_b32 v%d, v%d' % (vZ2, b))
    E('v_permlane32_swap_b32 v%d, v%d' % (vZ, a))
    E('v_permlane32_swap_b32 v%d, v%d' % (vZ2, b))
    E('v_cndmask_b32 v%d, v%d, 0, s[%d:%d]' % (vM2, a, s.sMh, s.sMh + 1))
    E('v_cndmask_b32 v%d, v%d, 0, s[%d:%d]' % (vN2, b, s.sMh, s.sMh + 1))
    for i in range(16):
        fa, fb = (vM2, vN2) if i >= 12 else (a, b)
        E('v_mul_f32 v%d, v%d, v%d' % (Np + i, Np + i, fa))
        E('v_fmac_f32 v%d, v%d, v%d' % (Np + i, Nm + i, fb))
    for i in range(8):
        E('v_cvt_pk_bf16_f32 v%d, v%d, v%d' % (kb + i, Np + 2 * i, Np + 2 * i + 1))
        if i % 4 == 3:
            kk = i // 4
            E('buffer_store_dwordx4 v[%d:%d], v%d, s[%d:%d], s%d offen offset:%d sc1' % (kb + 4 * kk, kb + 4 * kk + 3, s.vLane16, s.sWS, s.sWS + 3, s.sSt, 1024 * kk))
```

```python
from f1 import *

LN2 = 0x3f317218


def phase2(s, NS=5):
    e = s.e
    label = s.label
    stamp = s.stamp
    def E(text, tag=None):
        e.emit(I(text, tag))
    sX, sWS = s.sX, s.sWS
    sW2, sWO, sOUT = 12, 20, 68
    sWv = s.sWv
    sKq, sTh, sTb, sCb = 25, 26, 27, 28
    sM0, sOffO = 29, 30
    sT0, sT1, sT2, sT3 = 32, 33, 34, 35
    sQ = [40, 41, 42, 43]
    sQo = [44, 45, 46, 47]
    sAct, sActO = 48, 49
    sIdle = 50
    va = RegAlloc('v', 1, 256)
    vOffW = va.alloc(); vOffWO = va.alloc(); vLane16 = va.alloc(); vXo = va.alloc()
    vT0 = va.alloc(); vT1 = va.alloc(); vT2 = va.alloc(); vRedR = va.alloc(); vRedW = va.alloc()
    vPa = va.alloc(); vPv = va.alloc()
    vTr = [[va.alloc() for ct in range(2)] for b in range(3)]
    vXr = va.alloc(4, 4)
    acc = va.alloc(32, 4)
    wf = va.alloc(32, 4)
    assert va.next <= s.vTok
    act = va.alloc(144, 4)

    E('s_and_b32 s%d, s2, 7' % sT0)
    E('s_lshr_b32 s%d, s2, 3' % sT1)
    E('s_lshl_b32 s%d, s%d, 5' % (sT2, sT0))
    E('s_sub_u32 s%d, s%d, 128' % (sT2, sT2))
    E('s_mul_i32 s%d, s%d, 24' % (sT3, sT0))
    E('s_add_u32 s%d, s%d, 128' % (sT3, sT3))
    E('s_cmp_lt_u32 s%d, 4' % sT0)
    E('s_cselect_b32 s%d, s%d, s%d' % (sT2, sT3, sT2))
    E('s_cselect_b32 s%d, 24, 32' % sT3)
    E('s_cmp_ge_u32 s%d, s%d' % (sT1, sT3))
    E('s_cselect_b32 s%d, 1, 0' % sIdle)
    E('s_cselect_b32 s%d, 0, s%d' % (sT1, sT1))
    E('s_add_u32 s%d, s%d, s%d' % (sT2, sT2, sT1))
    E('s_mul_i32 s%d, s%d, 9363' % (sTb, sT2))
    E('s_lshr_b32 s%d, s%d, 16' % (sTb, sTb))
    E('s_mul_i32 s%d, s%d, 7' % (sT3, sTb))
    E('s_sub_u32 s%d, s%d, s%d' % (sCb, sT2, sT3))
    E('s_lshr_b32 s%d, s%d, 1' % (sKq, sWv))
    E('s_and_b32 s%d, s%d, 1' % (sTh, sWv))
    E('s_lshl_b32 s%d, s%d, 10' % (sM0, sWv))
    E('v_lshrrev_b32 v%d, 3, v0' % vT0)
    E('v_and_b32 v%d, 7, v0' % vT1)
    E('v_lshrrev_b32 v%d, 2, v0' % vT2)
    E('v_and_b32 v%d, 4, v%d' % (vT2, vT2))
    E('v_xor_b32 v%d, v%d, v%d' % (vT1, vT1, vT2))
    E('v_lshlrev_b32 v%d, 4, v%d' % (vT1, vT1))
    E('s_lshl_b32 s%d, s%d, 3' % (sT0, sWv))
    E('v_add_u32 v%d, s%d, v%d' % (vT2, sT0, vT0))
    E('s_movk_i32 s%d, 896' % sT1)
    E('v_mad_u32_u24 v%d, v%d, s%d, v%d' % (vOffW, vT2, sT1, vT1))
    E('v_lshlrev_b32 v%d, 4, v0' % vLane16)
    E('s_lshl_b32 s%d, s%d, 7' % (sT0, sCb))
    for q in range(4):
        E('s_add_u32 s%d, s%d, %d' % (sQ[q], sT0, 448 * 896 * q))
    for q in range(4):
        E('s_add_u32 s%d, s%d, %d' % (sQo[q], sT0, 28 * 4 * 896 * q))
    E('s_lshl_b32 s%d, s%d, 1' % (sT0, sTb))
    E('s_add_u32 s%d, s%d, s%d' % (sT0, sT0, sTh))
    E('s_mul_i32 s%d, s%d, 144' % (sT0, sT0))
    E('s_mul_i32 s%d, s%d, 28' % (sT3, sKq))
    E('s_add_u32 s%d, s%d, s%d' % (sAct, sT0, sT3))
    E('s_lshl_b32 s%d, s%d, 10' % (sAct, sAct))
    E('s_lshl_b32 s%d, s%d, 3' % (sT3, sKq))
    E('s_add_u32 s%d, s%d, s%d' % (sT0, sT0, sT3))
    E('s_add_u32 s%d, s%d, 112' % (sT0, sT0))
    E('s_lshl_b32 s%d, s%d, 10' % (sActO, sT0))
    srd(e, sW2, s.pW2, 1792 * 896)
    srd(e, sWO, s.pWO, 448 * 896)
    srd(e, sOUT, s.pOUT, 2048 * 896)
    E('s_lshr_b32 s%d, s%d, 1' % (sT0, sTb))
    E('s_lshl_b32 s%d, s%d, 11' % (sT0, sT0))
    E('s_add_u32 s%d, s%d, 0x%x' % (sT0, sT0, FLAGS_OFF))
    E('v_lshlrev_b32 v%d, 7, v0' % vPa)
    E('v_add_u32 v%d, s%d, v%d' % (vPa, sT0, vPa))
    E('s_and_b32 s%d, s%d, 3' % (sT0, sWv))
    E('s_lshl_b32 s%d, s%d, 3' % (sT0, sT0))
    E('v_add_u32 v%d, s%d, v%d' % (vT2, sT0, vT0))
    E('v_min_u32 v%d, 27, v%d' % (vT2, vT2))
    E('s_lshr_b32 s%d, s%d, 2' % (sT0, sWv))
    E('s_mul_i32 s%d, s%d, 28' % (sT0, sT0))
    E('v_add_u32 v%d, s%d, v%d' % (vT2, sT0, vT2))
    E('v_mad_u32_u24 v%d, v%d, s%d, v%d' % (vOffWO, vT2, sT1, vT1))
    E('s_lshl_b32 s%d, s%d, 3' % (sT0, sWv))
    E('v_add_u32 v%d, s%d, v%d' % (vT0, sT0, vT0))
    E('v_and_b32 v%d, 7, v0' % vT1)
    E('v_lshlrev_b32 v%d, 4, v%d' % (vXo, vT1))
    E('v_mad_u32_u24 v%d, v%d, s%d, v%d' % (vXo, vT0, sT1, vXo))
    E('s_mul_i32 s%d, s%d, %d' % (sT0, sTb, 64 * 896))
    E('s_lshl_b32 s%d, s%d, 7' % (sT3, sCb))
    E('s_add_u32 s%d, s%d, s%d' % (sOffO, sT0, sT3))
    E('v_mul_u32_u24 v%d, 272, v%d' % (vRedR, vT0))
    E('v_lshl_add_u32 v%d, v%d, 5, v%d' % (vRedR, vT1, vRedR))
    E('v_and_b32 v%d, 31, v0' % vRedW)
    E('s_lshl_b32 s%d, s%d, 5' % (sT0, sTh))
    E('v_add_u32 v%d, s%d, v%d' % (vRedW, sT0, vRedW))
    E('v_mul_u32_u24 v%d, 272, v%d' % (vRedW, vRedW))
    E('s_mul_i32 s%d, s%d, 17408' % (sT0, sKq))
    E('v_add_u32 v%d, s%d, v%d' % (vRedW, sT0, vRedW))
    E('v_lshrrev_b32 v%d, 5, v0' % vT0)
    E('v_lshl_add_u32 v%d, v%d, 4, v%d' % (vRedW, vT0, vRedW))
    E('v_lshlrev_b32 v%d, 9, v%d' % (vT0, vT0))
    E('v_bfe_u32 v%d, v0, 2, 2' % vT1)
    E('v_lshl_add_u32 v%d, v%d, 7, v%d' % (vT0, vT1, vT0))
    E('v_bfe_u32 v%d, v0, 4, 1' % vT1)
    E('v_lshl_add_u32 v%d, v%d, 5, v%d' % (vT0, vT1, vT0))
    E('v_and_b32 v%d, 3, v0' % vT1)
    E('v_lshl_add_u32 v%d, v%d, 3, v%d' % (vT0, vT1, vT0))
    E('v_bfe_u32 v%d, v0, 3, 1' % vT1)
    E('v_lshl_add_u32 v%d, v%d, 6, v%d' % (vT0, vT1, vT0))
    E('s_lshl_b32 s%d, s%d, 13' % (sT0, sKq))
    E('v_add_u32 v%d, s%d, v%d' % (vTr[0][0], sT0, vT0))
    E('v_xor_b32 v%d, 64, v%d' % (vTr[0][1], vTr[0][0]))
    for b in (1, 2):
        for ct in range(2):
            E('v_add_u32 v%d, 0x%x, v%d' % (vTr[b][ct], 65536 * b, vTr[0][ct]))

    def issue_w(st):
        slot = (st % NS) * 32768
        for q in range(4):
            E('s_add_u32 m0, s%d, %d' % (sM0, slot + q * 8192))
            if st < 7:
                E('buffer_load_dwordx4 v%d, s[%d:%d], s%d offen lds' % (vOffW, sW2, sW2 + 3, sQ[q]), tag=('w2', st, q))
                if st < 6:
                    E('s_add_u32 s%d, s%d, %d' % (sQ[q], sQ[q], 64 * 896))
            else:
                E('buffer_load_dwordx4 v%d, s[%d:%d], s%d offen lds' % (vOffWO, sWO, sWO + 3, sQo[q]), tag=('w2', st, q))
                if st == 7:
                    E('s_add_u32 s%d, s%d, %d' % (sQo[q], sQo[q], 56 * 896))

    def issue_a(st):
        so = sAct if st < 7 else sActO
        for k in range(4):
            r = act + 16 * st + 4 * k
            E('buffer_load_dwordx4 v[%d:%d], v%d, s[%d:%d], s%d offen offset:%d' % (r, r + 3, vLane16, sWS, sWS + 3, so, k * 1024))
        if st < 6 or st == 7:
            E('s_add_u32 s%d, s%d, 4096' % (so, so))

    e.emit(Drain(['vm', 'lgkm']))
    stamp('acked')
    E('s_barrier')
    s.publish(0, (vT0, vT1))
    E('s_cmp_lg_u32 s%d, 0' % sIdle)
    E('s_cbranch_scc1 %s_end' % label)
    s.poll_wait(vPa, vPv, 0xff00)
    stamp('polled')
    for st in range(NS):
        issue_w(st)
    E('s_barrier')
    for st in range(7):
        issue_a(st)
    E('buffer_load_dwordx4 v[%d:%d], v%d, s[%d:%d], s%d offen' % (vXr, vXr + 3, vXo, sX, sX + 3, sOffO))

    for st in range(9):
        e.emit(WaitTag([('w2', st, 3)]))
        if st == 5:
            s.poll_wait(vPa, vPv, 0x00ff)
        if st in (0, 1, 4, 5, 8): stamp('bar%d' % st)
        E('s_barrier')
        if st == 5:
            issue_a(7)
            issue_a(8)
        if st >= 1 and st + NS - 1 < 9:
            issue_w(st + NS - 1)
        slot = (st % NS) * 32768
        def rd(k):
            b = wf + (k % 2) * 8
            out = []
            for ct in range(2):
                for sec in range(2):
                    r = b + ct * 4 + sec * 2
                    out.append('ds_read_b64_tr_b16 v[%d:%d], v%d offset:%d' % (r, r + 1, vTr[slot // 65536][ct], (slot % 65536) + k * 2048 + sec * 1024))
            return out
        for t in rd(0): E(t)
        for k in range(4):
            if k < 3:
                for t in rd(k + 1): E(t)
            b = wf + (k % 2) * 8
            a = act + 16 * st + 4 * k
            for ct in range(2):
                c = acc + 16 * ct
                src = '0' if (st == 0 and k == 0) else 'v[%d:%d]' % (c, c + 15)
                E('v_mfma_f32_32x32x16_bf16 v[%d:%d], v[%d:%d], v[%d:%d], %s' % (c, c + 15, b + 4 * ct, b + 4 * ct + 3, a, a + 3, src))
    assert NS == 5
    for ct in range(2):
        for g4 in range(4):
            r = acc + 16 * ct + 4 * g4
            E('ds_write_b128 v%d, v[%d:%d] offset:%d' % (vRedW, r, r + 3, 128 * ct + 32 * g4))
    e.emit(Drain(['lgkm']))
    stamp('red')
    E('s_barrier')
    rb = wf
    for q in range(4):
        for hf in range(2):
            r = rb + 8 * q + 4 * hf
            E('ds_read_b128 v[%d:%d], v%d offset:%d' % (r, r + 3, vRedR, 17408 * q + 16 * hf))
    for j in range(8):
        E('v_add_f32 v%d, v%d, v%d' % (rb + j, rb + j, rb + 8 + j))
        E('v_add_f32 v%d, v%d, v%d' % (rb + 16 + j, rb + 16 + j, rb + 24 + j))
    for j in range(8):
        E('v_add_f32 v%d, v%d, v%d' % (rb + j, rb + j, rb + 16 + j))
    E('s_mov_b32 s%d, 0x%x' % (sT0, LN2))
    for p in range(4):
        lo, hi = rb + 8 + 2 * p, rb + 9 + 2 * p
        E('v_lshlrev_b32 v%d, 16, v%d' % (lo, vXr + p))
        E('v_and_b32 v%d, 0xffff0000, v%d' % (hi, vXr + p))
        E('v_fmac_f32 v%d, s%d, v%d' % (lo, sT0, rb + 2 * p))
        E('v_fmac_f32 v%d, s%d, v%d' % (hi, sT0, rb + 2 * p + 1))
        E('v_cvt_pk_bf16_f32 v%d, v%d, v%d' % (rb + 16 + p, lo, hi))
    E('buffer_store_dwordx4 v[%d:%d], v%d, s[%d:%d], s%d offen' % (rb + 16, rb + 19, vXo, sOUT, sOUT + 3, sOffO))
    stamp('end')
    s.vT0 = vT0
    s.prof_store(PROF_OFF)
    return va.next
```

```python
import sys
from common import *
import f1

def build(path, prof=False):
    l1 = KBASE + '_kernel'
    e1, nv1 = f1.gen_fused(l1, prof)
    lines = ['; @launch grid=(256,1,1) block=(512,1,1) lds=163840']
    txt = file_text(lines, [kernel_text(l1, e1.text(), nv1)])
    open(path, 'w').write(txt)
    if prof:
        import json
        json.dump({'ffn': e1.k1.ffn_names, 'attn': e1.k1.attn_names, 'k2': e1.k1.p2_names}, open(path + '.names.json', 'w'))
    print('vgprs', nv1, 'instrs', e1.nins, 'nops', e1.nnop)

if __name__ == '__main__':
    if len(sys.argv) > 1 and sys.argv[1] == 'prof':
        build('prof.s', True)
    else:
        build(sys.argv[1] if len(sys.argv) > 1 else 'fused.s')
```

```python
from common import *

ACT_BYTES = 64 * 144 * 1024
KVP_OFF = 0x1000000
WS_BYTES = KVP_OFF + 8 * 16 * 8192
FLAGS_OFF = 0x1200000
RINGA = 114688
MISC = 155648
M_CS = MISC
M_ST = MISC + 4096
LOG2E = 0x3fb8aa3b


def V(b, n=1):
    return vr(b, n)


PROF = False
import os
XF = set(os.environ.get('XF', '').split(','))
PROF_OFF = 0x2000000


class K1:
    def __init__(self, label):
        self.e = Emitter()
        self.label = label
        self.sX, self.sW, self.sWS, self.sB = 8, 12, 16, 20
        (self.sWv, self.sT, self.sG, self.sRb, self.sJ, self.sM0x, self.sM0w, self.sXoff) = range(24, 32)
        self.sT0, self.sT1, self.sT2, self.sT3 = 32, 33, 34, 35
        self.sWc = [36, 37, 38]
        self.sWs = 39
        self.sSt = 40
        self.sStS = 41
        self.sM = [42, 44, 46]
        self.sMh = 48
        self.sPi = 50
        self.sK = 51
        self.pX, self.pWQKV, self.pWPHI, self.pWO, self.pW1, self.pB1, self.pW2, self.pOUT, self.pDBG, self.pWS = 52, 54, 56, 58, 60, 62, 64, 66, 96, 98
        self.sW2, self.sB2 = 68, 72
        self.sTok, self.sFlagOff = 100, 101
        self.sW2e, self.sWOe = 76, 4
        self.sQ = [86, 87, 88, 89]
        self.sTb, self.sCb, self.sIdle = 3, 94, 95
        self.vOffW2, self.vPfA, self.vPfD = 1, 2, 3
        va = self.va = RegAlloc('v', 1, 256)
        A = va.alloc
        self.xf = A(112, 4)
        self.acc = [A(16, 4), A(16, 4)]
        self.wf = [A(16, 4), A(16, 4)]
        self.vTr = [A() for _ in range(4)]
        self.vOffW = A(); self.vOffS = A()
        self.ones = A(2, 2)
        self.csacc = A(4, 4)
        self.augA = A(4, 4); self.augB = A(4, 4)
        self.vC = A(); self.vCSw = A(); self.vCSr = A(); self.vLane16 = A()
        self.vb1 = [A() for _ in range(4)]
        self.vT0 = A(); self.vT1 = A(); self.vT2 = A(); self.vT3 = A()
        pool = A(24, 4)
        self.pool = pool
        self.sumacc = pool; self.sqacc = pool + 4
        self.vXa = [pool + 8 + i for i in range(4)]
        self.vOffX = [pool + 12, pool + 13]
        self.vSTw = pool + 14; self.vSTr = pool + 15
        self.tE = pool + 16
        self.pk = pool
        self.vTrS = [A(), A()]
        self.vTok = A()
        self.rest = va.next
        self.prof = PROF
        self.nstamp = 0
        self.vProf = 255

    def E(self, text, tag=None):
        self.e.emit(I(text, tag))

    def emit(self, lst):
        self.e.emit(lst)

    def prologue(self):
        E = self.E; s = self
        E('s_load_dwordx8 s[52:59], s[0:1], 0')
        E('s_load_dwordx8 s[60:67], s[0:1], 40')
        E('s_load_dwordx4 s[96:99], s[0:1], 72')
        s.stamp('karg')
        E('s_cmp_ge_u32 s2, 256')
        E('s_cbranch_scc1 %s_end' % s.label)
        E('v_lshrrev_b32 v%d, 6, v0' % s.vT0)
        E('v_and_b32 v0, 63, v0')
        E('v_readfirstlane_b32 s%d, v%d' % (s.sWv, s.vT0))
        E('s_and_b32 s%d, s2, 7' % s.sT0)
        E('s_lshr_b32 s%d, s2, 3' % s.sT1)
        E('s_and_b32 s%d, s%d, 1' % (s.sT2, s.sT0))
        E('s_lshl_b32 s%d, s%d, 3' % (s.sT2, s.sT2))
        E('s_and_b32 s%d, s%d, 7' % (s.sT3, s.sT1))
        E('s_add_u32 s%d, s%d, s%d' % (s.sRb, s.sT2, s.sT3))
        E('s_lshr_b32 s%d, s%d, 1' % (s.sT2, s.sT0))
        E('s_lshl_b32 s%d, s%d, 2' % (s.sT2, s.sT2))
        E('s_lshr_b32 s%d, s%d, 3' % (s.sT3, s.sT1))
        E('s_add_u32 s%d, s%d, s%d' % (s.sJ, s.sT2, s.sT3))
        E('s_lshl_b32 s%d, s%d, 4' % (s.sT2, s.sRb))
        E('s_add_u32 s%d, s%d, s%d' % (s.sT2, s.sT2, s.sJ))
        E('s_lshl_b32 s%d, s%d, 7' % (s.sT2, s.sT2))
        E('s_add_u32 s%d, s%d, 0x%x' % (s.sFlagOff, s.sT2, FLAGS_OFF))
        E('s_mov_b32 s%d, 0' % s.sTok)
        E('s_lshl_b32 s%d, s%d, 11' % (s.sM0x, s.sWv))
        E('s_lshl_b32 s%d, s%d, 10' % (s.sM0w, s.sWv))
        E('s_mul_i32 s%d, s%d, %d' % (s.sXoff, s.sRb, 128 * 896))
        E('v_lshrrev_b32 v%d, 3, v0' % s.vT0)
        E('v_and_b32 v%d, 7, v0' % s.vT1)
        E('v_lshrrev_b32 v%d, 4, v0' % s.vT2)
        E('v_xor_b32 v%d, v%d, v%d' % (s.vT2, s.vT1, s.vT2))
        E('v_lshlrev_b32 v%d, 4, v%d' % (s.vT2, s.vT2))
        E('s_lshl_b32 s%d, s%d, 4' % (s.sT0, s.sWv))
        E('v_add_u32 v%d, s%d, v%d' % (s.vOffX[1], s.sT0, s.vT0))
        E('s_movk_i32 s%d, 896' % s.sT1)
        E('v_mad_u32_u24 v%d, v%d, s%d, v%d' % (s.vOffX[0], s.vOffX[1], s.sT1, s.vT2))
        E('v_xor_b32 v%d, 64, v%d' % (s.vOffX[1], s.vOffX[0]))
        E('v_add_u32 v%d, %d, v%d' % (s.vOffX[1], 8 * 896, s.vOffX[1]))
        E('v_lshrrev_b32 v%d, 2, v0' % s.vT2)
        E('v_and_b32 v%d, 4, v%d' % (s.vT2, s.vT2))
        E('v_xor_b32 v%d, v%d, v%d' % (s.vT1, s.vT1, s.vT2))
        E('s_lshl_b32 s%d, s%d, 3' % (s.sT0, s.sWv))
        E('v_add_u32 v%d, s%d, v%d' % (s.vT0, s.sT0, s.vT0))
        E('s_and_b32 s%d, s%d, 3' % (s.sT, s.sWv))
        E('s_lshr_b32 s%d, s%d, 2' % (s.sG, s.sWv))
        srd(s.e, s.sX, s.pX, 2048 * 896)

    def dma_x(self, c):
        s = self
        for e_ in range(2):
            self.E('s_add_u32 m0, s%d, %d' % (s.sM0x, c * 16384 + e_ * 1024 - c * 128))
            self.E('buffer_load_dwordx4 v%d, s[%d:%d], s%d offen offset:%d lds' % (s.vOffX[e_], s.sX, s.sX + 3, s.sXoff, c * 128), tag=('x', c))

    def dma_w(self, r, c):
        s = self
        out = [I('s_add_u32 m0, s%d, %d' % (s.sM0w, s.wdst(r, c)))]
        if r == 'S':
            out.append(I('buffer_load_dwordx4 v%d, s[%d:%d], s%d offen lds' % (s.vOffS, s.srdW, s.srdW + 3, s.sWs), tag=('w', r, c)))
            out.append(I('s_add_u32 s%d, s%d, %d' % (s.sWs, s.sWs, 128 * s.wstride)))
        else:
            out.append(I('buffer_load_dwordx4 v%d, s[%d:%d], s%d offen lds' % (s.vOffW, s.srdW, s.srdW + 3, s.sWc[r]), tag=('w', r, c)))
            out.append(I('s_add_u32 s%d, s%d, %d' % (s.sWc[r], s.sWc[r], 64 * s.wstride)))
        return out

    def wdst(self, r, c):
        if r == 0: return RINGA + (c % 5) * 8192
        if r == 'S': return RINGA + ((c + 2) % 5) * 8192
        return (r - 1) * 57344 + c * 8192

    def prologue_dma(self):
        self.stamp('predma')
        for c in range(5):
            self.dma_x(c)
            self.emit(self.dma_w(0, c))
        self.dma_x(5)
        self.dma_x(6)
        self.stamp('dma')

    def setup_addrs(self):
        E = self.E; s = self
        E('s_lshl_b32 s%d, s%d, 1' % (s.sPi, s.sG))
        E('s_xor_b32 s%d, s%d, s%d' % (s.sPi, s.sPi, s.sT))
        E('v_lshrrev_b32 v%d, 5, v0' % s.vT0)
        E('s_lshl_b32 s%d, s%d, 1' % (s.sT1, s.sPi))
        E('v_add_u32 v%d, s%d, v%d' % (s.vT1, s.sT1, s.vT0))
        E('v_bfe_u32 v%d, v0, 1, 3' % s.vT2)
        E('v_xor_b32 v%d, v%d, v%d' % (s.vT1, s.vT1, s.vT2))
        E('v_lshlrev_b32 v%d, 4, v%d' % (s.vT1, s.vT1))
        E('v_and_b32 v%d, 31, v0' % s.vT2)
        E('v_lshl_add_u32 v%d, v%d, 7, v%d' % (s.vT1, s.vT2, s.vT1))
        E('s_lshl_b32 s%d, s%d, 12' % (s.sT1, s.sT))
        E('v_add_u32 v%d, s%d, v%d' % (s.vXa[0], s.sT1, s.vT1))
        for q in range(1, 4):
            E('v_xor_b32 v%d, %d, v%d' % (s.vXa[q], q << 5, s.vXa[0]))
        E('v_lshlrev_b32 v%d, 4, v0' % s.vLane16)
        E('s_lshl_b32 s%d, s%d, 10' % (s.sT1, s.sG))
        E('s_add_u32 s%d, s%d, %d' % (s.sT1, s.sT1, M_CS))
        E('v_add_u32 v%d, s%d, v%d' % (s.vCSr, s.sT1, s.vLane16))
        E('s_lshl_b32 s%d, s%d, 2' % (s.sT1, s.sT))
        E('v_add_u32 v%d, s%d, v%d' % (s.vCSw, s.sT1, s.vCSr))
        E('s_lshl_b32 s%d, s%d, 10' % (s.sT1, s.sT))
        E('s_add_u32 s%d, s%d, %d' % (s.sT1, s.sT1, M_ST))
        E('v_lshlrev_b32 v%d, 5, v%d' % (s.vT2, s.vT2))
        E('v_add_u32 v%d, s%d, v%d' % (s.vSTr, s.sT1, s.vT2))
        E('s_lshl_b32 s%d, s%d, 4' % (s.sT1, s.sG))
        E('v_lshl_add_u32 v%d, v%d, 3, v%d' % (s.vSTw, s.vT0, s.vSTr))
        E('v_add_u32 v%d, s%d, v%d' % (s.vSTw, s.sT1, s.vSTw))
        E('v_mov_b32 v%d, 0x3f803f80' % s.ones)
        E('v_mov_b32 v%d, 0x3f803f80' % (s.ones + 1))
        E('v_mov_b32 v%d, 0' % (s.augA + 3))
        E('s_mov_b32 s%d, 0x22222222' % s.sM[0]); E('s_mov_b32 s%d, 0x22222222' % (s.sM[0] + 1))
        E('s_mov_b32 s%d, 0xcccccccc' % s.sM[1]); E('s_mov_b32 s%d, 0xcccccccc' % (s.sM[1] + 1))
        E('s_mov_b32 s%d, 0x88888888' % s.sM[2]); E('s_mov_b32 s%d, 0x88888888' % (s.sM[2] + 1))
        E('s_mov_b32 s%d, 0' % s.sMh); E('s_mov_b32 s%d, -1' % (s.sMh + 1))
        import f2
        f2.p2_early(s)

    def tr_base(self, dst, vcol, spi, base):
        E = self.E; s = self
        E('v_lshrrev_b32 v%d, 5, v0' % s.vT0)
        E('v_lshlrev_b32 v%d, 10, v%d' % (s.vT0, s.vT0))
        E('v_bfe_u32 v%d, v0, 2, 2' % s.vT1)
        E('v_lshl_add_u32 v%d, v%d, 7, v%d' % (s.vT0, s.vT1, s.vT0))
        E('v_lshlrev_b32 v%d, 3, v0' % s.vT1)
        E('v_and_b32 v%d, 64, v%d' % (s.vT1, s.vT1))
        E('v_xor_b32 v%d, v%d, v%d' % (s.vT1, s.vT1, vcol))
        E('v_add_u32 v%d, v%d, v%d' % (s.vT0, s.vT0, s.vT1))
        E('s_lshl_b32 s%d, s%d, 11' % (s.sT1, spi))
        E('s_add_u32 s%d, s%d, %d' % (s.sT1, s.sT1, base))
        E('v_add_u32 v%d, s%d, v%d' % (dst, s.sT1, s.vT0))

    def lane_col(self, dst):
        E = self.E; s = self
        E('v_and_b32 v%d, 3, v0' % dst)
        E('v_lshlrev_b32 v%d, 3, v%d' % (dst, dst))
        E('v_bfe_u32 v%d, v0, 4, 1' % s.vT3)
        E('v_lshl_add_u32 v%d, v%d, 5, v%d' % (dst, s.vT3, dst))

    def rd_w(self, imm, slot, dst):
        s = self
        return [I('ds_read_b64_tr_b16 v[%d:%d], v%d offset:%d' % (dst, dst + 1, s.vTr[slot], imm)),
                I('ds_read_b64_tr_b16 v[%d:%d], v%d offset:%d' % (dst + 2, dst + 3, s.vTr[slot], imm + 512))]

    def rd_x(self, c, slot):
        s = self
        d = s.xf + 16 * c + 4 * slot
        return I('ds_read_b128 v[%d:%d], v%d offset:%d' % (d, d + 3, s.vXa[slot], (c % 4) * 16384))

    def mfma(self, d, a, b, c):
        cs = '0' if c is None else 'v[%d:%d]' % (c, c + 15)
        return I('v_mfma_f32_32x32x16_bf16 v[%d:%d], v[%d:%d], v[%d:%d], %s' % (d, d + 15, a, a + 3, b, b + 3, cs))

    def mfma4(self, d, a, b, first):
        cs = '0' if first else 'v[%d:%d]' % (d, d + 3)
        return I('v_mfma_f32_4x4x4_16b_bf16 v[%d:%d], v[%d:%d], v[%d:%d], %s' % (d, d + 3, a, a + 1, b, b + 1, cs))

    def bump_tr(self, delta, n=4):
        return [I('v_add_u32 v%d, 0x%x, v%d' % (self.vTr[q], delta & 0xffffffff, self.vTr[q])) for q in range(n)]

    def chunk_reads(self, r, c):
        s = self
        buf = s.wf[(7 * r + c) % 2]
        if r == 0:
            imm = (c % 5) * 8192
        else:
            imm = c * 8192
        out = []
        for q in range(4):
            if r == 0:
                out.append(s.rd_x(c, q))
            out += s.rd_w(imm, q, buf + 4 * q)
        return out

    def chunk_mfmas(self, r, c, swap=False):
        s = self
        buf = s.wf[(7 * r + c) % 2]
        acc = s.acc[r % 2]
        out = []
        for q in range(4):
            x = s.xf + 16 * c + 4 * q
            w = buf + 4 * q
            cs = None if (c == 0 and q == 0) else acc
            out.append(s.mfma(acc, x, w, cs) if swap else s.mfma(acc, w, x, cs))
            ex = []
            if r == 0 and q < 2:
                f = (c == 0 and q == 0)
                ex = [s.mfma4(s.sumacc, s.ones, x, f), s.mfma4(s.sqacc, x, x, f),
                      s.mfma4(s.sumacc, s.ones, x + 2, False), s.mfma4(s.sqacc, x + 2, x + 2, False)]
            if q == 0:
                c0 = s.mfma4(s.csacc, s.ones, w, c == 0)
                c1 = s.mfma4(s.csacc, s.ones, w + 2, False)
                if ex:
                    ex = [ex[0], c0, ex[1], ex[2], c1, ex[3]]
                else:
                    ex = [c0]
                    out.append(c0)
                    ex = []
                    out.append(('later', c1))
            out += ex
        res = []
        pend = []
        for it in out:
            if isinstance(it, tuple):
                pend.append(it[1])
            else:
                res.append(it)
                if pend and it.passes == 8:
                    res += pend
                    pend = []
        res += pend
        if 'nom4' in XF:
            res = [x for x in res if x.passes != 2]
        if 'nostat' in XF and r == 0:
            res = [x for x in res if not (x.passes == 2 and x.mf[0][0][1] != s.csacc)]
        return res

    def merge(self, main, side):
        return interleave(main, side)

    def stamp(self, name=''):
        if not self.prof:
            return
        i = self.nstamp
        self.nstamp += 1
        self.names = getattr(self, 'names', []) + [name]
        self.E(('s_memtime' if 'cyc' in XF else 's_memrealtime') + ' s[90:91]')
        self.e.emit(Drain(['lgkm']))
        self.E('s_nop 3')
        self.E('v_writelane_b32 v%d, s90, %d' % (self.vProf, i))

    def prof_store(self, base):
        if not self.prof:
            return
        E = self.E
        if 'twice' in XF:
            R = self.R
            R('s_waitcnt vmcnt(0) lgkmcnt(0)')
            R('s_barrier')
            R('v_readlane_b32 s80, v255, 63')
            R('s_nop 3')
            R('s_cmp_lg_u32 s80, 0')
            R('s_cbranch_scc1 %s_fin' % self.label)
            R('v_writelane_b32 v255, 1, 63')
            R('s_lshl_b32 s80, s%d, 6' % self.sWv)
            R('v_add_u32 v0, s80, v0')
            R('s_nop 7')
            R('s_branch %s_again' % self.label)
            self.L('%s_fin' % self.label)
        E('s_lshl_b32 s92, s2, 3')
        E('s_add_u32 s92, s92, s%d' % self.sWv)
        E('s_lshl_b32 s92, s92, 8')
        E('s_add_u32 s92, s92, 0x%x' % base)
        E('v_lshlrev_b32 v%d, 2, v0' % self.vT0)
        E('s_mov_b32 s%d, 0x%x' % (self.sWS + 2, 0x4000000))
        E('buffer_store_dword v%d, v%d, s[%d:%d], s92 offen' % (self.vProf, self.vT0, self.sWS, self.sWS + 3))


    def R(self, text):
        self.e._raw(text)

    def L(self, name):
        self.e.out.append(name + ':')

    def uid(self, base):
        self._uid = getattr(self, '_uid', 0) + 1
        return '%s_%s%d' % (self.label, base, self._uid)

    def tok_write(self):
        s = self; R = s.R
        lab = s.uid('tw')
        s.e.emit(Fence())
        R('s_or_b32 s80, s2, s%d' % s.sWv)
        R('s_cbranch_scc1 %s' % lab)
        if 'twice' in XF and s.prof:
            R('v_readlane_b32 s80, v255, 63')
            R('s_nop 3')
            R('s_cmp_lg_u32 s80, 0')
            R('s_cbranch_scc1 %s' % lab)
        R('s_memrealtime s[80:81]')
        R('v_mov_b32 v%d, 0' % s.vT3)
        R('s_waitcnt lgkmcnt(0)')
        R('s_or_b32 s80, s80, 1')
        R('v_mov_b32 v%d, s80' % s.vTok)
        R('s_mov_b64 exec, 1')
        R('global_store_dword v%d, v%d, s[%d:%d] sc1' % (s.vT3, s.vTok, s.pDBG, s.pDBG + 1))
        R('s_mov_b64 exec, -1')
        R('s_nop 1')
        s.L(lab)

    def tok_load(self):
        s = self; R = s.R
        lab = s.uid('tl')
        s.e.emit(Fence())
        R('s_cmp_lg_u32 s%d, 0' % s.sWv)
        R('s_cbranch_scc1 %s' % lab)
        R('v_mov_b32 v%d, 0' % s.vTok)
        R('s_mov_b64 exec, 1')
        R('global_load_dword v%d, v%d, s[%d:%d] sc1' % (s.vTok, s.vTok, s.pDBG, s.pDBG + 1))
        R('s_mov_b64 exec, -1')
        s.L(lab)
        s.tok_mark = s.e.stats.get('vmem', 0)

    def tok_resolve(self):
        s = self; R = s.R
        lab = s.uid('tr')
        k = s.e.stats.get('vmem', 0) - s.tok_mark
        s.e.emit(Fence())
        R('s_cmp_lg_u32 s%d, 0' % s.sWv)
        R('s_cbranch_scc1 %s' % lab)
        R('s_waitcnt vmcnt(%d)' % k)
        R('v_readfirstlane_b32 s%d, v%d' % (s.sTok, s.vTok))
        R('s_nop 3')
        s.L(lab)

    def publish(self, word, vt):
        s = self; R = s.R
        skip = s.uid('pb'); got = s.uid('pg'); lp = s.uid('pl')
        s.e.emit(Fence())
        R('s_cmp_lg_u32 s%d, 0' % s.sWv)
        R('s_cbranch_scc1 %s' % skip)
        R('s_cmp_lg_u32 s%d, 0' % s.sTok)
        R('s_cbranch_scc1 %s' % got)
        R('s_waitcnt vmcnt(0)')
        R('s_mov_b32 s80, 0')
        s.L(lp)
        R('v_readfirstlane_b32 s%d, v%d' % (s.sTok, s.vTok))
        R('s_add_u32 s80, s80, 1')
        R('s_cmp_lg_u32 s%d, 0' % s.sTok)
        R('s_cbranch_scc1 %s' % got)
        R('v_mov_b32 v%d, 0' % s.vTok)
        R('global_load_dword v%d, v%d, s[%d:%d] sc1' % (s.vTok, s.vTok, s.pDBG, s.pDBG + 1))
        R('s_waitcnt vmcnt(0)')
        R('s_cmp_lt_u32 s80, 0x1000')
        R('s_cbranch_scc1 %s' % lp)
        R('s_mov_b32 s%d, 1' % s.sTok)
        s.L(got)
        R('v_mov_b32 v%d, s%d' % (vt[0], s.sFlagOff))
        R('v_mov_b32 v%d, s%d' % (vt[1], s.sTok))
        R('s_mov_b64 exec, 1')
        R('global_store_dword v%d, v%d, s[%d:%d] offset:%d sc1' % (vt[0], vt[1], s.pWS, s.pWS + 1, 4 * word))
        R('s_mov_b64 exec, -1')
        R('s_nop 1')
        s.L(skip)

    def poll_issue(self, va, vv):
        s = self; R = s.R
        skip = s.uid('pi')
        s.e.emit(Fence())
        R('s_cmp_lg_u32 s%d, 0' % s.sWv)
        R('s_cbranch_scc1 %s' % skip)
        R('s_mov_b64 exec, 0xffff')
        R('global_load_dword v%d, v%d, s[%d:%d] sc1' % (vv, va, s.pWS, s.pWS + 1))
        R('s_mov_b64 exec, -1')
        s.L(skip)

    def poll_wait(self, va, vv, mask, issued=False, later=0):
        s = self; R = s.R
        skip = s.uid('pw'); lp = s.uid('pwl'); chk = s.uid('pwc'); done = s.uid('pwd')
        s.e.emit(Fence())
        R('s_cmp_lg_u32 s%d, 0' % s.sWv)
        R('s_cbranch_scc1 %s' % skip)
        R('s_mov_b64 exec, 0xffff')
        R('s_mov_b32 s80, 0')
        if issued:
            R('s_waitcnt vmcnt(%d)' % later)
            R('s_branch %s' % chk)
        s.L(lp)
        R('global_load_dword v%d, v%d, s[%d:%d] sc1' % (vv, va, s.pWS, s.pWS + 1))
        R('s_waitcnt vmcnt(0)')
        s.L(chk)
        R('s_add_u32 s80, s80, 1')
        R('v_cmp_eq_u32 vcc, s%d, v%d' % (s.sTok, vv))
        R('s_and_b32 s82, vcc_lo, 0x%x' % mask)
        R('s_cmp_eq_u32 s82, 0x%x' % mask)
        R('s_cbranch_scc1 %s' % done)
        R('s_cmp_lt_u32 s80, 0x1000')
        R('s_cbranch_scc1 %s' % lp)
        s.L(done)
        R('s_mov_b64 exec, -1')
        s.L(skip)

    def barrier(self, tags, drain='lgkm', name=''):
        if tags:
            self.e.emit(WaitTag(tags))
        self.e.emit(Drain([drain]))
        if name:
            self.stamp(name)
        self.E('s_barrier')

    def stats_write(self):
        s = self
        q = s.sqacc
        return [I('v_cndmask_b32 v%d, v%d, v%d, s[%d:%d]' % (q, q, q + 1, s.sM[0], s.sM[0] + 1)),
                I('v_cndmask_b32 v%d, v%d, v%d, s[%d:%d]' % (q + 2, q + 2, q + 3, s.sM[2], s.sM[2] + 1)),
                I('v_cndmask_b32 v%d, v%d, v%d, s[%d:%d]' % (s.sumacc + 1, q, q + 2, s.sM[1], s.sM[1] + 1)),
                I('ds_write_b64 v%d, v[%d:%d]' % (s.vSTw, s.sumacc, s.sumacc + 1))]

    def cs_write(self, r):
        s = self
        return [I('ds_write_b32 v%d, v%d offset:%d' % (s.vCSw, s.csacc, (r % 2) * 2048))]

    def stats_read(self, t):
        s = self
        o = []
        o.append(I('ds_read_b128 v[%d:%d], v%d' % (t, t + 3, s.vSTr)))
        o.append(I('ds_read_b128 v[%d:%d], v%d offset:16' % (t + 4, t + 7, s.vSTr)))
        o.append(I('v_add_f32 v%d, v%d, v%d' % (t, t, t + 2)))
        o.append(I('v_add_f32 v%d, v%d, v%d' % (t + 4, t + 4, t + 6)))
        o.append(I('v_add_f32 v%d, v%d, v%d' % (t + 1, t + 1, t + 3)))
        o.append(I('v_add_f32 v%d, v%d, v%d' % (t + 5, t + 5, t + 7)))
        o.append(I('v_add_f32 v%d, v%d, v%d' % (t, t, t + 4)))
        o.append(I('v_add_f32 v%d, v%d, v%d' % (t + 1, t + 1, t + 5)))
        o.append(I('v_mul_f32 v%d, 0x%x, v%d' % (t, f2u(1.0 / 448), t)))
        o.append(I('v_mul_f32 v%d, v%d, v%d' % (t + 2, t, t)))
        o.append(I('v_fma_f32 v%d, v%d, s%d, -v%d' % (t + 1, t + 1, s.sK, t + 2)))
        o.append(I('v_max_f32 v%d, 0, v%d' % (t + 1, t + 1)))
        o.append(I('v_add_f32 v%d, 0x%x, v%d' % (t + 1, f2u(1e-5), t + 1)))
        o.append(I('v_rsq_f32 v%d, v%d' % (t + 7, t + 1)))
        o.append(I('v_cvt_pk_bf16_f32 v%d, v%d, v%d' % (t + 2, t, t)))
        o.append(I('v_and_b32 v%d, 0xffff0000, v%d' % (t + 2, t + 2)))
        o.append(I('v_sub_f32 v%d, v%d, v%d' % (t + 2, t, t + 2)))
        o.append(I('v_cvt_pk_bf16_f32 v%d, v%d, v%d' % (s.augB, t, t + 2)))
        o.append(I('v_mul_f32 v%d, v%d, v%d' % (t + 1, t + 1, t + 7)))
        o.append(I('v_mul_f32 v%d, 0x%x, v%d' % (s.vC, LOG2E, t + 7)))
        o.append(I('v_cndmask_b32 v%d, v%d, 0, s[%d:%d]' % (t + 1, t + 1, s.sMh, s.sMh + 1)))
        o.append(I('v_cvt_pk_bf16_f32 v%d, v%d, v%d' % (t + 3, t + 1, t + 1)))
        o.append(I('v_and_b32 v%d, 0xffff0000, v%d' % (t + 3, t + 3)))
        o.append(I('v_sub_f32 v%d, v%d, v%d' % (t + 3, t + 1, t + 3)))
        o.append(I('v_cvt_pk_bf16_f32 v%d, v%d, v%d' % (s.augB + 1, t, t + 1)))
        o.append(I('v_cvt_pk_bf16_f32 v%d, v%d, 0' % (s.augB + 2, t + 3)))
        o.append(I('v_mov_b32 v%d, 0' % (s.augB + 3)))
        return o

    def aug_col(self, cs, b1, t, half=False):
        s = self
        o = []
        o.append(I('v_cvt_pk_bf16_f32 v%d, -v%d, -v%d' % (s.augA, cs, cs)))
        o.append(I('v_lshlrev_b32 v%d, 16, v%d' % (t + 1, b1)))
        o.append(I('v_and_b32 v%d, 0xffff0000, v%d' % (t, s.augA)))
        o.append(I('v_add_f32 v%d, v%d, v%d' % (t, cs, t)))
        if half:
            o.append(I('v_mul_f32 v%d, 0.5, v%d' % (t + 1, t + 1)))
        o.append(I('v_cvt_pk_bf16_f32 v%d, -v%d, v%d' % (s.augA + 1, t, t + 1)))
        if half:
            o.append(I('v_lshrrev_b32 v%d, 16, v%d' % (s.augA + 2, t + 1)))
        else:
            o.append(I('v_mov_b32 v%d, v%d' % (s.augA + 2, b1)))
        return o

    def cs_read(self, r, t):
        s = self
        return [I('ds_read_b128 v[%d:%d], v%d offset:%d' % (t, t + 3, s.vCSr, (r % 2) * 2048)),
                I('v_add_f32 v%d, v%d, v%d' % (t, t, t + 1)),
                I('v_add_f32 v%d, v%d, v%d' % (t + 2, t + 2, t + 3)),
                I('v_add_f32 v%d, v%d, v%d' % (t, t, t + 2))]

    def mish(self, src, n, t, pk, stores):
        s = self
        o = []
        G = 4
        for g0 in range(0, n, G):
            a = [src + g0 + i for i in range(G)]
            u = [t + i for i in range(G)]
            w = [t + G + i for i in range(G)]
            for i in range(G): o.append(I('v_mul_f32 v%d, v%d, v%d' % (a[i], a[i], s.vC)))
            for i in range(G): o.append(I('v_exp_f32 v%d, v%d' % (u[i], a[i])))
            for i in range(G): o.append(I('v_fma_f32 v%d, v%d, -0.5, -1.0' % (w[i], u[i])))
            for i in range(G): o.append(I('v_fma_f32 v%d, v%d, v%d, -1.0' % (u[i], u[i], w[i])))
            for i in range(G): o.append(I('v_rcp_f32 v%d, v%d' % (u[i], u[i])))
            for i in range(G): o.append(I('v_fmac_f32 v%d, v%d, v%d' % (a[i], a[i], u[i])))
            for i in range(0, G, 2):
                o.append(I('v_cvt_pk_bf16_f32 v%d, v%d, v%d' % (pk + (g0 + i) // 2, a[i], a[i + 1])))
            if (g0 + G) in stores:
                o += stores[g0 + G]
        return o


import struct
def f2u(x):
    return struct.unpack('<I', struct.pack('<f', x))[0]


def rm(reads, mf, lead=3):
    if not mf:
        return list(reads)
    big = [i for i, m in enumerate(mf) if m.passes == 8]
    out = list(reads[:lead])
    rest = list(reads[lead:])
    n = len(mf)
    return out + interleave(mf, rest, 0, max(1, n - 1))


def round0(s, sched, extra_wait6, swap=False):
    for st in range(7):
        tags = [('x', st), ('w', 0, st)]
        if st == 6:
            tags += extra_wait6
        if st == 0: s.stamp('setup')
        s.barrier(tags, name=({0: 'c0', 1: 'c1', 3: 'c3', 6: 'c6'}.get(st, '')))
        pre = []
        for (r, c) in sched.get(st, []):
            pre += s.dma_w(r, c)
        if st == 4:
            pre = [I('v_add_u32 v%d, 0x10000, v%d' % (s.vXa[q], s.vXa[q])) for q in range(4)] + pre
        reads = s.chunk_reads(0, st)
        mf = s.chunk_mfmas(0, st - 1, swap) if st > 0 else []
        if st == 4:
            s.emit(pre[:4]); pre = pre[4:]
        s.emit(reads[:3])
        s.emit(pre)
        s.emit(rm(reads[3:], mf, lead=2))


def ffn_path(s):
    import f2
    E = s.E
    s.srdW = s.sW; s.wstride = 3584
    srd(s.e, s.sW, s.pW1, 448 * 3584)
    E('s_sub_u32 s%d, s%d, 8' % (s.sJ, s.sJ))
    E('s_mul_i32 s%d, s%d, 7' % (s.sT0, s.sJ))
    E('s_and_b32 s%d, s%d, 1' % (s.sT1, s.sJ))
    E('s_add_u32 s%d, s%d, s%d' % (s.sT2, s.sT0, s.sT1))
    E('s_lshl_b32 s%d, s%d, 6' % (s.sWc[0], s.sT2))
    E('s_add_u32 s%d, s%d, 128' % (s.sWc[1], s.sWc[0]))
    E('s_add_u32 s%d, s%d, 256' % (s.sWc[2], s.sWc[0]))
    E('s_movk_i32 s%d, 3584' % s.sK)
    E('v_lshlrev_b32 v%d, 4, v%d' % (s.vT2, s.vT1))
    E('v_mad_u32_u24 v%d, v%d, s%d, v%d' % (s.vOffW, s.vT0, s.sK, s.vT2))
    s.prologue_dma()
    E('s_mul_i32 s%d, s%d, 6' % (s.sT1, s.sT1))
    E('s_sub_u32 s%d, s%d, s%d' % (s.sT0, s.sT0, s.sT1))
    E('s_add_u32 s%d, s%d, 6' % (s.sT0, s.sT0))
    E('s_lshl_b32 s%d, s%d, 6' % (s.sWs, s.sT0))
    E('s_lshl_b32 s%d, s%d, 5' % (s.sT1, s.sG))
    E('v_add_u32 v%d, s%d, v%d' % (s.vT0, s.sT1, s.vT0))
    E('v_lshrrev_b32 v%d, 2, v%d' % (s.vT2, s.vT1))
    E('v_lshl_add_u32 v%d, v%d, 5, v%d' % (s.vT0, s.vT2, s.vT0))
    E('v_and_b32 v%d, 3, v%d' % (s.vT2, s.vT1))
    E('v_lshlrev_b32 v%d, 4, v%d' % (s.vT2, s.vT2))
    E('v_mad_u32_u24 v%d, v%d, s%d, v%d' % (s.vOffS, s.vT0, s.sK, s.vT2))
    srd(s.e, s.sB, s.pB1, 1792 * 2)
    E('v_and_b32 v%d, 31, v0' % s.vT2)
    E('v_lshlrev_b32 v%d, 1, v%d' % (s.vT2, s.vT2))
    E('s_add_u32 s%d, s%d, s%d' % (s.sT2, s.sT2, s.sG))
    E('s_lshl_b32 s%d, s%d, 6' % (s.sT1, s.sT2))
    for r in range(3):
        E('buffer_load_ushort v%d, v%d, s[%d:%d], s%d offen offset:%d' % (s.vb1[r], s.vT2, s.sB, s.sB + 3, s.sT1, 128 * r))
    E('buffer_load_ushort v%d, v%d, s[%d:%d], s%d offen' % (s.vb1[3], s.vT2, s.sB, s.sB + 3, s.sWs))
    E('s_lshl_b32 s%d, s%d, 2' % (s.sT1, s.sRb))
    E('s_add_u32 s%d, s%d, s%d' % (s.sT1, s.sT1, s.sT))
    E('s_mul_i32 s%d, s%d, 144' % (s.sT1, s.sT1))
    E('s_lshl_b32 s%d, s%d, 1' % (s.sT2, s.sT2))
    E('s_add_u32 s%d, s%d, s%d' % (s.sSt, s.sT1, s.sT2))
    E('s_lshl_b32 s%d, s%d, 10' % (s.sSt, s.sSt))
    E('s_lshl_b32 s%d, s%d, 1' % (s.sT0, s.sT0))
    E('s_add_u32 s%d, s%d, s%d' % (s.sT0, s.sT0, s.sG))
    E('s_add_u32 s%d, s%d, s%d' % (s.sStS, s.sT1, s.sT0))
    E('s_lshl_b32 s%d, s%d, 10' % (s.sStS, s.sStS))
    srd(s.e, s.sWS, s.pWS, WS_BYTES)
    s.setup_addrs()
    s.lane_col(s.vT2)
    E('s_lshl_b32 s%d, s%d, 6' % (s.sT0, s.sG))
    E('v_add_u32 v%d, s%d, v%d' % (s.vTrS[1], s.sT0, s.vT2))
    s.tr_base(s.vTr[0], s.vTrS[1], s.sPi, RINGA)
    for q in range(1, 4):
        E('v_xor_b32 v%d, %d, v%d' % (s.vTr[q], q << 11, s.vTr[0]))
    E('s_lshr_b32 s%d, s%d, 1' % (s.sT0, s.sPi))
    E('s_lshl_b32 s%d, s%d, 6' % (s.sT0, s.sT0))
    E('v_add_u32 v%d, s%d, v%d' % (s.vTrS[1], s.sT0, s.vT2))
    E('s_and_b32 s%d, s%d, 1' % (s.sT0, s.sT))
    s.tr_base(s.vTrS[0], s.vTrS[1], s.sT0, RINGA)
    E('v_xor_b32 v%d, %d, v%d' % (s.vTrS[1], 1 << 11, s.vTrS[0]))
    E('s_mov_b32 s%d, 0x%x' % (s.sK, f2u(1.0 / 448)))

    sched = {1: [(0, 5), (1, 0), (1, 1)], 2: [(0, 6), (1, 2), (1, 3)], 3: [(1, 4), (1, 5), ('S', 0)],
             4: [(1, 6), (2, 0), ('S', 1)], 5: [(2, 1), (2, 2), ('S', 2)], 6: [(2, 3), (2, 4), ('S', 3)]}
    round0(s, sched, [('w', 1, c) for c in range(2)])
    s.emit(s.bump_tr(-RINGA))
    s.emit(rm(s.chunk_reads(1, 0), s.chunk_mfmas(0, 6)))
    s.emit(s.stats_write() + s.cs_write(0))
    s.emit(rm(s.chunk_reads(1, 1), s.chunk_mfmas(1, 0)))

    def s_reads(u):
        buf = s.wf[(21 + u) % 2]
        out = []
        for ci in (2 * u, 2 * u + 1):
            if ci > 6: continue
            for rho in range(2):
                d = buf + 4 * (2 * (ci % 2) + rho)
                imm = ((u + 2) % 5) * 8192 + (ci % 2) * 4096
                out.append(I('ds_read_b64_tr_b16 v[%d:%d], v%d offset:%d' % (d, d + 1, s.vTrS[rho], imm)))
                out.append(I('ds_read_b64_tr_b16 v[%d:%d], v%d offset:%d' % (d + 2, d + 3, s.vTrS[rho], imm + 512)))
        return out

    def s_mfmas(u):
        buf = s.wf[(21 + u) % 2]
        acc = s.acc[1]
        out = []
        for ci in (2 * u, 2 * u + 1):
            if ci > 6: continue
            for rho in range(2):
                w = buf + 4 * (2 * (ci % 2) + rho)
                x = s.xf + 16 * ci + 4 * rho
                first = (ci == 0 and rho == 0)
                out.append(s.mfma4(s.csacc, s.ones, w, first))
                out.append(s.mfma(acc, w, x, None if first else acc))
                out.append(s.mfma4(s.csacc, s.ones, w + 2, False))
        return out

    for r in (1, 2, 3):
        if r == 1:
            s.barrier([('w', 1, c) for c in range(7)] + [('w', 2, 0), ('w', 2, 1)], 'ldsw', name='R1')
            pre = s.dma_w(2, 5) + s.dma_w(2, 6)
            pre2 = lambda: f2.p2_l2warm(s)
        elif r == 2:
            s.barrier([('w', 2, c) for c in range(7)] + [('w', 'S', c) for c in range(4)], 'ldsw', name='R2')
            s.tok_load()
            pre = []
        else:
            s.barrier([], 'ldsw', name='R3')
            s.tok_resolve()
            pre = f2.p2_issue_w(s, 0) + f2.p2_issue_w(s, 1)
        p = r - 1
        t = s.tE
        side = []
        if r == 1:
            side += s.stats_read(t)
        side += s.cs_read(p, t)
        side += s.aug_col(t, s.vb1[p], t + 2)
        accp = s.acc[p % 2]
        side.append(s.mfma(accp, s.augA, s.augB, accp))
        st = []
        for kk in range(2):
            ins = [I('buffer_store_dwordx4 v[%d:%d], v%d, s[%d:%d], s%d offen offset:%d sc1' % (s.pk + 4 * kk, s.pk + 4 * kk + 3, s.vLane16, s.sWS, s.sWS + 3, s.sSt, 1024 * kk))]
            if kk == 1 and p < 2:
                ins.append(I('s_add_u32 s%d, s%d, 4096' % (s.sSt, s.sSt)))
            st.append(ins)
        side += s.mish(accp, 16, t, s.pk, {8: st[0], 16: st[1]})
        if 'noside' in XF:
            side = st[0] + st[1]
        if 'noaug' in XF:
            side = s.mish(accp, 16, t, s.pk, {8: st[0], 16: st[1]})
        main = []
        if r < 3:
            for c in range(1, 7):
                if c < 6:
                    rds = s.chunk_reads(r, c + 1)
                elif r == 1:
                    rds = s.bump_tr(57344) + s.chunk_reads(2, 0)
                else:
                    rds = s_reads(0)
                main += rm(rds, s.chunk_mfmas(r, c), lead=(3 if not (c == 6 and r == 1) else 7))
        else:
            for u in range(1, 4):
                rds = s_reads(u + 1) if u < 3 else []
                main += rm(rds, s_mfmas(u))
        s.emit(pre)
        if r == 1:
            pre2()
        s.emit(interleave(main, side, 0, len(main) - 4))
        if r < 3:
            s.emit(s.cs_write(r))
            if r == 1:
                s.emit(rm(s.chunk_reads(2, 1), s.chunk_mfmas(2, 0)))
            else:
                s.emit(rm(s_reads(1), s_mfmas(0)))
    t = s.tE
    s.emit(s.aug_col(s.csacc, s.vb1[3], t, half=True))
    acc = s.acc[1]
    s.emit(s.mfma(acc, s.augA, s.augB, acc))
    E('s_lshl_b32 s%d, s%d, 12' % (s.sT0, s.sWv))
    E('v_add_u32 v%d, s%d, v%d' % (s.vT0, s.sT0, s.vLane16))
    E('s_lshl_b32 s%d, s%d, 12' % (s.sT0, s.sT))
    E('s_lshl_b32 s%d, s%d, 11' % (s.sT1, s.sG))
    E('s_add_u32 s%d, s%d, s%d' % (s.sT0, s.sT0, s.sT1))
    E('v_add_u32 v%d, s%d, v%d' % (s.vT1, s.sT0, s.vLane16))
    for q in range(4):
        E('ds_write_b128 v%d, v[%d:%d] offset:%d' % (s.vT0, acc + 4 * q, acc + 4 * q + 3, 1024 * q))
    s.barrier([], 'lgkm', name='XCH')
    s.emit(f2.p2_issue_w(s, 2))
    a0 = s.acc[0]
    for gp in range(2):
        for q in range(2):
            d = a0 + 8 * gp + 4 * q
            E('ds_read_b128 v[%d:%d], v%d offset:%d' % (d, d + 3, s.vT1, 16384 * gp + 1024 * q))
    for i in range(8):
        E('v_add_f32 v%d, v%d, v%d' % (a0 + i, a0 + i, a0 + 8 + i))
    st = [I('buffer_store_dwordx4 v[%d:%d], v%d, s[%d:%d], s%d offen sc1' % (s.pk, s.pk + 3, s.vLane16, s.sWS, s.sWS + 3, s.sStS))]
    s.emit(s.mish(a0, 8, t, s.pk, {8: st}))
    s.emit(f2.p2_issue_w(s, 3))


def gen_fused(label, prof=False):
    import f1, f1_attn, f2
    f1.PROF = prof
    globals()['PROF'] = prof
    s = K1(label)
    if prof:
        s.E('v_mov_b32 v255, 0')
        s.E(('s_memtime' if 'cyc' in XF else 's_memrealtime') + ' s[90:91]')
        s.e.emit(Drain(['lgkm']))
        s.E('v_writelane_b32 v255, s90, 0')
        s.nstamp = 1
        s.names = ['start']
        if 'twice' in XF:
            s.e.out.pop(); s.e.out.pop(); s.e.out.pop()
            s.e.out.append('%s_again:' % label)
            s.e._raw('s_memrealtime s[90:91]')
            s.e._raw('s_waitcnt lgkmcnt(0)')
            s.e._raw('s_nop 3')
            s.e._raw('v_writelane_b32 v255, s90, 0')
    s.prologue()
    s.E('s_cmp_lt_u32 s%d, 8' % s.sJ)
    s.E('s_cbranch_scc1 %s_attn' % label)
    s.e.emit(Fence())
    save = (list(s.e.lg), list(s.e.vm))
    ns = s.nstamp
    nm = list(getattr(s, 'names', []))
    ffn_path(s)
    s.stamp('end')
    s.ffn_names = list(getattr(s, 'names', []))
    s.e.emit(Fence())
    s.E('s_branch %s_p2' % label)
    s.e.out.append('%s_attn:' % label)
    s.e.lg, s.e.vm = save
    s.e.hist = []
    s.nstamp = ns
    s.names = nm
    f1_attn.attn_path(s)
    s.stamp('end')
    s.attn_names = list(getattr(s, 'names', []))
    s.e.emit(Fence())
    nv1 = s.va.next
    s.e.out.append('%s_p2:' % label)
    s.e.vm = [{'tag': ('w2', st, q), 'wr': set(), 'smem': False} for st in range(3) for q in range(4)]
    s.e.vm += [{'tag': 'p1', 'wr': set(), 'smem': False}]
    s.e.vm += [{'tag': ('w2', 3, q), 'wr': set(), 'smem': False} for q in range(4)]
    s.e.lg = [{'tag': 'p1l', 'wr': set(), 'smem': True}]
    s.e.hist = []
    s.nstamp = 32
    s.names = []
    nv2 = f2.phase2(s)
    s.p2_names = list(s.names)
    s.E('%s_end:' % label)
    s.E('s_endpgm')
    s.E('%s_idle:' % label)
    s.e._raw('s_waitcnt vmcnt(0)')
    s.E('s_endpgm')
    s.e.k1 = s
    return s.e, (256 if prof else max(nv1, nv2))
```

```python
from f1 import *

BIGNEG = 0xf149f2ca


def attn_path(s):
    import f2
    E = s.E
    A = s.va.alloc
    Id = A(8, 4)
    Id4 = A(2, 2)
    vWp = s.vOffS
    vMx, vN, vZ, vZ2 = s.vb1[0], s.vb1[1], s.vb1[2], s.vb1[3]
    vB1a, vB1b = s.vTrS[0], s.vTrS[1]
    vM2 = A(); vN2 = A()
    kb = s.pool; EE = s.pool + 8
    s.srdW = s.sW2; s.wstride = 2688
    sGat = 81; sKvp = 83; sMl30 = 84
    srd(s.e, s.sW2, s.pWQKV, 448 * 2688)
    hp = s.sJ
    E('s_mul_i32 s%d, s%d, 112' % (s.sWc[2], hp))
    E('s_add_u32 s%d, s%d, 896' % (s.sWc[0], s.sWc[2]))
    E('s_add_u32 s%d, s%d, 1792' % (s.sWc[1], s.sWc[2]))
    E('s_movk_i32 s%d, 2688' % s.sK)
    E('v_lshlrev_b32 v%d, 4, v%d' % (s.vT2, s.vT1))
    E('v_mad_u32_u24 v%d, v%d, s%d, v%d' % (s.vOffW, s.vT0, s.sK, s.vT2))
    E('v_cmp_eq_u32 vcc, 7, v%d' % s.vT1)
    E('v_mov_b32 v%d, 0x40000000' % s.vT2)
    E('v_cndmask_b32 v%d, v%d, v%d, vcc' % (s.vOffW, s.vOffW, s.vT2))
    s.prologue_dma()
    s.tok_write()
    srd(s.e, s.sB2, s.pWPHI, 16 * 1568)
    srd(s.e, s.sWS, s.pWS, WS_BYTES)
    s.setup_addrs()
    s.lane_col(s.vT2)
    E('s_mul_i32 s%d, s%d, 56' % (s.sT0, s.sG))
    E('v_add_u32 v%d, s%d, v%d' % (vWp, s.sT0, s.vT2))
    E('v_cmp_eq_u32 vcc, 56, v%d' % s.vT2)
    E('v_mov_b32 v%d, 112' % s.vT3)
    E('v_cndmask_b32 v%d, v%d, v%d, vcc' % (vWp, vWp, s.vT3))
    s.tr_base(s.vTr[0], vWp, s.sPi, RINGA)
    for q in range(1, 4):
        E('v_xor_b32 v%d, %d, v%d' % (s.vTr[q], q << 11, s.vTr[0]))
    E('v_min_u32 v%d, 48, v%d' % (s.vT2, s.vT2))
    E('v_lshrrev_b32 v%d, 5, v0' % s.vT0)
    E('v_bfe_u32 v%d, v0, 2, 2' % s.vT1)
    E('v_lshl_add_u32 v%d, v%d, 2, v%d' % (s.vT0, s.vT0, s.vT1))
    E('v_mad_u32_u24 v%d, v%d, 56, v%d' % (vWp, s.vT0, s.vT2))
    E('s_mul_i32 s%d, s%d, 1568' % (s.sT0, s.sG))
    E('s_add_u32 s%d, s%d, %d' % (s.sT0, s.sT0, RINGA + 2 * 8192))
    E('v_add_u32 v%d, s%d, v%d' % (vWp, s.sT0, vWp))
    E('v_and_b32 v%d, 31, v0' % s.vT0)
    E('v_lshrrev_b32 v%d, 5, v0' % s.vT1)
    E('v_lshlrev_b32 v%d, 2, v%d' % (s.vT1, s.vT1))
    E('v_sub_u32 v%d, v%d, v%d' % (s.vT1, s.vT0, s.vT1))
    E('v_lshlrev_b32 v%d, 4, v%d' % (s.vT1, s.vT1))
    E('s_movk_i32 s%d, 0x3f80' % s.sT0)
    for kk in range(2):
        for m in range(4):
            cst = 16 * kk + 8 * (m // 2) + 2 * (m % 2)
            d = Id + 4 * kk + m
            E('v_subrev_u32 v%d, %d, v%d' % (s.vT2, 16 * cst, s.vT1))
            E('v_lshlrev_b32 v%d, v%d, s%d' % (d, s.vT2, s.sT0))
            E('v_cmp_gt_u32 vcc, 32, v%d' % s.vT2)
            E('v_cndmask_b32 v%d, 0, v%d, vcc' % (d, d))
    E('v_and_b32 v%d, 1, v0' % s.vT2)
    E('v_lshlrev_b32 v%d, 4, v%d' % (s.vT2, s.vT2))
    E('v_lshlrev_b32 v%d, v%d, s%d' % (s.vT2, s.vT2, s.sT0))
    E('v_cndmask_b32 v%d, v%d, 0, s[%d:%d]' % (Id4, s.vT2, s.sM[1], s.sM[1] + 1))
    E('v_cndmask_b32 v%d, 0, v%d, s[%d:%d]' % (Id4 + 1, s.vT2, s.sM[1], s.sM[1] + 1))
    E('v_cmp_eq_u32 vcc, 28, v%d' % s.vT0)
    E('v_cndmask_b32 v%d, 0, 1.0, vcc' % vB1a)
    E('v_cmp_eq_u32 vcc, 29, v%d' % s.vT0)
    E('v_mov_b32 v%d, 0x3f80' % s.vT2)
    E('v_cndmask_b32 v%d, 0, v%d, vcc' % (vB1b, s.vT2))
    E('v_cmp_eq_u32 s[%d:%d], 30, v%d' % (sMl30, sMl30 + 1, s.vT0))
    E('s_lshl_b32 s%d, s%d, 2' % (s.sT1, s.sRb))
    E('s_add_u32 s%d, s%d, s%d' % (s.sT1, s.sT1, s.sT))
    E('s_mul_i32 s%d, s%d, 144' % (s.sT1, s.sT1))
    E('s_lshl_b32 s%d, s%d, 2' % (s.sT2, hp))
    E('s_lshl_b32 s%d, s%d, 1' % (s.sT3, s.sG))
    E('s_add_u32 s%d, s%d, s%d' % (s.sT2, s.sT2, s.sT3))
    E('s_add_u32 s%d, s%d, s%d' % (s.sSt, s.sT1, s.sT2))
    E('s_add_u32 s%d, s%d, 112' % (s.sSt, s.sSt))
    E('s_lshl_b32 s%d, s%d, 10' % (s.sSt, s.sSt))
    E('s_lshl_b32 s%d, s%d, 17' % (sGat, hp))
    E('s_lshl_b32 s%d, s%d, 12' % (s.sT2, s.sG))
    E('s_add_u32 s%d, s%d, s%d' % (sGat, sGat, s.sT2))
    E('s_lshl_b32 s%d, s%d, 10' % (s.sT2, s.sT))
    E('s_add_u32 s%d, s%d, s%d' % (sGat, sGat, s.sT2))
    E('s_add_u32 s%d, s%d, 0x%x' % (sGat, sGat, KVP_OFF))
    E('s_lshl_b32 s%d, s%d, 13' % (s.sT2, s.sRb))
    E('s_add_u32 s%d, s%d, s%d' % (sKvp, sGat, s.sT2))
    E('s_mul_i32 s%d, s%d, 3136' % (s.sWs, hp))
    E('s_lshl_b32 s%d, s%d, 10' % (s.sT2, s.sT))
    E('s_add_u32 s%d, s%d, s%d' % (s.sWs, s.sWs, s.sT2))
    E('s_add_u32 s%d, s%d, %d' % (s.sStS, s.sT2, RINGA + 2 * 8192))
    E('s_mov_b32 s%d, 0x%x' % (s.sK, f2u(1.0 / 448)))

    sched = {1: [(0, 5), (1, 0), (1, 1)], 2: [(0, 6), (1, 2), (1, 3)], 3: [(1, 4), (1, 5), 'P'],
             4: [(1, 6), (2, 0)], 5: [(2, 1), (2, 2)], 6: [(2, 3), (2, 4)]}
    dma_w0 = s.dma_w
    def dma_w(r, c=None):
        if r == 'P':
            return [I('s_mov_b32 m0, s%d' % s.sStS),
                    I('buffer_load_dwordx4 v%d, s[%d:%d], s%d offen lds' % (s.vLane16, s.sB2, s.sB2 + 3, s.sWs), tag=('w', 'P', 0))]
        return dma_w0(r, c)
    s.dma_w = dma_w
    sched[3] = [(1, 4), (1, 5), ('P', 0)]
    round0(s, sched, [('w', 1, c) for c in range(2)])
    s.emit(s.bump_tr(-RINGA))
    s.emit(rm(s.chunk_reads(1, 0), s.chunk_mfmas(0, 6)))
    s.emit(s.stats_write() + s.cs_write(0))
    s.emit(rm(s.chunk_reads(1, 1), s.chunk_mfmas(1, 0, swap=True)))

    def aug_col0(cs, t, b1a=None, b1b=None):
        o = []
        o.append(I('v_cvt_pk_bf16_f32 v%d, -v%d, -v%d' % (s.augA, cs, cs)))
        o.append(I('v_and_b32 v%d, 0xffff0000, v%d' % (t, s.augA)))
        o.append(I('v_add_f32 v%d, v%d, v%d' % (t, cs, t)))
        if b1a is None:
            o.append(I('v_cvt_pk_bf16_f32 v%d, -v%d, 0' % (s.augA + 1, t)))
            o.append(I('v_mov_b32 v%d, 0' % (s.augA + 2)))
        else:
            o.append(I('v_cvt_pk_bf16_f32 v%d, -v%d, v%d' % (s.augA + 1, t, b1a)))
            o.append(I('v_mov_b32 v%d, v%d' % (s.augA + 2, b1b)))
        return o

    def feat_common(P):
        o = []
        for kk in range(2):
            for sec in range(2):
                d = EE + 4 * kk + 2 * sec
                o.append(I('ds_read_b64_tr_b16 v[%d:%d], v%d offset:%d' % (d, d + 1, vWp, 896 * kk + 448 * sec)))
        for i in range(8):
            o.append(I('v_cvt_pk_bf16_f32 v%d, v%d, v%d' % (kb + i, P + 2 * i, P + 2 * i + 1)))
        o.append(s.mfma(P, EE, kb, None))
        o.append(s.mfma(P, EE + 4, kb + 4, P))
        o.append(I('v_max3_f32 v%d, v%d, v%d, v%d' % (vMx, P, P + 1, P + 2)))
        o.append(I('v_min3_f32 v%d, v%d, v%d, v%d' % (vN, P, P + 1, P + 2)))
        for i in range(3, 15, 2):
            o.append(I('v_max3_f32 v%d, v%d, v%d, v%d' % (vMx, vMx, P + i, P + i + 1)))
            o.append(I('v_min3_f32 v%d, v%d, v%d, v%d' % (vN, vN, P + i, P + i + 1)))
        o.append(I('v_max_f32 v%d, v%d, v%d' % (vMx, vMx, P + 15)))
        o.append(I('v_min_f32 v%d, v%d, v%d' % (vN, vN, P + 15)))
        o.append(I('v_xor_b32 v%d, 0x80000000, v%d' % (vN, vN)))
        o.append(I('v_permlane32_swap_b32 v%d, v%d' % (vMx, vN)))
        o.append(I('v_max_f32 v%d, v%d, v%d' % (vMx, vMx, vN)))
        o.append(I('v_mul_f32 v%d, v%d, v%d' % (vMx, vMx, s.vC)))
        o.append(I('v_xor_b32 v%d, 0x80000000, v%d' % (vMx, vMx)))
        o.append(I('v_mov_b32 v%d, v%d' % (vN, vMx)))
        o.append(I('v_permlane32_swap_b32 v%d, v%d' % (vMx, vN)))
        o.append(I('v_mov_b32 v%d, 0x%x' % (vZ, BIGNEG)))
        o.append(I('v_cndmask_b32 v%d, v%d, v%d, s[%d:%d]' % (vM2, vMx, vZ, s.sMh, s.sMh + 1)))
        o.append(I('v_cndmask_b32 v%d, v%d, v%d, s[%d:%d]' % (vN2, vN, vZ, s.sMh, s.sMh + 1)))
        for g0 in range(0, 16, 4):
            for i in range(g0, g0 + 4):
                o.append(I('v_fma_f32 v%d, v%d, v%d, v%d' % (EE + i, P + i, s.vC, vM2 if i >= 12 else vMx)))
            for i in range(g0, g0 + 4):
                o.append(I('v_fma_f32 v%d, -v%d, v%d, v%d' % (P + i, P + i, s.vC, vN2 if i >= 12 else vN)))
            for i in range(g0, g0 + 4):
                o.append(I('v_exp_f32 v%d, v%d' % (EE + i, EE + i)))
            for i in range(g0, g0 + 4):
                o.append(I('v_exp_f32 v%d, v%d' % (P + i, P + i)))
        return o

    s.barrier([('w', 1, c) for c in range(7)] + [('w', 2, 0), ('w', 2, 1), ('w', 'P', 0)], 'ldsw', name='R1')
    s.tok_load()
    pre = s.dma_w(2, 5) + s.dma_w(2, 6)
    t = s.tE
    P = s.acc[0]
    side = s.stats_read(t) + s.cs_read(0, t) + aug_col0(t, t + 2)
    side.append(s.mfma(P, s.augA, s.augB, P))
    side += feat_common(P)
    side.append(I('v_add_f32 v%d, v%d, v%d' % (vZ, EE, EE + 1)))
    side.append(I('v_add_f32 v%d, v%d, v%d' % (vZ2, P, P + 1)))
    for i in range(2, 16):
        side.append(I('v_add_f32 v%d, v%d, v%d' % (vZ, vZ, EE + i)))
        side.append(I('v_add_f32 v%d, v%d, v%d' % (vZ2, vZ2, P + i)))
    side.append(I('v_permlane32_swap_b32 v%d, v%d' % (vZ, vZ2)))
    side.append(I('v_add_f32 v%d, v%d, v%d' % (vZ, vZ, vZ2)))
    side.append(I('v_rcp_f32 v%d, v%d' % (vZ, vZ)))
    side.append(I('v_mul_f32 v%d, v%d, v%d' % (vZ, vZ, s.vC)))
    side.append(I('v_mov_b32 v%d, v%d' % (vZ2, vZ)))
    side.append(I('v_permlane32_swap_b32 v%d, v%d' % (vZ, vZ2)))
    for i in range(0, 16, 2):
        side.append(I('v_mul_f32 v%d, v%d, v%d' % (EE + i, EE + i, vZ)))
        side.append(I('v_mul_f32 v%d, v%d, v%d' % (EE + i + 1, EE + i + 1, vZ)))
        side.append(I('v_cvt_pk_bf16_f32 v%d, v%d, v%d' % (kb + i // 2, EE + i, EE + i + 1)))
    for i in range(0, 16, 2):
        side.append(I('v_mul_f32 v%d, v%d, v%d' % (P + i, P + i, vZ2)))
        side.append(I('v_mul_f32 v%d, v%d, v%d' % (P + i + 1, P + i + 1, vZ2)))
        side.append(I('v_cvt_pk_bf16_f32 v%d, v%d, v%d' % (EE + i // 2, P + i, P + i + 1)))
    side.append(s.mfma(P, kb, Id, None))
    side.append(s.mfma(P, kb + 4, Id + 4, P))
    for i in range(8):
        side.append(I('v_cvt_pk_bf16_f32 v%d, v%d, v%d' % (kb + i, P + 2 * i, P + 2 * i + 1)))
    side.append(s.mfma(P, EE, Id, None))
    side.append(s.mfma(P, EE + 4, Id + 4, P))
    for i in range(8):
        side.append(I('v_cvt_pk_bf16_f32 v%d, v%d, v%d' % (EE + 8 + i, P + 2 * i, P + 2 * i + 1)))
    main = []
    for c in range(1, 7):
        rds = s.chunk_reads(1, c + 1) if c < 6 else s.bump_tr(57344) + s.chunk_reads(2, 0)
        main += rm(rds, s.chunk_mfmas(1, c, swap=True), lead=(3 if c < 6 else 7))
    s.emit(pre)
    f2.p2_l2warm(s)
    s.emit(interleave(main, side, 0, len(main) - 2))
    s.emit(s.cs_write(1))
    s.emit(rm(s.chunk_reads(2, 1), s.chunk_mfmas(2, 0)))

    s.barrier([('w', 2, c) for c in range(7)], 'lgkm', name='R2')
    Vt = s.acc[1]
    vb = EE
    tt = s.csacc
    side = [I('ds_read_b128 v[%d:%d], v%d offset:%d' % (vb, vb + 3, s.vCSr, 2048)),
            I('v_add_f32 v%d, v%d, v%d' % (vb, vb, vb + 1)),
            I('v_add_f32 v%d, v%d, v%d' % (vb + 2, vb + 2, vb + 3)),
            I('v_add_f32 v%d, v%d, v%d' % (vb, vb, vb + 2))]
    side += aug_col0(vb, vb + 2, vB1a, vB1b)
    side.append(s.mfma(Vt, s.augB, s.augA, Vt))
    for i in range(8):
        side.append(I('v_cvt_pk_bf16_f32 v%d, v%d, v%d' % (vb + i, Vt + 2 * i, Vt + 2 * i + 1)))
    side.append(I('s_lshl_b32 s%d, s%d, 13' % (s.sT0, s.sWv)))
    side.append(I('v_add_u32 v%d, s%d, v%d' % (vMx, s.sT0, s.vLane16)))
    for blk in range(2):
        pT = kb if blk == 0 else EE + 8
        side.append(s.mfma(Vt, pT, vb, None))
        side.append(s.mfma(Vt, pT + 4, vb + 4, Vt))
        for q in range(4):
            side.append(I('ds_write_b128 v%d, v[%d:%d] offset:%d' % (vMx, Vt + 4 * q, Vt + 4 * q + 3, 4096 * blk + 1024 * q)))
    side.append(I('s_lshl_b32 s%d, s%d, 15' % (s.sT0, s.sG)))
    side.append(I('s_lshl_b32 s%d, s%d, 11' % (s.sT1, s.sT)))
    side.append(I('s_add_u32 s%d, s%d, s%d' % (s.sT0, s.sT0, s.sT1)))
    side.append(I('v_add_u32 v%d, s%d, v%d' % (vN, s.sT0, s.vLane16)))
    mainA = []
    for c in range(1, 4):
        mainA += rm(s.chunk_reads(2, c + 1), s.chunk_mfmas(2, c))
    s.emit(interleave(mainA, side, 0, len(mainA) - 2))
    s.barrier([], 'ldsw', name='KVR')
    side = []
    R = s.pool
    dst = [Vt, Vt + 8, s.pool, s.pool + 8]
    for tp in range(4):
        for q in range(2):
            side.append(I('ds_read_b128 v[%d:%d], v%d offset:%d' % (dst[tp] + 4 * q, dst[tp] + 4 * q + 3, vN, 8192 * tp + 1024 * q)))
    for i in range(8):
        side.append(I('v_add_f32 v%d, v%d, v%d' % (Vt + i, Vt + i, Vt + 8 + i)))
        side.append(I('v_add_f32 v%d, v%d, v%d' % (s.pool + i, s.pool + i, s.pool + 8 + i)))
    for i in range(8):
        side.append(I('v_add_f32 v%d, v%d, v%d' % (Vt + i, Vt + i, s.pool + i)))
    for i in range(4):
        side.append(I('v_cvt_pk_bf16_f32 v%d, v%d, v%d' % (Vt + 8 + i, Vt + 2 * i, Vt + 2 * i + 1)))
    side.append(I('buffer_store_dwordx4 v[%d:%d], v%d, s[%d:%d], s%d offen sc1' % (Vt + 8, Vt + 11, s.vLane16, s.sWS, s.sWS + 3, sKvp), tag='kvp'))
    mainB = rm(s.chunk_reads(2, 5), s.chunk_mfmas(2, 4))
    s.emit(interleave(mainB, side, 0, len(mainB) - 1))
    s.emit(rm(s.chunk_reads(2, 6), s.chunk_mfmas(2, 5)))
    s.emit(s.chunk_mfmas(2, 6))
    s.emit(s.cs_write(2))
    s.e.emit(WaitTag(['kvp']))
    s.barrier([], 'ldsw', name='R3')
    s.publish(1, (vMx, vN))
    vPa, vPv = vM2, vN2
    E('v_lshlrev_b32 v%d, 11, v0' % s.vT3)
    E('s_lshl_b32 s%d, s%d, 7' % (s.sT0, hp))
    E('s_add_u32 s%d, s%d, 0x%x' % (s.sT0, s.sT0, FLAGS_OFF + 4))
    E('v_add_u32 v%d, s%d, v%d' % (s.vT3, s.sT0, s.vT3))
    s.poll_issue(s.vT3, s.vT2)
    for st in range(3):
        s.emit(f2.p2_issue_w(s, st))
    P = s.acc[0]
    s.emit([I('ds_read_b128 v[%d:%d], v%d' % (vb, vb + 3, s.vCSr)),
            I('v_add_f32 v%d, v%d, v%d' % (vb, vb, vb + 1)),
            I('v_add_f32 v%d, v%d, v%d' % (vb + 2, vb + 2, vb + 3)),
            I('v_add_f32 v%d, v%d, v%d' % (vb, vb, vb + 2))])
    s.emit(aug_col0(vb, vb + 2))
    s.emit(s.mfma(P, s.augA, s.augB, P))
    s.emit(feat_common(P))
    for i in range(8):
        E('v_cvt_pk_bf16_f32 v%d, v%d, v%d' % (kb + i, EE + 2 * i, EE + 2 * i + 1))
    for i in range(8):
        E('v_cvt_pk_bf16_f32 v%d, v%d, v%d' % (EE + i, P + 2 * i, P + 2 * i + 1))
    s.stamp('feat')
    s.poll_wait(s.vT3, s.vT2, 0xffff, issued=True, later=12)
    s.barrier([], 'lgkm', name='spun')
    G = s.xf
    for rb in range(16):
        E('buffer_load_dwordx4 v[%d:%d], v%d, s[%d:%d], s%d offen sc1' % (G + 4 * rb, G + 4 * rb + 3, s.vLane16, s.sWS, s.sWS + 3, sGat))
        if rb < 15:
            E('s_add_u32 s%d, s%d, 8192' % (sGat, sGat))
    s.e.emit(Drain(['vm']))
    s.stamp('gath')
    lo, hi = s.acc[1], s.acc[1] + 4
    for rb in range(16):
        s.emit(s.mfma4(lo, Id4, G + 4 * rb, rb == 0))
        s.emit(s.mfma4(hi, Id4, G + 4 * rb + 2, rb == 0))
    red = s.acc[1] + 8
    for i in range(4):
        E('v_cvt_pk_bf16_f32 v%d, v%d, v%d' % (red + i, lo + 2 * i, lo + 2 * i + 1))
    for i in range(4):
        E('v_cndmask_b32 v%d, v%d, v%d, s[%d:%d]' % (red + i, red + i, s.ones, sMl30, sMl30 + 1))
    E('s_lshl_b32 s%d, s%d, 10' % (s.sT0, s.sWv))
    E('v_add_u32 v%d, s%d, v%d' % (vMx, s.sT0, s.vLane16))
    E('s_lshl_b32 s%d, s%d, 12' % (s.sT0, s.sG))
    E('v_add_u32 v%d, s%d, v%d' % (vN, s.sT0, s.vLane16))
    E('ds_write_b128 v%d, v[%d:%d]' % (vMx, red, red + 3))
    s.barrier([], 'lgkm', name='share')
    KA = G
    for f in range(4):
        E('ds_read_b128 v[%d:%d], v%d offset:%d' % (KA + 4 * f, KA + 4 * f + 3, vN, 1024 * f))
    Np, Nm = s.acc[0], s.acc[1]
    s.emit(s.mfma(Np, KA, kb, None))
    s.emit(s.mfma(Nm, KA + 8, EE, None))
    s.emit(s.mfma(Np, KA + 4, kb + 4, Np))
    s.emit(s.mfma(Nm, KA + 12, EE + 4, Nm))
    a, b, dn = vMx, vN, vZ
    E('v_rcp_f32 v%d, v%d' % (a, Np + 14))
    E('v_rcp_f32 v%d, v%d' % (b, Nm + 14))
    E('v_add_f32 v%d, v%d, v%d' % (dn, Np + 12, Np + 13))
    E('v_add_f32 v%d, v%d, v%d' % (vZ2, Nm + 12, Nm + 13))
    E('v_mov_b32 v%d, 0x%x' % (vM2, f2u(1e-6 * 1.4426950408889634)))
    E('v_fmac_f32 v%d, v%d, v%d' % (vM2, dn, a))
    E('v_fmac_f32 v%d, v%d, v%d' % (vM2, vZ2, b))
    E('v_rcp_f32 v%d, v%d' % (vM2, vM2))
    E('v_mul_f32 v%d, 0x%x, v%d' % (vM2, LOG2E, vM2))
    E('v_mul_f32 v%d, v%d, v%d' % (a, a, vM2))
    E('v_mul_f32 v%d, v%d, v%d' % (b, b, vM2))
    E('v_mov_b32 v%d, v%d' % (vZ, a))
    E('v_mov_b32 v%d, v%d' % (vZ2, b))
    E('v_permlane32_swap_b32 v%d, v%d' % (vZ, a))
    E('v_permlane32_swap_b32 v%d, v%d' % (vZ2, b))
    E('v_cndmask_b32 v%d, v%d, 0, s[%d:%d]' % (vM2, a, s.sMh, s.sMh + 1))
    E('v_cndmask_b32 v%d, v%d, 0, s[%d:%d]' % (vN2, b, s.sMh, s.sMh + 1))
    for i in range(16):
        fa, fb = (vM2, vN2) if i >= 12 else (a, b)
        E('v_mul_f32 v%d, v%d, v%d' % (Np + i, Np + i, fa))
        E('v_fmac_f32 v%d, v%d, v%d' % (Np + i, Nm + i, fb))
    for i in range(8):
        E('v_cvt_pk_bf16_f32 v%d, v%d, v%d' % (kb + i, Np + 2 * i, Np + 2 * i + 1))
        if i % 4 == 3:
            kk = i // 4
            E('buffer_store_dwordx4 v[%d:%d], v%d, s[%d:%d], s%d offen offset:%d sc1' % (kb + 4 * kk, kb + 4 * kk + 3, s.vLane16, s.sWS, s.sWS + 3, s.sSt, 1024 * kk))
    s.emit(f2.p2_issue_w(s, 3))
```

```python
from f1 import *

LN2 = 0x3f317218
NAHEAD = int(os.environ.get('NAHEAD', '3'))

SLOT = lambda st: ((st + 1) % 5) * 32768


def p2_early(s):
    e = s.e
    def E(text, tag=None):
        e.emit(I(text, tag))
    sT0, sT1, sT2, sT3 = s.sT0, s.sT1, s.sT2, s.sT3
    E('s_and_b32 s%d, s2, 7' % sT0)
    E('s_lshr_b32 s%d, s2, 3' % sT1)
    E('s_lshl_b32 s%d, s%d, 5' % (sT2, sT0))
    E('s_sub_u32 s%d, s%d, 128' % (sT2, sT2))
    E('s_mul_i32 s%d, s%d, 24' % (sT3, sT0))
    E('s_add_u32 s%d, s%d, 128' % (sT3, sT3))
    E('s_cmp_lt_u32 s%d, 4' % sT0)
    E('s_cselect_b32 s%d, s%d, s%d' % (sT2, sT3, sT2))
    E('s_cselect_b32 s%d, 24, 32' % sT3)
    E('s_cmp_ge_u32 s%d, s%d' % (sT1, sT3))
    E('s_cselect_b32 s%d, 1, 0' % s.sIdle)
    E('s_cselect_b32 s%d, 0, s%d' % (sT3, sT1))
    E('s_add_u32 s%d, s%d, s%d' % (sT2, sT2, sT3))
    E('s_mul_i32 s%d, s%d, 9363' % (s.sTb, sT2))
    E('s_lshr_b32 s%d, s%d, 16' % (s.sTb, s.sTb))
    E('s_mul_i32 s%d, s%d, 7' % (sT3, s.sTb))
    E('s_sub_u32 s%d, s%d, s%d' % (s.sCb, sT2, sT3))
    v0_, v1_, v2_ = s.vT0, s.vT1, s.vT2
    E('v_lshrrev_b32 v%d, 3, v0' % v0_)
    E('v_and_b32 v%d, 7, v0' % v1_)
    E('v_lshrrev_b32 v%d, 2, v0' % v2_)
    E('v_and_b32 v%d, 4, v%d' % (v2_, v2_))
    E('v_xor_b32 v%d, v%d, v%d' % (v1_, v1_, v2_))
    E('v_lshlrev_b32 v%d, 4, v%d' % (v1_, v1_))
    E('s_lshl_b32 s%d, s%d, 3' % (sT0, s.sWv))
    E('v_add_u32 v%d, s%d, v%d' % (v2_, sT0, v0_))
    E('s_movk_i32 s%d, 896' % sT1)
    E('v_mad_u32_u24 v%d, v%d, s%d, v%d' % (s.vOffW2, v2_, sT1, v1_))
    E('s_lshl_b32 s%d, s%d, 7' % (sT0, s.sCb))
    for q in range(4):
        E('s_add_u32 s%d, s%d, %d' % (s.sQ[q], sT0, 448 * 896 * q))
    srd(e, s.sW2e, s.pW2, 1792 * 896)
    srd(e, s.sWOe, s.pWO, 448 * 896)


def p2_l2warm(s):
    e = s.e
    lab = s.uid('pf'); done = s.uid('pfd')
    sPf = s.sT1
    e.emit(I('v_lshlrev_b32 v%d, 7, v0' % s.vPfA))
    e.emit(I('s_and_b32 s%d, s2, 0xf8' % sPf))
    e.emit(I('s_add_u32 s%d, s%d, s%d' % (sPf, sPf, s.sWv)))
    e.emit(I('s_lshl_b32 s%d, s%d, 13' % (s.sT0, sPf)))
    e.emit(Fence())
    s.R('s_cmp_ge_u32 s%d, 196' % sPf)
    s.R('s_cbranch_scc1 %s' % lab)
    s.R('buffer_load_dword v%d, v%d, s[%d:%d], s%d offen' % (s.vPfD, s.vPfA, s.sW2e, s.sW2e + 3, s.sT0))
    s.R('s_branch %s' % done)
    s.L(lab)
    s.R('s_sub_u32 s%d, s%d, 196' % (sPf, sPf))
    s.R('s_min_u32 s%d, s%d, 48' % (sPf, sPf))
    s.R('s_lshl_b32 s%d, s%d, 13' % (s.sT0, sPf))
    s.R('buffer_load_dword v%d, v%d, s[%d:%d], s%d offen' % (s.vPfD, s.vPfA, s.sWOe, s.sWOe + 3, s.sT0))
    s.L(done)
    e.vm.append({'tag': 'pf', 'wr': {('v', s.vPfD)}, 'smem': False})


def p2_issue_w(s, st):
    out = []
    for q in range(4):
        out.append(I('s_add_u32 m0, s%d, %d' % (s.sM0w, SLOT(st) + q * 8192)))
        out.append(I('buffer_load_dwordx4 v%d, s[%d:%d], s%d offen lds' % (s.vOffW2, s.sW2e, s.sW2e + 3, s.sQ[q]), tag=('w2', st, q)))
        if st < 6:
            out.append(I('s_add_u32 s%d, s%d, %d' % (s.sQ[q], s.sQ[q], 64 * 896)))
    return out


def phase2(s, NS=5):
    e = s.e
    label = s.label
    stamp = s.stamp
    def E(text, tag=None):
        e.emit(I(text, tag))
    sX, sWS = s.sX, s.sWS
    sW2, sWO, sOUT = s.sW2e, s.sWOe, 68
    sWv = s.sWv
    sKq, sTh, sTb, sCb = 25, 26, s.sTb, s.sCb
    sM0, sOffO = s.sM0w, 29
    sT0, sT1, sT2, sT3 = 32, 33, 34, 35
    sQ = s.sQ
    sQo = [44, 45, 46, 47]
    sAct, sActO = 48, 49
    sIdle = s.sIdle
    va = RegAlloc('v', 4, 256)
    vOffW = s.vOffW2
    vOffWO = va.alloc(); vLane16 = va.alloc(); vXo = va.alloc()
    vT0 = va.alloc(); vT1 = va.alloc(); vT2 = va.alloc(); vRedR = va.alloc(); vRedW = va.alloc()
    vPa = va.alloc(); vPv = va.alloc()
    vTr = [[va.alloc() for ct in range(2)] for b in range(3)]
    vXr = va.alloc(4, 4)
    acc = va.alloc(32, 4)
    NW = 3
    wf = va.alloc(32 * NW, 4)
    NA = 6
    act = va.alloc(16 * NA, 4)
    assert va.next <= 255

    E('s_lshr_b32 s%d, s%d, 1' % (sKq, sWv))
    E('s_and_b32 s%d, s%d, 1' % (sTh, sWv))
    E('v_lshrrev_b32 v%d, 3, v0' % vT0)
    E('v_and_b32 v%d, 7, v0' % vT1)
    E('v_lshrrev_b32 v%d, 2, v0' % vT2)
    E('v_and_b32 v%d, 4, v%d' % (vT2, vT2))
    E('v_xor_b32 v%d, v%d, v%d' % (vT1, vT1, vT2))
    E('v_lshlrev_b32 v%d, 4, v%d' % (vT1, vT1))
    E('s_movk_i32 s%d, 896' % sT1)
    E('v_lshlrev_b32 v%d, 4, v0' % vLane16)
    E('s_lshl_b32 s%d, s%d, 7' % (sT0, sCb))
    for q in range(4):
        E('s_add_u32 s%d, s%d, %d' % (sQo[q], sT0, 28 * 4 * 896 * q))
    E('s_lshl_b32 s%d, s%d, 1' % (sT0, sTb))
    E('s_add_u32 s%d, s%d, s%d' % (sT0, sT0, sTh))
    E('s_mul_i32 s%d, s%d, 144' % (sT0, sT0))
    E('s_mul_i32 s%d, s%d, 28' % (sT3, sKq))
    E('s_add_u32 s%d, s%d, s%d' % (sAct, sT0, sT3))
    E('s_lshl_b32 s%d, s%d, 10' % (sAct, sAct))
    E('s_lshl_b32 s%d, s%d, 3' % (sT3, sKq))
    E('s_add_u32 s%d, s%d, s%d' % (sT0, sT0, sT3))
    E('s_add_u32 s%d, s%d, 112' % (sT0, sT0))
    E('s_lshl_b32 s%d, s%d, 10' % (sActO, sT0))
    srd(e, sOUT, s.pOUT, 2048 * 896)
    E('s_lshr_b32 s%d, s%d, 1' % (sT0, sTb))
    E('s_lshl_b32 s%d, s%d, 11' % (sT0, sT0))
    E('s_add_u32 s%d, s%d, 0x%x' % (sT0, sT0, FLAGS_OFF))
    E('v_lshlrev_b32 v%d, 7, v0' % vPa)
    E('v_add_u32 v%d, s%d, v%d' % (vPa, sT0, vPa))
    E('s_and_b32 s%d, s%d, 3' % (sT0, sWv))
    E('s_lshl_b32 s%d, s%d, 3' % (sT0, sT0))
    E('v_add_u32 v%d, s%d, v%d' % (vT2, sT0, vT0))
    E('v_min_u32 v%d, 27, v%d' % (vT2, vT2))
    E('s_lshr_b32 s%d, s%d, 2' % (sT0, sWv))
    E('s_mul_i32 s%d, s%d, 28' % (sT0, sT0))
    E('v_add_u32 v%d, s%d, v%d' % (vT2, sT0, vT2))
    E('v_mad_u32_u24 v%d, v%d, s%d, v%d' % (vOffWO, vT2, sT1, vT1))
    E('s_lshl_b32 s%d, s%d, 3' % (sT0, sWv))
    E('v_add_u32 v%d, s%d, v%d' % (vT0, sT0, vT0))
    E('v_and_b32 v%d, 7, v0' % vT1)
    E('v_lshlrev_b32 v%d, 4, v%d' % (vXo, vT1))
    E('v_mad_u32_u24 v%d, v%d, s%d, v%d' % (vXo, vT0, sT1, vXo))
    E('s_mul_i32 s%d, s%d, %d' % (sT0, sTb, 64 * 896))
    E('s_lshl_b32 s%d, s%d, 7' % (sT3, sCb))
    E('s_add_u32 s%d, s%d, s%d' % (sOffO, sT0, sT3))
    E('v_mul_u32_u24 v%d, 272, v%d' % (vRedR, vT0))
    E('v_lshl_add_u32 v%d, v%d, 5, v%d' % (vRedR, vT1, vRedR))
    E('v_and_b32 v%d, 31, v0' % vRedW)
    E('s_lshl_b32 s%d, s%d, 5' % (sT0, sTh))
    E('v_add_u32 v%d, s%d, v%d' % (vRedW, sT0, vRedW))
    E('v_mul_u32_u24 v%d, 272, v%d' % (vRedW, vRedW))
    E('s_mul_i32 s%d, s%d, 17408' % (sT0, sKq))
    E('v_add_u32 v%d, s%d, v%d' % (vRedW, sT0, vRedW))
    E('v_lshrrev_b32 v%d, 5, v0' % vT0)
    E('v_lshl_add_u32 v%d, v%d, 4, v%d' % (vRedW, vT0, vRedW))
    E('v_lshlrev_b32 v%d, 9, v%d' % (vT0, vT0))
    E('v_bfe_u32 v%d, v0, 2, 2' % vT1)
    E('v_lshl_add_u32 v%d, v%d, 7, v%d' % (vT0, vT1, vT0))
    E('v_bfe_u32 v%d, v0, 4, 1' % vT1)
    E('v_lshl_add_u32 v%d, v%d, 5, v%d' % (vT0, vT1, vT0))
    E('v_and_b32 v%d, 3, v0' % vT1)
    E('v_lshl_add_u32 v%d, v%d, 3, v%d' % (vT0, vT1, vT0))
    E('v_bfe_u32 v%d, v0, 3, 1' % vT1)
    E('v_lshl_add_u32 v%d, v%d, 6, v%d' % (vT0, vT1, vT0))
    E('s_lshl_b32 s%d, s%d, 13' % (sT0, sKq))
    E('v_add_u32 v%d, s%d, v%d' % (vTr[0][0], sT0, vT0))
    E('v_xor_b32 v%d, 64, v%d' % (vTr[0][1], vTr[0][0]))
    for b in (1, 2):
        for ct in range(2):
            E('v_add_u32 v%d, 0x%x, v%d' % (vTr[b][ct], 65536 * b, vTr[0][ct]))

    def issue_w(st):
        if st < 7:
            e.emit(p2_issue_w(s, st))
            return
        for q in range(4):
            E('s_add_u32 m0, s%d, %d' % (sM0, SLOT(st) + q * 8192))
            E('buffer_load_dwordx4 v%d, s[%d:%d], s%d offen lds' % (vOffWO, sWO, sWO + 3, sQo[q]), tag=('w2', st, q))
            if st == 7:
                E('s_add_u32 s%d, s%d, %d' % (sQo[q], sQo[q], 56 * 896))

    def issue_a(st):
        so = sAct if st < 7 else sActO
        out = []
        for k in range(4):
            r = act + 16 * (st % NA) + 4 * k
            out.append(I('buffer_load_dwordx4 v[%d:%d], v%d, s[%d:%d], s%d offen offset:%d' % (r, r + 3, vLane16, sWS, sWS + 3, so, k * 1024)))
        if st < 6 or st == 7:
            out.append(I('s_add_u32 s%d, s%d, 4096' % (so, so)))
        return out

    def rds(st):
        slot = SLOT(st)
        out = []
        for k in range(4):
            b = wf + (st % NW) * 32 + k * 8
            for ct in range(2):
                for sec in range(2):
                    r = b + ct * 4 + sec * 2
                    out.append(I('ds_read_b64_tr_b16 v[%d:%d], v%d offset:%d' % (r, r + 1, vTr[slot // 65536][ct], (slot % 65536) + k * 2048 + sec * 1024)))
        return out

    def mfs(st):
        out = []
        for k in range(4):
            b = wf + (st % NW) * 32 + k * 8
            a = act + 16 * (st % NA) + 4 * k
            for ct in range(2):
                c = acc + 16 * ct
                src = '0' if (st == 0 and k == 0) else 'v[%d:%d]' % (c, c + 15)
                out.append(I('v_mfma_f32_32x32x16_bf16 v[%d:%d], v[%d:%d], v[%d:%d], %s' % (c, c + 15, b + 4 * ct, b + 4 * ct + 3, a, a + 3, src)))
        return out

    def wtags(*sts):
        return [('w2', st, 3) for st in sts]

    e.emit(WaitTag(['p1']))
    e.emit(Drain(['lgkm']))
    stamp('acked')
    E('s_barrier')
    s.publish(0, (vT0, vT1))
    E('s_cmp_lg_u32 s%d, 0' % sIdle)
    E('s_cbranch_scc1 %s_idle' % label)
    issue_w(4)
    e.emit(rds(0) + rds(1))
    e.emit(Drain(['lgkm']))
    E('s_barrier')
    issue_w(5)
    issue_w(6)
    e.emit(rds(2))
    s.poll_wait(vPa, vPv, 0xff00)
    stamp('polled')
    e.emit(WaitTag(wtags(3, 4)))
    E('s_barrier')
    for st in range(NAHEAD):
        e.emit(issue_a(st))
    E('buffer_load_dwordx4 v[%d:%d], v%d, s[%d:%d], s%d offen' % (vXr, vXr + 3, vXo, sX, sX + 3, sOffO))
    stamp('aiss')
    nexta = NAHEAD
    for st in range(9):
        pre = []
        if st == 2:
            e.emit(WaitTag(wtags(5, 6)))
            e.emit(Drain(['lgkm']))
            stamp('b4')
            E('s_barrier')
            issue_w(7); issue_w(8)
        if st == 5:
            e.emit(WaitTag(wtags(7, 8)))
            e.emit(Drain(['lgkm']))
            s.poll_wait(vPa, vPv, 0x00ff, issued=True, later=e.stats['vmem'] - mark)
            stamp('b5')
            E('s_barrier')
        if st == 4:
            s.poll_issue(vPa, vPv)
            mark = e.stats['vmem']
        vm = []
        lim = 7 if st < 5 else 9
        while nexta < lim and nexta < st + NA and (nexta <= st + NAHEAD or st >= 5):
            vm += issue_a(nexta); nexta += 1
        m = mfs(st)
        r = rds(st + 2) if (st + 2 < 9 and st >= 1) else []
        if st == 0:
            r = rds(3)[:0]
        side = []
        i = j = 0
        while i < len(vm) or j < len(r):
            if i < len(vm): side.append(vm[i]); i += 1
            for _ in range(3):
                if j < len(r): side.append(r[j]); j += 1
        e.emit(interleave(m, side, 0, 7))
        if st in (0, 1, 4, 7): stamp('m%d' % st)
    for ct in range(2):
        for g4 in range(4):
            r = acc + 16 * ct + 4 * g4
            E('ds_write_b128 v%d, v[%d:%d] offset:%d' % (vRedW, r, r + 3, 128 * ct + 32 * g4))
    e.emit(Drain(['lgkm']))
    stamp('red')
    E('s_barrier')
    rb = wf
    for q in range(4):
        for hf in range(2):
            r = rb + 8 * q + 4 * hf
            E('ds_read_b128 v[%d:%d], v%d offset:%d' % (r, r + 3, vRedR, 17408 * q + 16 * hf))
    for j in range(8):
        E('v_add_f32 v%d, v%d, v%d' % (rb + j, rb + j, rb + 8 + j))
        E('v_add_f32 v%d, v%d, v%d' % (rb + 16 + j, rb + 16 + j, rb + 24 + j))
    for j in range(8):
        E('v_add_f32 v%d, v%d, v%d' % (rb + j, rb + j, rb + 16 + j))
    E('s_mov_b32 s%d, 0x%x' % (sT0, LN2))
    for p in range(4):
        lo, hi = rb + 8 + 2 * p, rb + 9 + 2 * p
        E('v_lshlrev_b32 v%d, 16, v%d' % (lo, vXr + p))
        E('v_and_b32 v%d, 0xffff0000, v%d' % (hi, vXr + p))
        E('v_fmac_f32 v%d, s%d, v%d' % (lo, sT0, rb + 2 * p))
        E('v_fmac_f32 v%d, s%d, v%d' % (hi, sT0, rb + 2 * p + 1))
        E('v_cvt_pk_bf16_f32 v%d, v%d, v%d' % (rb + 16 + p, lo, hi))
    E('buffer_store_dwordx4 v[%d:%d], v%d, s[%d:%d], s%d offen' % (rb + 16, rb + 19, vXo, sOUT, sOUT + 3, sOffO))
    stamp('end')
    s.vT0 = vT0
    s.prof_store(PROF_OFF)
    return va.next
```

```python
from f1 import *

LN2 = 0x3f317218


def phase2(s, NS=5):
    e = s.e
    label = s.label
    stamp = s.stamp
    def E(text, tag=None):
        e.emit(I(text, tag))
    sX, sWS = s.sX, s.sWS
    sW2, sWO, sOUT = 12, 20, 68
    sWv = s.sWv
    sKq, sTh, sTb, sCb = 25, 26, 27, 28
    sM0, sOffO = 29, 30
    sT0, sT1, sT2, sT3 = 32, 33, 34, 35
    sQ = [40, 41, 42, 43]
    sQo = [44, 45, 46, 47]
    sAct, sActO = 48, 49
    sIdle = 50
    va = RegAlloc('v', 1, 256)
    vOffW = va.alloc(); vOffWO = va.alloc(); vLane16 = va.alloc(); vXo = va.alloc()
    vT0 = va.alloc(); vT1 = va.alloc(); vT2 = va.alloc(); vRedR = va.alloc(); vRedW = va.alloc()
    vPa = va.alloc(); vPv = va.alloc()
    vTr = [[va.alloc() for ct in range(2)] for b in range(3)]
    vXr = va.alloc(4, 4)
    acc = va.alloc(32, 4)
    wf = va.alloc(64, 4)
    assert va.next <= s.vTok
    NA = 7
    act = va.alloc(16 * NA, 4)

    E('s_and_b32 s%d, s2, 7' % sT0)
    E('s_lshr_b32 s%d, s2, 3' % sT1)
    E('s_lshl_b32 s%d, s%d, 5' % (sT2, sT0))
    E('s_sub_u32 s%d, s%d, 128' % (sT2, sT2))
    E('s_mul_i32 s%d, s%d, 24' % (sT3, sT0))
    E('s_add_u32 s%d, s%d, 128' % (sT3, sT3))
    E('s_cmp_lt_u32 s%d, 4' % sT0)
    E('s_cselect_b32 s%d, s%d, s%d' % (sT2, sT3, sT2))
    E('s_cselect_b32 s%d, 24, 32' % sT3)
    E('s_cmp_ge_u32 s%d, s%d' % (sT1, sT3))
    E('s_cselect_b32 s%d, 1, 0' % sIdle)
    E('s_cselect_b32 s%d, 0, s%d' % (sT1, sT1))
    E('s_add_u32 s%d, s%d, s%d' % (sT2, sT2, sT1))
    E('s_mul_i32 s%d, s%d, 9363' % (sTb, sT2))
    E('s_lshr_b32 s%d, s%d, 16' % (sTb, sTb))
    E('s_mul_i32 s%d, s%d, 7' % (sT3, sTb))
    E('s_sub_u32 s%d, s%d, s%d' % (sCb, sT2, sT3))
    E('s_lshr_b32 s%d, s%d, 1' % (sKq, sWv))
    E('s_and_b32 s%d, s%d, 1' % (sTh, sWv))
    E('s_lshl_b32 s%d, s%d, 10' % (sM0, sWv))
    E('v_lshrrev_b32 v%d, 3, v0' % vT0)
    E('v_and_b32 v%d, 7, v0' % vT1)
    E('v_lshrrev_b32 v%d, 2, v0' % vT2)
    E('v_and_b32 v%d, 4, v%d' % (vT2, vT2))
    E('v_xor_b32 v%d, v%d, v%d' % (vT1, vT1, vT2))
    E('v_lshlrev_b32 v%d, 4, v%d' % (vT1, vT1))
    E('s_lshl_b32 s%d, s%d, 3' % (sT0, sWv))
    E('v_add_u32 v%d, s%d, v%d' % (vT2, sT0, vT0))
    E('s_movk_i32 s%d, 896' % sT1)
    E('v_mad_u32_u24 v%d, v%d, s%d, v%d' % (vOffW, vT2, sT1, vT1))
    E('v_lshlrev_b32 v%d, 4, v0' % vLane16)
    E('s_lshl_b32 s%d, s%d, 7' % (sT0, sCb))
    for q in range(4):
        E('s_add_u32 s%d, s%d, %d' % (sQ[q], sT0, 448 * 896 * q))
    for q in range(4):
        E('s_add_u32 s%d, s%d, %d' % (sQo[q], sT0, 28 * 4 * 896 * q))
    E('s_lshl_b32 s%d, s%d, 1' % (sT0, sTb))
    E('s_add_u32 s%d, s%d, s%d' % (sT0, sT0, sTh))
    E('s_mul_i32 s%d, s%d, 144' % (sT0, sT0))
    E('s_mul_i32 s%d, s%d, 28' % (sT3, sKq))
    E('s_add_u32 s%d, s%d, s%d' % (sAct, sT0, sT3))
    E('s_lshl_b32 s%d, s%d, 10' % (sAct, sAct))
    E('s_lshl_b32 s%d, s%d, 3' % (sT3, sKq))
    E('s_add_u32 s%d, s%d, s%d' % (sT0, sT0, sT3))
    E('s_add_u32 s%d, s%d, 112' % (sT0, sT0))
    E('s_lshl_b32 s%d, s%d, 10' % (sActO, sT0))
    srd(e, sW2, s.pW2, 1792 * 896)
    srd(e, sWO, s.pWO, 448 * 896)
    srd(e, sOUT, s.pOUT, 2048 * 896)
    E('s_lshr_b32 s%d, s%d, 1' % (sT0, sTb))
    E('s_lshl_b32 s%d, s%d, 11' % (sT0, sT0))
    E('s_add_u32 s%d, s%d, 0x%x' % (sT0, sT0, FLAGS_OFF))
    E('v_lshlrev_b32 v%d, 7, v0' % vPa)
    E('v_add_u32 v%d, s%d, v%d' % (vPa, sT0, vPa))
    E('s_and_b32 s%d, s%d, 3' % (sT0, sWv))
    E('s_lshl_b32 s%d, s%d, 3' % (sT0, sT0))
    E('v_add_u32 v%d, s%d, v%d' % (vT2, sT0, vT0))
    E('v_min_u32 v%d, 27, v%d' % (vT2, vT2))
    E('s_lshr_b32 s%d, s%d, 2' % (sT0, sWv))
    E('s_mul_i32 s%d, s%d, 28' % (sT0, sT0))
    E('v_add_u32 v%d, s%d, v%d' % (vT2, sT0, vT2))
    E('v_mad_u32_u24 v%d, v%d, s%d, v%d' % (vOffWO, vT2, sT1, vT1))
    E('s_lshl_b32 s%d, s%d, 3' % (sT0, sWv))
    E('v_add_u32 v%d, s%d, v%d' % (vT0, sT0, vT0))
    E('v_and_b32 v%d, 7, v0' % vT1)
    E('v_lshlrev_b32 v%d, 4, v%d' % (vXo, vT1))
    E('v_mad_u32_u24 v%d, v%d, s%d, v%d' % (vXo, vT0, sT1, vXo))
    E('s_mul_i32 s%d, s%d, %d' % (sT0, sTb, 64 * 896))
    E('s_lshl_b32 s%d, s%d, 7' % (sT3, sCb))
    E('s_add_u32 s%d, s%d, s%d' % (sOffO, sT0, sT3))
    E('v_mul_u32_u24 v%d, 272, v%d' % (vRedR, vT0))
    E('v_lshl_add_u32 v%d, v%d, 5, v%d' % (vRedR, vT1, vRedR))
    E('v_and_b32 v%d, 31, v0' % vRedW)
    E('s_lshl_b32 s%d, s%d, 5' % (sT0, sTh))
    E('v_add_u32 v%d, s%d, v%d' % (vRedW, sT0, vRedW))
    E('v_mul_u32_u24 v%d, 272, v%d' % (vRedW, vRedW))
    E('s_mul_i32 s%d, s%d, 17408' % (sT0, sKq))
    E('v_add_u32 v%d, s%d, v%d' % (vRedW, sT0, vRedW))
    E('v_lshrrev_b32 v%d, 5, v0' % vT0)
    E('v_lshl_add_u32 v%d, v%d, 4, v%d' % (vRedW, vT0, vRedW))
    E('v_lshlrev_b32 v%d, 9, v%d' % (vT0, vT0))
    E('v_bfe_u32 v%d, v0, 2, 2' % vT1)
    E('v_lshl_add_u32 v%d, v%d, 7, v%d' % (vT0, vT1, vT0))
    E('v_bfe_u32 v%d, v0, 4, 1' % vT1)
    E('v_lshl_add_u32 v%d, v%d, 5, v%d' % (vT0, vT1, vT0))
    E('v_and_b32 v%d, 3, v0' % vT1)
    E('v_lshl_add_u32 v%d, v%d, 3, v%d' % (vT0, vT1, vT0))
    E('v_bfe_u32 v%d, v0, 3, 1' % vT1)
    E('v_lshl_add_u32 v%d, v%d, 6, v%d' % (vT0, vT1, vT0))
    E('s_lshl_b32 s%d, s%d, 13' % (sT0, sKq))
    E('v_add_u32 v%d, s%d, v%d' % (vTr[0][0], sT0, vT0))
    E('v_xor_b32 v%d, 64, v%d' % (vTr[0][1], vTr[0][0]))
    for b in (1, 2):
        for ct in range(2):
            E('v_add_u32 v%d, 0x%x, v%d' % (vTr[b][ct], 65536 * b, vTr[0][ct]))

    def issue_w(st):
        slot = (st % NS) * 32768
        for q in range(4):
            E('s_add_u32 m0, s%d, %d' % (sM0, slot + q * 8192))
            if st < 7:
                E('buffer_load_dwordx4 v%d, s[%d:%d], s%d offen lds' % (vOffW, sW2, sW2 + 3, sQ[q]), tag=('w2', st, q))
                if st < 6:
                    E('s_add_u32 s%d, s%d, %d' % (sQ[q], sQ[q], 64 * 896))
            else:
                E('buffer_load_dwordx4 v%d, s[%d:%d], s%d offen lds' % (vOffWO, sWO, sWO + 3, sQo[q]), tag=('w2', st, q))
                if st == 7:
                    E('s_add_u32 s%d, s%d, %d' % (sQo[q], sQo[q], 56 * 896))

    def issue_a(st):
        so = sAct if st < 7 else sActO
        for k in range(4):
            r = act + 16 * (st % NA) + 4 * k
            E('buffer_load_dwordx4 v[%d:%d], v%d, s[%d:%d], s%d offen offset:%d' % (r, r + 3, vLane16, sWS, sWS + 3, so, k * 1024))
        if st < 6 or st == 7:
            E('s_add_u32 s%d, s%d, 4096' % (so, so))

    e.emit(Drain(['vm', 'lgkm']))
    stamp('acked')
    E('s_barrier')
    s.publish(0, (vT0, vT1))
    E('s_cmp_lg_u32 s%d, 0' % sIdle)
    E('s_cbranch_scc1 %s_end' % label)
    s.poll_wait(vPa, vPv, 0xff00)
    stamp('polled')
    for st in range(NS):
        issue_w(st)
    E('s_barrier')
    for st in range(3):
        issue_a(st)
    E('buffer_load_dwordx4 v[%d:%d], v%d, s[%d:%d], s%d offen' % (vXr, vXr + 3, vXo, sX, sX + 3, sOffO))

    def rds(st):
        slot = (st % NS) * 32768
        out = []
        for k in range(4):
            b = wf + (st % 2) * 32 + k * 8
            for ct in range(2):
                for sec in range(2):
                    r = b + ct * 4 + sec * 2
                    out.append(I('ds_read_b64_tr_b16 v[%d:%d], v%d offset:%d' % (r, r + 1, vTr[slot // 65536][ct], (slot % 65536) + k * 2048 + sec * 1024)))
        return out

    def mfs(st):
        out = []
        for k in range(4):
            b = wf + (st % 2) * 32 + k * 8
            a = act + 16 * (st % NA) + 4 * k
            for ct in range(2):
                c = acc + 16 * ct
                src = '0' if (st == 0 and k == 0) else 'v[%d:%d]' % (c, c + 15)
                out.append(I('v_mfma_f32_32x32x16_bf16 v[%d:%d], v[%d:%d], v[%d:%d], %s' % (c, c + 15, b + 4 * ct, b + 4 * ct + 3, a, a + 3, src)))
        return out

    e.emit(WaitTag([('w2', 0, 3)]))
    stamp('w0')
    E('s_barrier')
    e.emit(rds(0))
    for st in range(9):
        if st < 8:
            e.emit(WaitTag([('w2', st + 1, 3)]))
        e.emit(Drain(['lgkm']))
        if st == 5:
            s.poll_wait(vPa, vPv, 0x00ff)
        if st in (0, 1, 4, 5, 8): stamp('bar%d' % st)
        E('s_barrier')
        if st + NS < 9:
            issue_w(st + NS)
        if st + 3 < 7:
            issue_a(st + 3)
        if st == 5:
            issue_a(7)
            issue_a(8)
        m = mfs(st)
        r = rds(st + 1) if st < 8 else []
        e.emit(r[:2])
        e.emit(interleave(m, r[2:], 0, 7))
    assert NS == 5
    for ct in range(2):
        for g4 in range(4):
            r = acc + 16 * ct + 4 * g4
            E('ds_write_b128 v%d, v[%d:%d] offset:%d' % (vRedW, r, r + 3, 128 * ct + 32 * g4))
    e.emit(Drain(['lgkm']))
    stamp('red')
    E('s_barrier')
    rb = wf
    for q in range(4):
        for hf in range(2):
            r = rb + 8 * q + 4 * hf
            E('ds_read_b128 v[%d:%d], v%d offset:%d' % (r, r + 3, vRedR, 17408 * q + 16 * hf))
    for j in range(8):
        E('v_add_f32 v%d, v%d, v%d' % (rb + j, rb + j, rb + 8 + j))
        E('v_add_f32 v%d, v%d, v%d' % (rb + 16 + j, rb + 16 + j, rb + 24 + j))
    for j in range(8):
        E('v_add_f32 v%d, v%d, v%d' % (rb + j, rb + j, rb + 16 + j))
    E('s_mov_b32 s%d, 0x%x' % (sT0, LN2))
    for p in range(4):
        lo, hi = rb + 8 + 2 * p, rb + 9 + 2 * p
        E('v_lshlrev_b32 v%d, 16, v%d' % (lo, vXr + p))
        E('v_and_b32 v%d, 0xffff0000, v%d' % (hi, vXr + p))
        E('v_fmac_f32 v%d, s%d, v%d' % (lo, sT0, rb + 2 * p))
        E('v_fmac_f32 v%d, s%d, v%d' % (hi, sT0, rb + 2 * p + 1))
        E('v_cvt_pk_bf16_f32 v%d, v%d, v%d' % (rb + 16 + p, lo, hi))
    E('buffer_store_dwordx4 v[%d:%d], v%d, s[%d:%d], s%d offen' % (rb + 16, rb + 19, vXo, sOUT, sOUT + 3, sOffO))
    stamp('end')
    s.vT0 = vT0
    s.prof_store(PROF_OFF)
    return va.next
```

```python
import re

TRANS = ('v_exp_f32', 'v_log_f32', 'v_rcp_f32', 'v_rsq_f32', 'v_sqrt_f32', 'v_sin_f32', 'v_cos_f32')
RMW = ('v_fmac_f32', 'v_mac_f32', 'v_dot2c_f32_bf16', 'v_fmac_f16', 'v_pk_fmac_f16', 'v_writelane_b32')

_reg_re = re.compile(r'^(v|s|a)(\d+)$')
_rng_re = re.compile(r'^(v|s|a)\[(\d+):(\d+)\]$')


def regs_of(op):
    op = op.strip()
    neg = op.lstrip('-')
    if neg.startswith('|') and neg.endswith('|'):
        neg = neg[1:-1]
    if neg.startswith('abs(') and neg.endswith(')'):
        neg = neg[4:-1]
    m = _reg_re.match(neg)
    if m:
        return [(m.group(1), int(m.group(2)))]
    m = _rng_re.match(neg)
    if m:
        return [(m.group(1), i) for i in range(int(m.group(2)), int(m.group(3)) + 1)]
    if neg == 'vcc':
        return [('s', 106), ('s', 107)]
    if neg == 'vcc_lo':
        return [('s', 106)]
    if neg == 'vcc_hi':
        return [('s', 107)]
    if neg == 'exec':
        return [('s', 126), ('s', 127)]
    if neg == 'exec_lo':
        return [('s', 126)]
    if neg == 'exec_hi':
        return [('s', 127)]
    if neg == 'm0':
        return [('s', 124)]
    if neg == 'scc':
        return []
    return []


def split_ops(rest):
    ops = []
    cur = ''
    depth = 0
    for ch in rest:
        if ch in '[(':
            depth += 1
        if ch in '])':
            depth -= 1
        if ch == ',' and depth == 0:
            ops.append(cur.strip())
            cur = ''
        else:
            cur += ch
    if cur.strip():
        ops.append(cur.strip())
    mods = ''
    if ops:
        last = ops[-1]
        parts = last.split(None, 1)
        if len(parts) == 2:
            ops[-1] = parts[0]
            mods = parts[1]
        elif len(parts) == 1 and (':' in parts[0] and not parts[0].startswith(('v[', 's[', 'a['))):
            pass
    return ops, mods


MFMA_PASSES = {
    'v_mfma_f32_32x32x16_bf16': 8,
    'v_mfma_f32_16x16x32_bf16': 4,
    'v_mfma_f32_4x4x4_16b_bf16': 2,
}


class Ins:
    __slots__ = ('text', 'op', 'ops', 'mods', 'rd', 'wr', 'kind', 'tag', 'passes', 'mf', 'comment', 'waittags', 'raw', 'lds')

    def __init__(self, text, tag=None, comment=None, lds=None):
        self.text = text.strip()
        self.lds = lds
        self.tag = tag
        self.comment = comment
        self.waittags = None
        self.raw = False
        parts = self.text.split(None, 1)
        self.op = parts[0]
        rest = parts[1] if len(parts) > 1 else ''
        self.ops, self.mods = split_ops(rest)
        self.rd = []
        self.wr = []
        self.passes = 0
        self.mf = None
        self.classify()

    def classify(self):
        op, ops = self.op, self.ops
        base = op
        for suf in ('_e32', '_e64', '_dpp', '_sdwa'):
            if base.endswith(suf):
                base = base[:-len(suf)]
        R = lambda i: regs_of(ops[i]) if i < len(ops) else []
        allr = lambda a, b=None: [r for o in ops[a:b] for r in regs_of(o)]
        if op.endswith(':') or op.startswith('.'):
            self.kind = 'label'
            return
        if op.startswith('v_mfma'):
            self.kind = 'mfma'
            self.passes = MFMA_PASSES[op]
            self.wr = R(0)
            self.rd = R(1) + R(2) + R(3)
            self.mf = (R(0), R(1), R(2), R(3))
        elif op.startswith('v_'):
            self.kind = 'trans' if base in TRANS else 'valu'
            if base.startswith('v_cmp'):
                self.wr = R(0)
                self.rd = allr(1)
                if base.startswith('v_cmpx'):
                    self.wr = self.wr + regs_of('exec')
            elif base in ('v_permlane32_swap_b32', 'v_permlane16_swap_b32'):
                self.wr = R(0) + R(1)
                self.rd = R(0) + R(1)
            elif base in ('v_add_co_u32', 'v_sub_co_u32', 'v_subrev_co_u32'):
                self.wr = R(0) + R(1)
                self.rd = allr(2)
            elif base in ('v_addc_co_u32', 'v_subb_co_u32'):
                self.wr = R(0) + R(1)
                self.rd = allr(2)
            elif base in ('v_nop',):
                pass
            else:
                self.wr = R(0)
                self.rd = allr(1)
                if base in RMW:
                    self.rd = self.rd + R(0)
                if base == 'v_cndmask_b32' and len(ops) == 3:
                    self.rd = self.rd + regs_of('vcc')
            self.rd = self.rd + regs_of('exec')
        elif op.startswith('ds_'):
            self.kind = 'ds'
            if op.startswith(('ds_read', 'ds_bpermute', 'ds_permute', 'ds_swizzle')):
                self.wr = R(0)
                self.rd = allr(1)
            else:
                self.rd = allr(0)
            self.rd = self.rd + regs_of('exec')
        elif op.startswith(('buffer_', 'global_', 'flat_')):
            self.kind = 'vmem'
            islds = ' lds' in (' ' + self.mods) or op.startswith('global_load_lds')
            if op.startswith(('buffer_wbl2', 'buffer_inv')):
                pass
            elif 'atomic' in op:
                ret = 'sc0' in self.mods.split()
                if op.startswith('buffer_'):
                    self.rd = allr(0)
                    if ret:
                        self.wr = R(0)
                else:
                    if ret:
                        self.wr = R(0)
                        self.rd = allr(1)
                    else:
                        self.rd = allr(0)
            elif 'load' in op:
                if islds:
                    self.rd = allr(0) + regs_of('m0')
                    self.kind = 'vmem'
                    self.mf = 'lds'
                else:
                    self.wr = R(0)
                    self.rd = allr(1)
                    if 'd16' in op:
                        self.rd = self.rd + R(0)
            else:
                self.rd = allr(0)
                self.mf = 'store'
            self.rd = self.rd + regs_of('exec')
        elif op.startswith('s_'):
            if op.startswith(('s_load', 's_buffer_load', 's_memtime', 's_memrealtime')):
                self.kind = 'smem'
                self.wr = R(0)
                self.rd = allr(1)
            elif op in ('s_waitcnt', 's_nop', 's_barrier', 's_endpgm', 's_setprio', 's_sleep', 's_branch') or op.startswith('s_cbranch'):
                self.kind = 'sctl'
            elif op.startswith(('s_cmp', 's_bitcmp')):
                self.kind = 'salu'
                self.rd = allr(0)
            else:
                self.kind = 'salu'
                self.wr = R(0)
                self.rd = allr(1)
                if 'saveexec' in op:
                    self.wr = self.wr + regs_of('exec')
                    self.rd = self.rd + regs_of('exec')
                if op in ('s_addk_i32', 's_mulk_i32', 's_cmovk_i32', 's_cmov_b32', 's_cmov_b64', 's_bitset1_b32', 's_bitset0_b32'):
                    self.rd = self.rd + R(0)
        else:
            raise ValueError('unknown instruction ' + self.text)


def I(text, tag=None, comment=None, lds=None):
    return Ins(text, tag, comment, lds)


class WaitTag(Ins):
    def __init__(self, tags, comment=None):
        self.text = ''
        self.op = 'waittag'
        self.kind = 'waittag'
        self.ops = []
        self.mods = ''
        self.rd = []
        self.wr = []
        self.tag = None
        self.passes = 0
        self.mf = None
        self.comment = comment
        self.raw = False
        self.waittags = list(tags)
        self.lds = None


class Drain(Ins):
    def __init__(self, kinds):
        self.text = ''
        self.op = 'drain'
        self.kind = 'drain'
        self.ops = []
        self.mods = ''
        self.rd = []
        self.wr = []
        self.tag = None
        self.passes = 0
        self.mf = None
        self.comment = None
        self.raw = False
        self.waittags = list(kinds)
        self.lds = None


class Fence(Ins):
    def __init__(self):
        self.text = ''
        self.op = 'fence'
        self.kind = 'fence'
        self.ops = []
        self.mods = ''
        self.rd = []
        self.wr = []
        self.tag = None
        self.passes = 0
        self.mf = None
        self.comment = None
        self.raw = False
        self.waittags = None
        self.lds = None


def interleave(main, side, start=0, end=None, every=None):
    n = len(main)
    if end is None:
        end = n
    slots = end - start
    out = []
    si = 0
    ns = len(side)
    for i, ins in enumerate(main):
        out.append(ins)
        if start <= i < end:
            k = i - start + 1
            target = (ns * k + slots - 1) // slots if every is None else min(ns, k * every)
            while si < target:
                out.append(side[si])
                si += 1
    out.extend(side[si:])
    return out


class Emitter:
    def __init__(self):
        self.out = []
        self.hist = []
        self.state = 0
        self.vm = []
        self.lg = []
        self.nnop = 0
        self.nins = 0
        self.done_tags = set()
        self.stats = {}
        self.ldsops = []
        self.bars = []
        self.ldserr = []

    def fork(self):
        import copy
        n = Emitter()
        n.hist = list(self.hist)
        n.state = self.state
        m = {}
        n.ldsops = []
        for o in self.ldsops:
            c = dict(o); m[id(o)] = c; n.ldsops.append(c)
        def cp(q):
            out = []
            for e in q:
                c = dict(e)
                if c.get('lo') is not None: c['lo'] = m[id(c['lo'])]
                out.append(c)
            return out
        n.vm = cp(self.vm); n.lg = cp(self.lg)
        n.nnop = self.nnop; n.nins = self.nins
        n.done_tags = set(self.done_tags)
        n.stats = dict(self.stats)
        n.bars = list(self.bars)
        n.ldserr = self.ldserr
        return n

    def _lds_issue(self, ins):
        kind, ranges, name = ins.lds[0], ins.lds[1], ins.lds[2]
        priv = len(ins.lds) > 3 and ins.lds[3]
        if isinstance(ranges, tuple): ranges = [ranges]
        p = self.nins
        lastw = {}
        for o in self.ldsops:
            ov = False
            for (a, b) in ranges:
                for (c, d) in o['r']:
                    if a < d and c < b:
                        ov = True
                        if o['k'] == 'w': lastw[(a, b)] = o
            if not ov: continue
            if kind == 'r' and o['k'] == 'r': continue
            if kind == 'w' and o['k'] == 'w' and o['n'] == name: continue
            ok = o['done'] is not None and ((priv and o['p']) or any(o['done'] <= b < p for b in self.bars))
            if not ok:
                self.ldserr.append('LDS hazard: %s %s %s [%s] vs earlier %s %s %s [%s] done=%s' % (kind, name, ranges, ins.text, o['k'], o['n'], o['r'], o['t'], o['done']))
        if kind == 'r':
            names = name if isinstance(name, (list, set)) else [name]
            for rg in ranges:
                w = lastw.get(rg)
                if w is None or w['n'] not in names:
                    self.ldserr.append('LDS content: read %s %s [%s] sees %s' % (name, rg, ins.text, None if w is None else w['n']))
        o = {'k': kind, 'r': list(ranges), 'n': name if not isinstance(name, (list, set)) else tuple(name), 'p': priv, 'done': None, 't': ins.text}
        self.ldsops.append(o)
        return o

    def _emit_wait(self, vmc=None, lgc=None):
        parts = []
        if vmc is not None:
            vmc = min(vmc, 63)
            parts.append('vmcnt(%d)' % vmc)
            self.vm = self._retire(self.vm, vmc)
        if lgc is not None:
            lgc = min(lgc, 15)
            parts.append('lgkmcnt(%d)' % lgc)
            self.lg = self._retire(self.lg, lgc)
        if parts:
            self._raw('s_waitcnt ' + ' '.join(parts))

    def _retire(self, q, keep):
        if keep >= len(q):
            return q
        for e in q[:len(q) - keep]:
            if e['tag'] is not None:
                self.done_tags.add(e['tag'])
            if e.get('lo') is not None:
                e['lo']['done'] = self.nins
        return q[len(q) - keep:] if keep > 0 else []

    def _raw(self, text, states=1):
        self.out.append('\t' + text)
        self.state += states
        self.nins += 1

    def _need_waits(self, regs):
        regs = set(regs)
        vmc = lgc = None
        for idx, e in enumerate(self.vm):
            if regs & e['wr']:
                c = len(self.vm) - 1 - idx
                vmc = c if vmc is None else min(vmc, c)
        smem_pending = any(e['smem'] for e in self.lg)
        for idx, e in enumerate(self.lg):
            if regs & e['wr']:
                c = len(self.lg) - 1 - idx
                if smem_pending:
                    c = 0
                lgc = c if lgc is None else min(lgc, c)
        return vmc, lgc

    def _hazard(self, ins):
        need = 0
        rd = set(ins.rd)
        wr = set(ins.wr)
        isvalu = ins.kind in ('valu', 'trans')
        base = ins.op
        for p, st in reversed(self.hist):
            age = self.state - st - 1
            if age > 20:
                break
            req = 0
            pw = set(p.wr)
            if p.kind == 'mfma':
                P = p.passes
                D, A, B, C = p.mf
                Dset = set(D)
                if ins.kind == 'mfma':
                    D2, A2, B2, C2 = ins.mf
                    if Dset & (set(A2) | set(B2)):
                        req = max(req, {2: 5, 4: 8, 8: 12}[P])
                    if Dset & set(C2):
                        if C2 == D and ins.passes == P:
                            req = max(req, 2 if P == 2 else 0)
                        else:
                            req = max(req, {2: 4, 4: 6, 8: 10}[P])
                    if Dset & set(D2) and not (C2 == D and ins.passes == P and D2 == D):
                        req = max(req, {2: 5, 4: 8, 8: 12}[P])
                elif ins.kind in ('valu', 'trans', 'ds', 'vmem'):
                    if Dset & (rd | wr):
                        req = max(req, {2: 5, 4: 8, 8: 12}[P])
                    if isvalu and set(C) & wr:
                        req = max(req, {2: 1, 4: 3, 8: 7}[P])
            elif p.kind in ('valu', 'trans'):
                pv = {r for r in pw if r[0] in 'va'}
                ps = {r for r in pw if r[0] == 's'}
                if ins.kind == 'mfma' and pv & rd:
                    req = max(req, 2)
                if ins.kind == 'mfma' and (('s', 126) in ps or ('s', 127) in ps):
                    req = max(req, 4)
                if p.kind == 'trans' and ins.kind == 'valu' and pv & rd:
                    req = max(req, 1)
                if p.kind == 'trans' and ins.kind in ('ds', 'vmem') and pv & rd:
                    req = max(req, 1)
                if isvalu and ps & (rd - {('s', 126), ('s', 127)}):
                    req = max(req, 2)
                if isvalu and base.startswith(('v_readlane', 'v_writelane')) and ps & rd:
                    req = max(req, 4)
                if ins.kind == 'vmem' and ps & rd:
                    req = max(req, 5)
                if base.startswith(('v_readfirstlane', 'v_readlane')) and pv & rd:
                    req = max(req, 1)
                if base.startswith('v_permlane') and pv & rd:
                    req = max(req, 2)
                if ('dpp' in ins.text or 'row_' in ins.mods or 'quad_perm' in ins.mods) and pv & rd:
                    req = max(req, 2)
                if p.op.startswith('v_cmpx'):
                    if base.startswith(('v_readfirstlane', 'v_readlane', 'v_permlane')):
                        req = max(req, 4)
                if (('s', 126) in ps) and ('dpp' in ins.text):
                    req = max(req, 5)
            elif p.kind == 'salu':
                if ('s', 124) in pw and ins.kind == 'vmem' and ins.mf == 'lds':
                    req = max(req, 1)
            elif p.kind == 'vmem' and p.mf == 'store' and ('x4' in p.op or 'x3' in p.op):
                data = set(regs_of(p.ops[0])) if p.op.startswith('buffer_') else set(regs_of(p.ops[1]))
                if data & wr:
                    req = max(req, 2)
            need = max(need, req - age)
        return need

    def nop(self, n):
        while n > 0:
            k = min(n, 16)
            self._raw('s_nop %d' % (k - 1), states=k)
            self.nnop += 1
            n -= k

    def emit(self, ins):
        if isinstance(ins, str):
            ins = Ins(ins)
        if isinstance(ins, (list, tuple)):
            for i in ins:
                self.emit(i)
            return
        k = ins.kind
        if k == 'label':
            self.out.append(ins.text)
            return
        if k == 'waittag':
            vmc = lgc = None
            for t in ins.waittags:
                found = False
                for idx, e in enumerate(self.vm):
                    if e['tag'] == t:
                        c = len(self.vm) - 1 - idx
                        vmc = c if vmc is None else min(vmc, c)
                        found = True
                for idx, e in enumerate(self.lg):
                    if e['tag'] == t:
                        c = len(self.lg) - 1 - idx
                        if any(x['smem'] for x in self.lg):
                            c = 0
                        lgc = c if lgc is None else min(lgc, c)
                        found = True
                if not found and t not in self.done_tags:
                    raise ValueError('waittag %r: never issued' % (t,))
            self._emit_wait(vmc, lgc)
            return
        if k == 'drain':
            vmc = 0 if ('vm' in ins.waittags and self.vm) else None
            lgc = None
            if 'lgkm' in ins.waittags and self.lg:
                lgc = 0
            if 'ldsw' in ins.waittags:
                last = None
                for idx, e in enumerate(self.lg):
                    if e.get('ldsw'):
                        last = idx
                if last is not None:
                    c = len(self.lg) - 1 - last
                    if any(x['smem'] for x in self.lg):
                        c = 0
                    lgc = c if lgc is None else min(lgc, c)
            self._emit_wait(vmc, lgc)
            return
        if k == 'fence':
            need = 0
            for p, st in reversed(self.hist):
                age = self.state - st - 1
                if age > 20:
                    break
                if p.kind == 'mfma':
                    need = max(need, {2: 5, 4: 8, 8: 12}[p.passes] - age)
                elif p.kind in ('valu', 'trans'):
                    need = max(need, (5 if any(r[0] == 's' for r in p.wr) else 2) - age)
                elif p.kind == 'salu':
                    need = max(need, 1 - age)
                elif p.kind == 'vmem' and p.mf == 'store':
                    need = max(need, 2 - age)
            self.nop(need)
            return
        vmc, lgc = self._need_waits(ins.rd + ins.wr)
        if vmc is not None or lgc is not None:
            self._emit_wait(vmc, lgc)
        if ins.op == 's_waitcnt':
            m = re.search(r'vmcnt\((\d+)\)', ins.text)
            if m:
                self.vm = self._retire(self.vm, int(m.group(1)))
            m = re.search(r'lgkmcnt\((\d+)\)', ins.text)
            if m:
                self.lg = self._retire(self.lg, int(m.group(1)))
        n = self._hazard(ins)
        if n > 0:
            self.nop(n)
        self.hist.append((ins, self.state))
        if len(self.hist) > 40:
            self.hist = self.hist[-40:]
        t = ins.text + (('    ; ' + ins.comment) if ins.comment else '')
        if ins.op == 's_nop':
            self._raw(t, states=int(ins.ops[0]) + 1)
        else:
            self._raw(t)
        self.stats[ins.kind] = self.stats.get(ins.kind, 0) + 1
        lo = self._lds_issue(ins) if ins.lds else None
        if ins.op == 's_barrier':
            self.bars.append(self.nins)
        if k == 'vmem':
            self.vm.append({'tag': ins.tag, 'wr': set(ins.wr), 'smem': False, 'lo': lo})
            if len(self.vm) > 63:
                self._emit_wait(vmc=62)
        elif k == 'ds':
            self.lg.append({'tag': ins.tag, 'wr': set(ins.wr), 'smem': False, 'ldsw': not ins.op.startswith('ds_read'), 'lo': lo})
        elif k == 'smem':
            self.lg.append({'tag': ins.tag, 'wr': set(ins.wr), 'smem': True})

    def comment(self, text):
        self.out.append('\t; ' + text)

    def text(self):
        return '\n'.join(self.out) + '\n'


class RegAlloc:
    def __init__(self, kind, start, limit):
        self.kind = kind
        self.next = start
        self.limit = limit
        self.names = {}

    def alloc(self, n=1, align=1, name=None):
        b = (self.next + align - 1) // align * align
        self.next = b + n
        assert self.next <= self.limit, 'out of %s regs (%s)' % (self.kind, name)
        if name:
            self.names[name] = (b, n)
        return b


def vr(b, n=1):
    return 'v%d' % b if n == 1 else 'v[%d:%d]' % (b, b + n - 1)


def sr(b, n=1):
    return 's%d' % b if n == 1 else 's[%d:%d]' % (b, b + n - 1)
```

```python
from common import *
import os, struct
from collections import defaultdict

XF = set(os.environ.get('XF', '').split(',')) | {'nopf2', 'nopfx', 'nopfw'} - set(os.environ.get('YF', '').split(','))
P = lambda k, d: int(os.environ.get(k, d))

FLAGS_OFF = 0x0
KFLAGS_OFF = 0x40000
KVP_OFF = 0x80000
ACT_OFF = 0x200000
WS_BYTES = ACT_OFF + 64 * 144 * 1024
PROF_OFF = 0x2000000
RINGA = 114688
MISC = 155648
M_CS = MISC
M_ST = MISC + 4096
LOG2E = 0x3fb8aa3b
LN2 = 0x3f317218
BIGNEG = 0xf149f2ca


def f2u(x):
    return struct.unpack('<I', struct.pack('<f', x))[0]


def cost(it):
    if isinstance(it, (list, tuple)):
        return sum(cost(x) for x in it)
    k = it.kind
    if k == 'mfma': return 8 if it.passes == 8 else 2
    if k == 'trans': return 2
    if k in ('waittag', 'drain', 'fence', 'label'): return 0
    return 1


class TL:
    def __init__(self):
        self.g = defaultdict(lambda: {'pre': [], 'm': [], 'd': [], 'x': [], 'v': [], 'z': []})

    def add(self, f, key, it):
        lst = self.g[f][key]
        if isinstance(it, list): lst.extend(it)
        else: lst.append(it)

    def load(self, f):
        g = self.g[f]
        return cost(g['v']) + cost(g['x']) + cost(g['z'])

    def place(self, items, f0, f1, key='v'):
        gaps = list(range(f0, f1 + 1))
        cur = [self.load(f) for f in gaps]
        tot = sum(cost(i) for i in items)
        lo, hi = 0.0, max(cur) + tot + 1.0
        for _ in range(40):
            mid = (lo + hi) / 2
            if sum(max(0.0, mid - c) for c in cur) >= tot: hi = mid
            else: lo = mid
        room = [max(0.0, hi - c) for c in cur]
        i = 0; acc = 0.0; used = 0.0
        for gi, f in enumerate(gaps):
            acc += room[gi]
            while i < len(items) and (used + cost(items[i]) / 2.0 <= acc + 1e-6 or gi == len(gaps) - 1):
                it = items[i]
                self.g[f][key].extend(it if isinstance(it, (list, tuple)) else [it])
                used += cost(it); i += 1
        assert i == len(items)

    def emit(self, e, f0, f1):
        for f in range(f0, f1):
            g = self.g[f]
            for key in ('pre', 'm', 'd', 'x', 'v', 'z'):
                e.emit(g[key])
            self.g[f] = {'pre': [], 'm': [], 'd': [], 'x': [], 'v': [], 'z': []}


class K:
    def __init__(self, label, prof=False):
        self.e = Emitter()
        self.label = label
        self.prof = prof
        self.tl = TL()
        self.sX, self.sW, self.sWS, self.sB = 8, 12, 16, 20
        self.sW2, self.sWO, self.sOUT = 68, 72, 76
        (self.sWv, self.sT, self.sG, self.sRb, self.sJ, self.sM0x, self.sM0w, self.sXoff) = range(24, 32)
        self.sT0, self.sT1, self.sT2, self.sT3 = 32, 33, 34, 35
        self.sWc = [36, 37, 38]
        self.sWs = 39
        self.sSt, self.sStS = 40, 41
        self.sM = [42, 44, 46]
        self.sMh = 48
        self.sPi, self.sK = 50, 51
        self.pX, self.pWQKV, self.pWPHI, self.pWO, self.pW1, self.pB1, self.pW2, self.pOUT, self.pDBG, self.pWS = 52, 54, 56, 58, 60, 62, 64, 66, 96, 98
        self.sTokB = 100
        self.sFlagOff = 101
        self.sStride = 3
        self.sTb, self.sCb, self.sIdle = 4, 5, 6
        self.sPollOff = 7
        self.sQ = [80, 81, 82, 83]
        self.sQo = [84, 85, 86, 87]
        self.sAct, self.sActO, self.sOffO = 88, 89, 94
        self.sKsel = 95
        self.ringperm = [0, 1, 4, 2, 3]
        self.sK64 = 93
        self.sMaskA, self.sSp, self.sKq, self.sTh = 52, 53, 54, 55
        self.sGat, self.sKvp, self.sKFlag, self.sKPoll = 56, 57, 58, 59
        self.sMl30 = 60
        self.vOffW, self.vLane16, self.vOffS = 1, 2, 3
        self.xfA, self.xfB = 4, 60
        self.acc = [116, 132]
        self.ring = 148
        va = self.va = RegAlloc('v', 180, 255)
        A = va.alloc
        self.csacc = A(4, 4); self.augA = A(4, 4); self.augB = A(4, 4)
        self.pool = A(24, 4)
        self.ones = A(2, 2)
        self.vTr = [A() for _ in range(4)]
        self.vC = A(); self.vCSw = A(); self.vCSr = A()
        self.vT0 = A(); self.vT1 = A(); self.vT2 = A(); self.vT3 = A()
        self.vTok = A(); self.vPoll = A(); self.vPollA = A()
        self.vPF = A()
        self.vL4 = self.vPF
        self.vPFW = self.vPoll
        self.pfw_late = []
        pool = self.pool
        self.sumacc = pool; self.sqacc = pool + 4
        self.vXa = [pool + 8 + i for i in range(4)]
        self.vOffX = [pool + 12, pool + 13]
        self.vSTw = pool + 14; self.vSTr = pool + 15
        self.tE = pool + 16
        self.pk = pool
        self.nstamp = 0
        self.names = []
        self._uid = 0

    def E(self, text, tag=None, lds=None):
        self.e.emit(I(text, tag, lds=lds))

    def emit(self, x):
        self.e.emit(x)

    def R(self, text):
        self.e._raw(text)

    def L(self, name):
        self.e.out.append(name + ':')

    def capture(self, fn, *a, **k):
        rec = Rec(); old = self.e; self.e = rec
        try: fn(*a, **k)
        finally: self.e = old
        return rec.items

    def pf(self, voff, srd_, off=0, lanes=None):
        ld = I('buffer_load_dword v%d, v%d, s[%d:%d], 0 offen%s' % (self.vPF, voff, srd_, srd_ + 3, (' offset:%d' % off) if off else ''))
        ld.wr = []
        if lanes is None: return [ld]
        if lanes <= 32:
            pre = [I('s_mov_b64 exec, 0x%x' % ((1 << lanes) - 1 if lanes < 32 else 0) if lanes < 32 else 's_mov_b32 exec_hi, 0')]
            assert lanes < 32
        else:
            pre = [I('s_mov_b32 exec_hi, 0x%x' % ((1 << (lanes - 32)) - 1))]
        return pre + [ld, I('s_mov_b64 exec, -1')]

    def pf_code(self):
        s = self; E = s.E
        lab = s.uid('pc')
        E('s_getpc_b64 s[%d:%d]' % (s.sT2, s.sT3))
        s.L(lab)
        E('s_lshr_b32 s%d, s2, 3' % s.sT0)
        E('s_lshl_b32 s%d, s%d, 3' % (s.sT0, s.sT0))
        E('s_add_u32 s%d, s%d, s%d' % (s.sT0, s.sT0, s.sWv))
        E('s_lshl_b32 s%d, s%d, 7' % (s.sT0, s.sT0))
        E('s_min_u32 s%d, s%d, %s_last-%s' % (s.sT0, s.sT0, s.label, lab))
        E('v_mov_b32 v%d, s%d' % (s.vT1, s.sT0))
        ld = I('global_load_dword v%d, v%d, s[%d:%d]' % (s.vPoll, s.vT1, s.sT2, s.sT3)); ld.wr = []
        s.emit(ld)

    def pf_x(self):
        s = self
        o = [I('s_lshr_b32 s%d, s2, 6' % s.sT0),
             I('s_lshl_b32 s%d, s%d, 3' % (s.sT0, s.sT0)),
             I('s_add_u32 s%d, s%d, s%d' % (s.sT0, s.sT0, s.sWv)),
             I('s_mul_i32 s%d, s%d, %d' % (s.sT0, s.sT0, 4 * 896)),
             I('s_add_u32 s%d, s%d, s%d' % (s.sT0, s.sT0, s.sXoff)),
             I('v_mul_u32_u24 v%d, 896, v0' % s.vT0),
             I('v_add_u32 v%d, s%d, v%d' % (s.vT0, s.sT0, s.vT0)),
             I('s_mov_b64 exec, 15')]
        for c in range(1, 7): o += s.pf(s.vT0, s.sX, 128 * c)
        o.append(I('s_mov_b64 exec, -1'))
        return o

    def pf_w_addr(self, ffn, dst):
        s = self
        t = s.vT1
        o = [I('s_mul_i32 s%d, s%d, 7' % (s.sT0, s.sWv)),
             I('v_add_u32 v%d, s%d, v0' % (t, s.sT0)),
             I('v_lshrrev_b32 v%d, 2, v%d' % (dst, t)),
             I('s_lshr_b32 s%d, s2, 3' % s.sT0),
             I('s_mul_i32 s%d, s%d, 14' % (s.sT0, s.sT0)),
             I('v_add_u32 v%d, s%d, v%d' % (dst, s.sT0, dst)),
             I('v_mul_u32_u24 v%d, s%d, v%d' % (dst, s.sStride, dst)),
             I('s_bfe_u32 s%d, s2, 0x10001' % s.sT0)]
        if ffn:
            o += [I('s_mul_i32 s%d, s%d, 1792' % (s.sT0, s.sT0)),
                  I('v_add_u32 v%d, s%d, v%d' % (dst, s.sT0, dst)),
                  I('v_and_b32 v%d, 1, v%d' % (s.vT2, t)),
                  I('v_lshl_add_u32 v%d, v%d, 6, v%d' % (dst, s.vT2, dst)),
                  I('v_and_b32 v%d, 3, v%d' % (t, t)),
                  I('v_mul_u32_u24 v%d, 448, v%d' % (t, t)),
                  I('v_add_u32 v%d, v%d, v%d' % (dst, t, dst))]
        else:
            o += [I('s_mul_i32 s%d, s%d, 384' % (s.sT0, s.sT0)),
                  I('v_add_u32 v%d, s%d, v%d' % (dst, s.sT0, dst)),
                  I('v_and_b32 v%d, 3, v%d' % (t, t)),
                  I('v_lshl_add_u32 v%d, v%d, 7, v%d' % (dst, t, dst))]
        return o

    def pf_w2(self, t0):
        s = self
        a, b = s.sSp, 92
        def adr(n):
            return [I('s_lshr_b32 s%d, s2, 3' % a),
                    I('s_mul_i32 s%d, s%d, %d' % (a, a, n)),
                    I('s_mul_i32 s%d, s%d, 7' % (b, s.sWv)),
                    I('s_add_u32 s%d, s%d, s%d' % (a, a, b)),
                    I('v_add_u32 v%d, s%d, v0' % (t0, a)),
                    I('v_lshlrev_b32 v%d, 7, v%d' % (t0, t0))]
        lds = []
        for k in range(7):
            lds.append((adr(392) if k == 0 else [I('v_add_u32 v%d, 7168, v%d' % (t0, t0))]) + s.pf(t0, s.sW2, 0, 7))
        for k in range(2):
            lds.append((adr(98) if k == 0 else [I('v_add_u32 v%d, 7168, v%d' % (t0, t0))]) + s.pf(t0, s.sWO, 0, 7))
        return lds

    def uid(self, base):
        K._u = getattr(K, '_u', 0) + 1
        return '%s_%s%d' % (self.label, base, K._u)

    def xf(self, c, q):
        return (self.xfA + 8 * c + 4 * q) if q < 2 else (self.xfB + 8 * c + 4 * (q - 2))

    def slot(self, f):
        return self.ring + 4 * (f % 8)

    def mfma(self, d, a, b, c):
        cs = '0' if c is None else 'v[%d:%d]' % (c, c + 15)
        return I('v_mfma_f32_32x32x16_bf16 v[%d:%d], v[%d:%d], v[%d:%d], %s' % (d, d + 15, a, a + 3, b, b + 3, cs))

    def mfma4(self, d, a, b, first):
        cs = '0' if first else 'v[%d:%d]' % (d, d + 3)
        return I('v_mfma_f32_4x4x4_16b_bf16 v[%d:%d], v[%d:%d], v[%d:%d], %s' % (d, d + 3, a, a + 1, b, b + 1, cs))

    def stamp_ins(self, name):
        if not self.prof:
            return []
        sel = os.environ.get('STAMPS')
        if sel and name not in sel.split(','):
            return []
        i = self.nstamp
        self.nstamp += 1
        assert i < 63
        self.names.append(name)
        return [I('s_memrealtime s[90:91]' if os.environ.get('RT') else 's_memtime s[90:91]'), Drain(['lgkm']), I('s_nop 3'), I('v_writelane_b32 v255, s90, %d' % i)]

    def stamp(self, name):
        self.emit(self.stamp_ins(name))

    def val_ins(self, name, sreg):
        if not self.prof: return []
        sel = os.environ.get('STAMPS')
        if sel and name not in sel.split(','): return []
        i = self.nstamp; self.nstamp += 1
        self.names.append('#' + name)
        return [I('s_nop 3'), I('v_writelane_b32 v255, s%d, %d' % (sreg, i))]

    def prof_store(self):
        if not self.prof:
            return
        E = self.E
        E('s_lshl_b32 s92, s2, 3')
        E('s_add_u32 s92, s92, s%d' % self.sWv)
        E('s_lshl_b32 s92, s92, 8')
        E('s_add_u32 s92, s92, 0x%x' % PROF_OFF)
        E('v_lshlrev_b32 v%d, 2, v0' % self.vT0)
        E('s_mov_b32 s%d, 0x%x' % (self.sWS + 2, 0x4000000))
        E('buffer_store_dword v255, v%d, s[%d:%d], s92 offen' % (self.vT0, self.sWS, self.sWS + 3))

    def wdst(self, r, c):
        if r == 0: return RINGA + self.ringperm[c % 5] * 8192
        if r == 'S': return RINGA + ((c + 2) % 5) * 8192
        return (r - 1) * 57344 + c * 8192

    def dma_x(self, c):
        s = self
        out = []
        for e_ in range(2):
            out.append([I('s_add_u32 m0, s%d, %d' % (s.sM0x, c * 16384 + e_ * 1024 - c * 128)),
                        I('buffer_load_dwordx4 v%d, s[%d:%d], s%d offen offset:%d lds' % (s.vOffX[e_], s.sX, s.sX + 3, s.sXoff, c * 128), tag=('x', c),
                          lds=('w', (c * 16384, c * 16384 + 16384), ('x', c)))])
        return out

    def dma_w(self, r, c):
        s = self
        d = s.wdst(r, c)
        out = [I('s_add_u32 m0, s%d, %d' % (s.sM0w, d))]
        if r == 'S':
            out.append(I('buffer_load_dwordx4 v%d, s[%d:%d], s%d offen lds' % (s.vOffS, s.sW, s.sW + 3, s.sWs), tag=('w', r, c), lds=('w', (d, d + 8192), ('w', r, c))))
            out.append(I('s_add_u32 s%d, s%d, %d' % (s.sWs, s.sWs, 128 * 3584)))
        else:
            out.append(I('buffer_load_dwordx4 v%d, s[%d:%d], s%d offen lds' % (s.vOffW, s.sW, s.sW + 3, s.sWc[r]), tag=('w', r, c), lds=('w', (d, d + 8192), ('w', r, c))))
            out.append(I('s_add_u32 s%d, s%d, s%d' % (s.sWc[r], s.sWc[r], s.sK64)))
        return out

    def barrier(self, tags=(), drain=None, name=None):
        out = []
        if name and os.environ.get('PRE'): out += self.stamp_ins(name + 'a')
        if tags: out.append(WaitTag(list(tags)))
        if drain: out.append(Drain([drain]))
        if name: out += self.stamp_ins(name)
        out.append(I('s_barrier'))
        return out

    def prologue(self):
        E = self.E; s = self
        E('s_load_dwordx8 s[52:59], s[0:1], 0')
        E('s_load_dwordx8 s[60:67], s[0:1], 40')
        E('s_load_dwordx4 s[96:99], s[0:1], 72')
        E('s_cmp_ge_u32 s2, 256')
        E('s_cbranch_scc1 %s_end' % s.label)
        if 'swapx' in XF: E('s_xor_b32 s2, s2, 4')
        E('v_lshrrev_b32 v%d, 6, v0' % s.vT0)
        E('v_and_b32 v0, 63, v0')
        E('v_readfirstlane_b32 s%d, v%d' % (s.sWv, s.vT0))
        if 'nopfc' not in XF: s.pf_code()
        E('s_lshr_b32 s%d, s2, 3' % s.sT1)
        E('s_and_b32 s%d, s2, 1' % s.sT2)
        E('s_lshl_b32 s%d, s%d, 3' % (s.sT2, s.sT2))
        E('s_and_b32 s%d, s%d, 7' % (s.sT3, s.sT1))
        E('s_add_u32 s%d, s%d, s%d' % (s.sRb, s.sT2, s.sT3))
        E('s_and_b32 s%d, s2, 2' % s.sT2)
        E('s_lshl_b32 s%d, s%d, 1' % (s.sT2, s.sT2))
        E('s_lshr_b32 s%d, s%d, 3' % (s.sT3, s.sT1))
        E('s_add_u32 s%d, s%d, s%d' % (s.sJ, s.sT2, s.sT3))
        E('s_mul_i32 s%d, s%d, %d' % (s.sXoff, s.sRb, 128 * 896))
        E('s_lshl_b32 s%d, s%d, 11' % (s.sM0x, s.sWv))
        E('s_lshl_b32 s%d, s%d, 10' % (s.sM0w, s.sWv))
        E('v_lshrrev_b32 v%d, 3, v0' % s.vT0)
        E('v_and_b32 v%d, 7, v0' % s.vT1)
        E('v_lshrrev_b32 v%d, 4, v0' % s.vT2)
        E('v_xor_b32 v%d, v%d, v%d' % (s.vT3, s.vT1, s.vT2))
        E('v_lshlrev_b32 v%d, 4, v%d' % (s.vT3, s.vT3))
        E('s_lshl_b32 s%d, s%d, 4' % (s.sT0, s.sWv))
        E('v_add_u32 v%d, s%d, v%d' % (s.vOffX[1], s.sT0, s.vT0))
        E('s_movk_i32 s%d, 896' % s.sT1)
        E('v_mad_u32_u24 v%d, v%d, s%d, v%d' % (s.vOffX[0], s.vOffX[1], s.sT1, s.vT3))
        E('v_xor_b32 v%d, 64, v%d' % (s.vOffX[1], s.vOffX[0]))
        E('v_add_u32 v%d, %d, v%d' % (s.vOffX[1], 8 * 896, s.vOffX[1]))
        E('v_lshlrev_b32 v%d, 2, v%d' % (s.vT2, s.vT2))
        E('v_and_b32 v%d, 4, v%d' % (s.vT2, s.vT2))
        E('v_xor_b32 v%d, v%d, v%d' % (s.vT1, s.vT1, s.vT2))
        E('s_lshl_b32 s%d, s%d, 3' % (s.sT0, s.sWv))
        E('v_add_u32 v%d, s%d, v%d' % (s.vT0, s.sT0, s.vT0))
        E('s_mul_i32 s%d, s%d, 7' % (s.sT2, s.sJ))
        E('s_and_b32 s%d, s%d, 1' % (s.sT3, s.sJ))
        E('s_add_u32 s%d, s%d, s%d' % (s.sT2, s.sT2, s.sT3))
        E('s_lshl_b32 s%d, s%d, 6' % (s.sT2, s.sT2))
        E('s_lshr_b32 s%d, s%d, 1' % (s.sT3, s.sJ))
        E('s_lshr_b32 s%d, s%d, 2' % (s.sT0, s.sJ))
        E('s_and_b32 s%d, s%d, s%d' % (s.sT3, s.sT3, s.sT0))
        E('s_and_b32 s%d, s%d, 1' % (s.sT3, s.sT3))
        E('s_xor_b32 s%d, s%d, s%d' % (s.sT3, s.sJ, s.sT3))
        E('s_mul_i32 s%d, s%d, 112' % (s.sT0, s.sT3))
        E('s_add_u32 s%d, s%d, 896' % (s.sT0, s.sT0))
        E('s_movk_i32 s%d, 0xe00' % s.sT1)
        E('s_movk_i32 s%d, 0xa80' % s.sK64)
        E('s_bitcmp1_b32 s2, 2')
        if 'allw1' in XF: E('s_cmp_eq_u32 s2, s2')
        E('s_cselect_b32 s%d, s%d, s%d' % (s.sWc[0], s.sT2, s.sT0))
        E('s_cselect_b32 s%d, s%d, s%d' % (s.sJ, s.sJ, s.sT3))
        E('s_cselect_b32 s%d, s%d, s%d' % (s.sStride, s.sT1, s.sK64))
        E('s_cselect_b32 s%d, 8, %d' % (s.sT0, 8 if 'nodis' in XF else 7))
        E('s_cselect_b32 s%d, s%d, s%d' % (s.sW, s.pW1, s.pWQKV))
        E('s_cselect_b32 s%d, s%d, s%d' % (s.sW + 1, s.pW1 + 1, s.pWQKV + 1))
        if 'allwq' in XF:
            E('s_mov_b32 s%d, s%d' % (s.sStride, s.sK64))
            E('s_mov_b32 s%d, s%d' % (s.sW, s.pWQKV))
            E('s_mov_b32 s%d, s%d' % (s.sW + 1, s.pWQKV + 1))
        if 'w1k' in XF:
            E('s_movk_i32 s%d, 0xe00' % s.sStride)
            E('s_mov_b32 s%d, s%d' % (s.sW, s.pW1))
            E('s_mov_b32 s%d, s%d' % (s.sW + 1, s.pW1 + 1))
        E('v_lshlrev_b32 v%d, 4, v%d' % (s.vT2, s.vT1))
        E('v_mad_u32_u24 v%d, v%d, s%d, v%d' % (s.vOffW, s.vT0, s.sStride, s.vT2))
        E('v_cmp_eq_u32 vcc, s%d, v%d' % (s.sT0, s.vT1))
        E('v_mov_b32 v%d, 0x40000000' % s.vT2)
        E('v_cndmask_b32 v%d, v%d, v%d, vcc' % (s.vOffW, s.vOffW, s.vT2))
        E('s_lshl_b32 s%d, s%d, 6' % (s.sK64, s.sStride))
        E('s_mul_i32 s%d, s%d, 448' % (s.sT1, s.sStride))
        srd(s.e, s.sX, s.pX, 2048 * 896)
        E('s_and_b32 s%d, s%d, 0xffff' % (s.sW + 1, s.sW + 1))
        E('s_mov_b32 s%d, s%d' % (s.sW + 2, s.sT1))
        E('s_mov_b32 s%d, 0x00020000' % (s.sW + 3))
        s.stamp('predma')
        n0 = P('N0', 1)
        for c in range(n0):
            s.emit([i for g in s.dma_x(c) for i in g])
            s.emit(s.dma_w(0, c))
        s.rest_dma = [[i for g in s.dma_x(c) for i in g] + s.dma_w(0, c) for c in range(n0, 4)]
        s.stamp('dma')

    def emit_setup(self, items, ffn):
        s = self
        offs = (0, 128, 256) if ffn else (896, 1792, 0)
        if 'nopfw' not in XF:
            s.emit(s.pf_w_addr(ffn, s.vPFW))
            s.emit(s.pf(s.vPFW, s.sW, offs[0], 7))
        s.stamp('pfw')
        if 'nopfx' not in XF: s.emit(s.pf_x())
        s.stamp('pfx')
        if 'nopfw' not in XF:
            late = s.pf(s.vPFW, s.sW, offs[1], 7) + s.pf(s.vPFW, s.sW, offs[2], 7)
            if 'pfw3' in XF: s.emit(late)
            else: s.pfw_late = late
        n = len(s.rest_dma)
        m = len(items)
        fr = [float(x) for x in os.environ.get('RD', '1,1,1').split(',')]
        k = 0
        for idx, it in enumerate(items):
            while k < n and idx >= fr[k] * m:
                s.emit(s.rest_dma[k]); k += 1
            s.emit(it)
        s.stamp('su')
        while k < n:
            s.emit(s.rest_dma[k]); k += 1
            s.stamp('r%d' % k)

    def setup_addrs(self):
        E = self.E; s = self
        E('s_and_b32 s%d, s%d, 3' % (s.sT, s.sWv))
        E('s_lshr_b32 s%d, s%d, 2' % (s.sG, s.sWv))
        E('s_lshl_b32 s%d, s%d, 1' % (s.sPi, s.sG))
        E('s_xor_b32 s%d, s%d, s%d' % (s.sPi, s.sPi, s.sT))
        E('v_lshrrev_b32 v%d, 5, v0' % s.vT0)
        E('s_lshl_b32 s%d, s%d, 1' % (s.sT1, s.sPi))
        E('v_add_u32 v%d, s%d, v%d' % (s.vT1, s.sT1, s.vT0))
        E('v_bfe_u32 v%d, v0, 1, 3' % s.vT2)
        E('v_xor_b32 v%d, v%d, v%d' % (s.vT1, s.vT1, s.vT2))
        E('v_lshlrev_b32 v%d, 4, v%d' % (s.vT1, s.vT1))
        E('v_and_b32 v%d, 31, v0' % s.vT2)
        E('v_lshl_add_u32 v%d, v%d, 7, v%d' % (s.vT1, s.vT2, s.vT1))
        E('s_lshl_b32 s%d, s%d, 12' % (s.sT1, s.sT))
        E('v_add_u32 v%d, s%d, v%d' % (s.vXa[0], s.sT1, s.vT1))
        for q in range(1, 4):
            E('v_xor_b32 v%d, %d, v%d' % (s.vXa[q], q << 5, s.vXa[0]))
        E('v_lshlrev_b32 v%d, 4, v0' % s.vLane16)
        E('v_lshlrev_b32 v%d, 2, v0' % s.vL4)
        E('v_lshlrev_b32 v%d, 7, v0' % s.vPollA)
        E('s_lshl_b32 s%d, s%d, 10' % (s.sT1, s.sG))
        E('s_add_u32 s%d, s%d, %d' % (s.sT1, s.sT1, M_CS))
        E('v_add_u32 v%d, s%d, v%d' % (s.vCSr, s.sT1, s.vLane16))
        E('s_lshl_b32 s%d, s%d, 2' % (s.sT1, s.sT))
        E('v_add_u32 v%d, s%d, v%d' % (s.vCSw, s.sT1, s.vCSr))
        E('s_lshl_b32 s%d, s%d, 10' % (s.sT1, s.sT))
        E('s_add_u32 s%d, s%d, %d' % (s.sT1, s.sT1, M_ST))
        E('v_lshlrev_b32 v%d, 5, v%d' % (s.vT2, s.vT2))
        E('v_add_u32 v%d, s%d, v%d' % (s.vSTr, s.sT1, s.vT2))
        E('s_lshl_b32 s%d, s%d, 4' % (s.sT1, s.sG))
        E('v_lshl_add_u32 v%d, v%d, 3, v%d' % (s.vSTw, s.vT0, s.vSTr))
        E('v_add_u32 v%d, s%d, v%d' % (s.vSTw, s.sT1, s.vSTw))
        E('v_mov_b32 v%d, 0x3f803f80' % s.ones)
        E('v_mov_b32 v%d, 0x3f803f80' % (s.ones + 1))
        E('v_mov_b32 v%d, 0' % (s.augA + 3))
        for k, m in enumerate((0x22222222, 0xcccccccc, 0x88888888)):
            E('s_mov_b32 s%d, 0x%x' % (s.sM[k], m)); E('s_mov_b32 s%d, 0x%x' % (s.sM[k] + 1, m))
        E('s_mov_b32 s%d, 0' % s.sMh); E('s_mov_b32 s%d, -1' % (s.sMh + 1))
        E('s_mov_b32 s%d, 0x%x' % (s.sK, f2u(1.0 / 448)))

    def tr_base(self, dst, vcol, spi, base):
        E = self.E; s = self
        E('v_lshrrev_b32 v%d, 5, v0' % s.vT0)
        E('v_lshlrev_b32 v%d, 10, v%d' % (s.vT0, s.vT0))
        E('v_bfe_u32 v%d, v0, 2, 2' % s.vT1)
        E('v_lshl_add_u32 v%d, v%d, 7, v%d' % (s.vT0, s.vT1, s.vT0))
        E('v_lshlrev_b32 v%d, 3, v0' % s.vT1)
        E('v_and_b32 v%d, 64, v%d' % (s.vT1, s.vT1))
        E('v_xor_b32 v%d, v%d, v%d' % (s.vT1, s.vT1, vcol))
        E('v_add_u32 v%d, v%d, v%d' % (s.vT0, s.vT0, s.vT1))
        E('s_lshl_b32 s%d, s%d, 11' % (s.sT1, spi))
        E('s_add_u32 s%d, s%d, %d' % (s.sT1, s.sT1, base))
        E('v_add_u32 v%d, s%d, v%d' % (dst, s.sT1, s.vT0))

    def lane_col(self, dst):
        E = self.E; s = self
        E('v_and_b32 v%d, 3, v0' % dst)
        E('v_lshlrev_b32 v%d, 3, v%d' % (dst, dst))
        E('v_bfe_u32 v%d, v0, 4, 1' % s.vT3)
        E('v_lshl_add_u32 v%d, v%d, 5, v%d' % (dst, s.vT3, dst))

    def frag_reads(self, f):
        s = self
        r, c, q = f // 28, (f % 28) // 4, f % 4
        d = s.slot(f)
        out = []
        if r == 0 and 'nox' not in XF:
            x = s.xf(c, q)
            out.append(I('ds_read_b128 v[%d:%d], v%d offset:%d' % (x, x + 3, s.vXa[q], (c % 4) * 16384), lds=('r', (c * 16384, c * 16384 + 16384), ('x', c))))
        imm = s.ringperm[c % 5] * 8192 if r == 0 else c * 8192
        a = s.wdst(r, c)
        an = ('r', (a, a + 8192), ('w', r, c))
        out.append(I('ds_read_b64_tr_b16 v[%d:%d], v%d offset:%d' % (d, d + 1, s.vTr[q], imm), lds=an))
        out.append(I('ds_read_b64_tr_b16 v[%d:%d], v%d offset:%d' % (d + 2, d + 3, s.vTr[q], imm + 512), lds=an))
        return out

    def rounds(self, swap=(False, False, False), nr=3):
        s = self; tl = s.tl
        for f in range(28 * nr):
            r, c, q = f // 28, (f % 28) // 4, f % 4
            tl.add(f - 4, 'd', s.frag_reads(f))
            acc = s.acc[r % 2]
            x = s.xf(c, q); w = s.slot(f)
            cs = None if (c == 0 and q == 0) else acc
            tl.add(f, 'm', s.mfma(acc, x, w, cs) if swap[r] else s.mfma(acc, w, x, cs))
            if q == 0:
                c0 = s.mfma4(s.csacc, s.ones, w, c == 0)
                c1 = s.mfma4(s.csacc, s.ones, w + 2, False)
                zk = 'z' if 'm4end' in XF else 'v'
                if c < 6:
                    tl.add(f, zk, c0); tl.add(f + 1, zk, c1)
                else:
                    tl.add(f - 3, zk, c0); tl.add(f - 2, zk, c1)
            if r == 0 and q < 2 and 'nostat' not in XF:
                fst = (c == 0 and q == 0)
                ff = f if c < 6 else f - 3 + 0
                if c < 6:
                    tl.add(f, 'v', [s.mfma4(s.sumacc, s.ones, x, fst), s.mfma4(s.sqacc, x, x, fst)])
                    tl.add(f + 2, 'v', [s.mfma4(s.sumacc, s.ones, x + 2, False), s.mfma4(s.sqacc, x + 2, x + 2, False)])
                else:
                    g0 = 22 + q - 0
                    tl.add(22 if q == 0 else 23, 'v', [s.mfma4(s.sumacc, s.ones, x, False), s.mfma4(s.sqacc, x, x, False),
                                                       s.mfma4(s.sumacc, s.ones, x + 2, False), s.mfma4(s.sqacc, x + 2, x + 2, False)])
            if c == 6 and r < nr - 1:
                delta = (-RINGA if r == 0 else 57344) & 0xffffffff
                tl.add(f - 4 + 1, 'v', I('v_add_u32 v%d, 0x%x, v%d' % (s.vTr[q], delta, s.vTr[q])))
            if r == 0 and c == 3:
                tl.add(f - 4 + 1, 'v', I('v_add_u32 v%d, 0x10000, v%d' % (s.vXa[q], s.vXa[q])))
        for r in range(nr):
            g = 28 * r + 23
            if r == 0: tl.add(g, 'v', s.stats_write())
            tl.add(g, 'v', s.cs_write(r))
        tl.add(-4, 'pre', s.barrier([('x', 0), ('w', 0, 0)], name='c0'))
        for st in range(1, 7):
            if 'nobar0' in XF: continue
            tl.add(4 * (st - 1), 'pre', s.barrier([('x', st), ('w', 0, st)] if 'nowait0' not in XF else [], name=('c%d' % st if (st in (3, 6) or os.environ.get('PRE')) else None)))

    def stats_write(self):
        s = self
        q = s.sqacc
        return [I('v_cndmask_b32 v%d, v%d, v%d, s[%d:%d]' % (q, q, q + 1, s.sM[0], s.sM[0] + 1)),
                I('v_cndmask_b32 v%d, v%d, v%d, s[%d:%d]' % (q + 2, q + 2, q + 3, s.sM[2], s.sM[2] + 1)),
                I('v_cndmask_b32 v%d, v%d, v%d, s[%d:%d]' % (s.sumacc + 1, q, q + 2, s.sM[1], s.sM[1] + 1)),
                I('ds_write_b64 v%d, v[%d:%d]' % (s.vSTw, s.sumacc, s.sumacc + 1), lds=('w', (M_ST, M_ST + 4096), 'st'))]

    def cs_write(self, r):
        s = self
        a = M_CS + (r % 2) * 2048
        return [I('ds_write_b32 v%d, v%d offset:%d' % (s.vCSw, s.csacc, (r % 2) * 2048), lds=('w', (a, a + 2048), ('cs', r)))]

    def stats_read(self, t):
        s = self
        o = []
        an = ('r', (M_ST, M_ST + 4096), 'st')
        o.append(I('ds_read_b128 v[%d:%d], v%d' % (t, t + 3, s.vSTr), lds=an))
        o.append(I('ds_read_b128 v[%d:%d], v%d offset:16' % (t + 4, t + 7, s.vSTr), lds=an))
        o.append(I('v_add_f32 v%d, v%d, v%d' % (t, t, t + 2)))
        o.append(I('v_add_f32 v%d, v%d, v%d' % (t + 4, t + 4, t + 6)))
        o.append(I('v_add_f32 v%d, v%d, v%d' % (t + 1, t + 1, t + 3)))
        o.append(I('v_add_f32 v%d, v%d, v%d' % (t + 5, t + 5, t + 7)))
        o.append(I('v_add_f32 v%d, v%d, v%d' % (t, t, t + 4)))
        o.append(I('v_add_f32 v%d, v%d, v%d' % (t + 1, t + 1, t + 5)))
        o.append(I('v_mul_f32 v%d, s%d, v%d' % (t, s.sK, t)))
        o.append(I('v_mul_f32 v%d, v%d, v%d' % (t + 2, t, t)))
        o.append(I('v_fma_f32 v%d, v%d, s%d, -v%d' % (t + 1, t + 1, s.sK, t + 2)))
        o.append(I('v_max_f32 v%d, 0, v%d' % (t + 1, t + 1)))
        o.append(I('v_add_f32 v%d, 0x%x, v%d' % (t + 1, f2u(1e-5), t + 1)))
        o.append(I('v_rsq_f32 v%d, v%d' % (t + 7, t + 1)))
        o.append(I('v_cvt_pk_bf16_f32 v%d, v%d, v%d' % (t + 2, t, t)))
        o.append(I('v_and_b32 v%d, 0xffff0000, v%d' % (t + 2, t + 2)))
        o.append(I('v_sub_f32 v%d, v%d, v%d' % (t + 2, t, t + 2)))
        o.append(I('v_cvt_pk_bf16_f32 v%d, v%d, v%d' % (s.augB, t, t + 2)))
        o.append(I('v_mul_f32 v%d, v%d, v%d' % (t + 1, t + 1, t + 7)))
        o.append(I('v_mul_f32 v%d, 0x%x, v%d' % (s.vC, LOG2E, t + 7)))
        o.append(I('v_cndmask_b32 v%d, v%d, 0, s[%d:%d]' % (t + 1, t + 1, s.sMh, s.sMh + 1)))
        o.append(I('v_cvt_pk_bf16_f32 v%d, v%d, v%d' % (t + 3, t + 1, t + 1)))
        o.append(I('v_and_b32 v%d, 0xffff0000, v%d' % (t + 3, t + 3)))
        o.append(I('v_sub_f32 v%d, v%d, v%d' % (t + 3, t + 1, t + 3)))
        o.append(I('v_cvt_pk_bf16_f32 v%d, v%d, v%d' % (s.augB + 1, t, t + 1)))
        o.append(I('v_cvt_pk_bf16_f32 v%d, v%d, 0' % (s.augB + 2, t + 3)))
        o.append(I('v_mov_b32 v%d, 0' % (s.augB + 3)))
        return o

    def cs_read(self, r, t):
        s = self
        a = M_CS + (r % 2) * 2048
        return [I('ds_read_b128 v[%d:%d], v%d offset:%d' % (t, t + 3, s.vCSr, (r % 2) * 2048), lds=('r', (a, a + 2048), ('cs', r))),
                I('v_add_f32 v%d, v%d, v%d' % (t, t, t + 1)),
                I('v_add_f32 v%d, v%d, v%d' % (t + 2, t + 2, t + 3)),
                I('v_add_f32 v%d, v%d, v%d' % (t, t, t + 2))]

    def tok_write(self):
        s = self; R = s.R
        lab = s.uid('tw')
        s.e.emit(Fence())
        R('s_or_b32 s%d, s2, s%d' % (s.sT0, s.sWv))
        R('s_cbranch_scc1 %s' % lab)
        R('s_memrealtime s[%d:%d]' % (s.sT2, s.sT3))
        R('v_mov_b32 v%d, 0' % s.vT3)
        R('s_waitcnt lgkmcnt(0)')
        R('s_or_b32 s%d, s%d, 1' % (s.sT2, s.sT2))
        R('v_mov_b32 v%d, s%d' % (s.vTok, s.sT2))
        R('s_mov_b64 exec, 1')
        R('global_store_dword v%d, v%d, s[%d:%d] sc1' % (s.vT3, s.vTok, s.pDBG, s.pDBG + 1))
        R('s_mov_b64 exec, -1')
        R('s_nop 1')
        s.L(lab)

    def tok_load(self):
        s = self
        return [[I('v_mov_b32 v%d, 0' % s.vTok),
                 I('global_load_dword v%d, v%d, s[%d:%d] sc1' % (s.vTok, s.vTok, s.pDBG, s.pDBG + 1), tag='tok')]]

    def raw(self, lines):
        r = Ins('s_nop 0'); r.kind = 'rawblock'; r.ops = lines
        return r

    def tok_resolve(self):
        s = self
        lp = s.uid('tr'); ok = s.uid('tk')
        return [Raw(['v_readfirstlane_b32 s%d, v%d' % (s.sTokB, s.vTok),
                     's_mov_b32 s%d, 0' % s.sSp,
                     's_nop 2',
                     lp + ':',
                     's_cmp_lg_u32 s%d, 0' % s.sTokB,
                     's_cbranch_scc1 ' + ok,
                     'v_mov_b32 v%d, 0' % s.vTok,
                     'global_load_dword v%d, v%d, s[%d:%d] sc1' % (s.vTok, s.vTok, s.pDBG, s.pDBG + 1),
                     's_waitcnt vmcnt(0)',
                     'v_readfirstlane_b32 s%d, v%d' % (s.sTokB, s.vTok),
                     's_add_u32 s%d, s%d, 1' % (s.sSp, s.sSp),
                     's_cmp_lt_u32 s%d, 0x1000' % s.sSp,
                     's_cbranch_scc1 ' + lp,
                     ok + ':',
                     's_and_b32 s%d, s%d, -8' % (s.sTokB, s.sTokB),
                     's_add_u32 s%d, s%d, 1' % (s.sTokB, s.sTokB)],
                    rd=[s.vTok], wr=[s.vTok], waits=['tok'])]

    def flag_store(self, level, soff, after, vt, w0=False):
        s = self
        va = s.vL4
        pre = []
        if w0:
            va = s.vT2
            pre = [I('v_add_u32 v%d, s%d, v%d' % (va, s.sKsel, s.vL4))]
        st = [I('s_mov_b32 exec_hi, 0'),
              I('buffer_store_dword v%d, v%d, s[%d:%d], s%d offen sc1' % (vt, va, s.sWS, s.sWS + 3, soff))]
        return [WaitTag(list(after)) if after else [],
                pre + [I('s_add_u32 s%d, s%d, %d' % (s.sSp, s.sTokB, level)),
                 I('v_mov_b32 v%d, s%d' % (vt, s.sSp))] + st +
                [I('s_mov_b64 exec, -1')]]

    def poll_where(self, kind):
        s = self
        if kind == 'K': return s.sKPoll, 0, 0xffff, 's%d' % s.sMaskA
        return s.sPollOff, (2048 if kind == 'F' else 0), 0xf, '15'

    def poll_issue(self, tag, kind):
        s = self
        soff, off, ex, _ = s.poll_where(kind)
        if kind == 'K':
            return [I('v_add_u32 v%d, s%d, v%d' % (s.vT2, s.sKsel, s.vPollA)),
                    I('s_mov_b64 exec, 0x%x' % ex),
                    I('buffer_load_dword v%d, v%d, s[%d:%d], s%d offen offset:%d sc1' % (s.vTok, s.vT2, s.sWS, s.sWS + 3, soff, off), tag=tag),
                    I('s_mov_b64 exec, -1')]
        return [I('s_mov_b64 exec, 0x%x' % ex),
                I('buffer_load_dword v%d, v%d, s[%d:%d], s%d offen offset:%d sc1' % (s.vPoll, s.vPollA, s.sWS, s.sWS + 3, soff, off), tag=tag),
                I('s_mov_b64 exec, -1')]

    def poll_check(self, tag, level, kind):
        s = self
        soff, off, ex, mask = s.poll_where(kind)
        va, vv, vt = s.vPollA, (s.vTok if kind == 'K' else s.vPoll), s.vT3
        lp = s.uid('pl'); ok = s.uid('pk')
        pre = ['s_mov_b32 s%d, 0' % s.sSp]
        if kind == 'K':
            pre += ['s_cmp_lg_u32 s%d, 0' % s.sWv, 's_cbranch_scc1 ' + ok]
        return [Raw(pre + ['s_add_u32 s%d, s%d, %d' % (s.sT3, s.sTokB, level),
                     lp + ':',
                     'v_subrev_u32 v%d, s%d, v%d' % (vt, s.sT3, vv),
                     'v_cmp_gt_u32 vcc, %d, v%d' % (7 - level, vt),
                     's_nop 3',
                     's_and_b32 s%d, vcc_lo, %s' % (s.sT2, mask),
                     's_cmp_eq_u32 s%d, %s' % (s.sT2, mask),
                     's_cbranch_scc1 ' + ok,
                     's_mov_b64 exec, 0x%x' % ex,
                     'buffer_load_dword v%d, v%d, s[%d:%d], s%d offen offset:%d sc1' % (vv, va, s.sWS, s.sWS + 3, soff, off),
                     's_mov_b64 exec, -1',
                     's_add_u32 s%d, s%d, 1' % (s.sSp, s.sSp),
                     's_waitcnt vmcnt(0)',
                     's_cmp_lt_u32 s%d, 0x1000' % s.sSp,
                     's_cbranch_scc1 ' + lp,
                     ok + ':'],
                    rd=[vv, vt], wr=[vv, vt], waits=[tag])]


class Rec:
    def __init__(self): self.items = []
    def emit(self, x):
        if isinstance(x, str): x = I(x)
        if isinstance(x, (list, tuple)):
            for i in x: self.emit(i)
        else: self.items.append(x)


class Raw(Ins):
    def __init__(self, lines, rd=(), wr=(), waits=()):
        self.text = ''; self.op = 'rawblock'; self.kind = 'rawblock'
        self.ops = list(lines); self.mods = ''
        self.rd = [('v', r) for r in rd]; self.wr = [('v', r) for r in wr]
        self.tag = None; self.passes = 0; self.mf = None; self.comment = None; self.raw = True
        self.waittags = list(waits); self.lds = None


_orig_emit = Emitter.emit
def _emit(self, ins):
    if isinstance(ins, Raw):
        if ins.waittags:
            _orig_emit(self, WaitTag(ins.waittags))
        vmc, lgc = self._need_waits(ins.rd + ins.wr)
        if vmc is not None or lgc is not None:
            self._emit_wait(vmc, lgc)
        _orig_emit(self, Fence())
        for l in ins.ops:
            if l.endswith(':'): self.out.append(l)
            else: self._raw(l)
        self.hist = []
        self._raw('s_nop 1', states=2)
        return
    return _orig_emit(self, ins)
Emitter.emit = _emit
```

```python
from g5 import *
import g5_ffn

WPHI = RINGA + 4 * 8192
KVR = RINGA
SHR = WPHI + 4096
Z_ = RINGA


def attn_regs(s):
    A = s.va.alloc
    s.Id = A(8, 4)
    s.Id4 = A(2, 2)
    s.vMx, s.vN, s.vZ, s.vZ2, s.vM2, s.vN2 = [A() for _ in range(6)]
    s.vB1a, s.vB1b = A(), A()
    s.vWp = s.vOffS
    s.kb, s.EE = s.pool, s.pool + 8


def attn_setup(s):
    E = s.E
    assert s.ringperm == [0, 1, 4, 2, 3]
    attn_regs(s)
    hp = s.sJ
    g5_ffn.build_srds(s, False)
    s.setup_addrs()
    Id, Id4, vWp = s.Id, s.Id4, s.vWp
    E('s_mul_i32 s%d, s%d, 112' % (s.sWc[2], hp))
    E('s_add_u32 s%d, s%d, 1792' % (s.sWc[1], s.sWc[2]))
    s.lane_col(s.vT2)
    E('s_mul_i32 s%d, s%d, 56' % (s.sT0, s.sG))
    E('v_add_u32 v%d, s%d, v%d' % (vWp, s.sT0, s.vT2))
    E('v_cmp_eq_u32 vcc, 56, v%d' % s.vT2)
    E('v_mov_b32 v%d, 112' % s.vT3)
    E('v_cndmask_b32 v%d, v%d, v%d, vcc' % (vWp, vWp, s.vT3))
    s.tr_base(s.vTr[0], vWp, s.sPi, RINGA)
    for q in range(1, 4):
        E('v_xor_b32 v%d, %d, v%d' % (s.vTr[q], q << 11, s.vTr[0]))
    E('s_mul_i32 s%d, s%d, 3136' % (s.sWs, hp))
    E('s_lshl_b32 s%d, s%d, 10' % (s.sT2, s.sT))
    E('s_add_u32 s%d, s%d, s%d' % (s.sWs, s.sWs, s.sT2))
    E('s_add_u32 s%d, s%d, %d' % (s.sStS, s.sT2, WPHI))


def attn_setup2(s):
    o = []
    def E(t): o.append(I(t))
    hp = s.sJ
    Id, Id4, vWp = s.Id, s.Id4, s.vWp
    t0, t1, t2 = s.vMx, s.vN, s.vZ
    E('v_and_b32 v%d, 3, v0' % t2)
    E('v_lshlrev_b32 v%d, 3, v%d' % (t2, t2))
    E('v_bfe_u32 v%d, v0, 4, 1' % t0)
    E('v_lshl_add_u32 v%d, v%d, 5, v%d' % (t2, t0, t2))
    E('v_min_u32 v%d, 48, v%d' % (t2, t2))
    E('v_lshrrev_b32 v%d, 5, v0' % t0)
    E('v_bfe_u32 v%d, v0, 2, 2' % t1)
    E('v_lshl_add_u32 v%d, v%d, 2, v%d' % (t0, t0, t1))
    E('v_mad_u32_u24 v%d, v%d, 56, v%d' % (vWp, t0, t2))
    E('s_mul_i32 s%d, s%d, 1568' % (s.sT0, s.sG))
    E('s_add_u32 s%d, s%d, %d' % (s.sT0, s.sT0, WPHI))
    E('v_add_u32 v%d, s%d, v%d' % (vWp, s.sT0, vWp))
    E('v_and_b32 v%d, 31, v0' % t0)
    E('v_lshrrev_b32 v%d, 5, v0' % t1)
    E('v_lshlrev_b32 v%d, 2, v%d' % (t1, t1))
    E('v_sub_u32 v%d, v%d, v%d' % (t1, t0, t1))
    E('v_lshlrev_b32 v%d, 4, v%d' % (t1, t1))
    E('s_movk_i32 s%d, 0x3f80' % s.sT0)
    for kk in range(2):
        for m in range(4):
            cst = 16 * kk + 8 * (m // 2) + 2 * (m % 2)
            d = Id + 4 * kk + m
            E('v_subrev_u32 v%d, %d, v%d' % (t2, 16 * cst, t1))
            E('v_lshlrev_b32 v%d, v%d, s%d' % (d, t2, s.sT0))
            E('v_cmp_gt_u32 vcc, 32, v%d' % t2)
            E('v_cndmask_b32 v%d, 0, v%d, vcc' % (d, d))
    E('v_and_b32 v%d, 1, v0' % t2)
    E('v_lshlrev_b32 v%d, 4, v%d' % (t2, t2))
    E('v_lshlrev_b32 v%d, v%d, s%d' % (t2, t2, s.sT0))
    E('v_cndmask_b32 v%d, v%d, 0, s[%d:%d]' % (Id4, t2, s.sM[1], s.sM[1] + 1))
    E('v_cndmask_b32 v%d, 0, v%d, s[%d:%d]' % (Id4 + 1, t2, s.sM[1], s.sM[1] + 1))
    E('v_cmp_eq_u32 vcc, 28, v%d' % t0)
    E('v_cndmask_b32 v%d, 0, 1.0, vcc' % s.vB1a)
    E('v_cmp_eq_u32 vcc, 29, v%d' % t0)
    E('v_mov_b32 v%d, 0x3f80' % t2)
    E('v_cndmask_b32 v%d, 0, v%d, vcc' % (s.vB1b, t2))
    E('v_cmp_eq_u32 s[%d:%d], 30, v%d' % (s.sMl30, s.sMl30 + 1, t0))
    E('s_lshl_b32 s%d, s%d, 2' % (s.sT1, s.sRb))
    E('s_add_u32 s%d, s%d, s%d' % (s.sT1, s.sT1, s.sT))
    E('s_lshl_b32 s%d, s%d, 12' % (s.sFlagOff, s.sT1))
    E('s_mul_i32 s%d, s%d, 144' % (s.sT1, s.sT1))
    E('s_lshl_b32 s%d, s%d, 1' % (s.sT2, hp))
    E('s_add_u32 s%d, s%d, s%d' % (s.sT2, s.sT2, s.sG))
    E('s_lshl_b32 s%d, s%d, 7' % (s.sT3, s.sT2))
    E('s_add_u32 s%d, s%d, s%d' % (s.sFlagOff, s.sFlagOff, s.sT3))
    E('s_add_u32 s%d, s%d, 0x%x' % (s.sFlagOff, s.sFlagOff, FLAGS_OFF)) if FLAGS_OFF else None
    E('s_lshl_b32 s%d, s%d, 1' % (s.sT3, s.sT2))
    E('s_add_u32 s%d, s%d, s%d' % (s.sSt, s.sT1, s.sT3))
    E('s_add_u32 s%d, s%d, %d' % (s.sSt, s.sSt, 112 + (ACT_OFF >> 10)))
    E('s_lshl_b32 s%d, s%d, 10' % (s.sSt, s.sSt))
    E('s_lshl_b32 s%d, s%d, 17' % (s.sGat, hp))
    E('s_lshl_b32 s%d, s%d, 10' % (s.sT2, s.sWv))
    E('s_add_u32 s%d, s%d, s%d' % (s.sGat, s.sGat, s.sT2))
    E('s_add_u32 s%d, s%d, 0x%x' % (s.sGat, s.sGat, KVP_OFF))
    E('s_lshl_b32 s%d, s%d, 13' % (s.sT2, s.sRb))
    E('s_add_u32 s%d, s%d, s%d' % (s.sKvp, s.sGat, s.sT2))
    E('s_lshl_b32 s%d, s%d, 11' % (s.sT2, hp))
    E('s_add_u32 s%d, s%d, 0x%x' % (s.sKPoll, s.sT2, KFLAGS_OFF))
    E('s_lshl_b32 s%d, s%d, 7' % (s.sT2, s.sRb))
    E('s_add_u32 s%d, s%d, s%d' % (s.sKFlag, s.sKPoll, s.sT2))
    E('s_lshl_b32 s%d, 1, s%d' % (s.sT2, s.sRb))
    E('s_xor_b32 s%d, s%d, 0xffff' % (s.sMaskA, s.sT2))
    o.append([I('s_cmp_eq_u32 s%d, 0' % s.sWv), I('s_cselect_b32 s%d, 0, 0x40000000' % s.sKsel)])
    return o


def aug_col0(s, cs, t, b1a=None, b1b=None):
    o = []
    o.append(I('v_cvt_pk_bf16_f32 v%d, -v%d, -v%d' % (s.augA, cs, cs)))
    o.append(I('v_and_b32 v%d, 0xffff0000, v%d' % (t, s.augA)))
    o.append(I('v_add_f32 v%d, v%d, v%d' % (t, cs, t)))
    if b1a is None:
        o.append(I('v_cvt_pk_bf16_f32 v%d, -v%d, 0' % (s.augA + 1, t)))
        o.append(I('v_mov_b32 v%d, 0' % (s.augA + 2)))
    else:
        o.append(I('v_cvt_pk_bf16_f32 v%d, -v%d, v%d' % (s.augA + 1, t, b1a)))
        o.append(I('v_mov_b32 v%d, v%d' % (s.augA + 2, b1b)))
    return o


def feat_parts(s, P):
    kb, EE = s.kb, s.EE
    vMx, vN, vZ, vM2, vN2 = s.vMx, s.vN, s.vZ, s.vM2, s.vN2
    rd = []
    an = ('r', (WPHI, WPHI + 4096), ('w', 'P', 0))
    for kk in range(2):
        for sec in range(2):
            d = EE + 4 * kk + 2 * sec
            rd.append(I('ds_read_b64_tr_b16 v[%d:%d], v%d offset:%d' % (d, d + 1, s.vWp, 896 * kk + 448 * sec), lds=an))
    pack = [I('v_cvt_pk_bf16_f32 v%d, v%d, v%d' % (kb + i, P + 2 * i, P + 2 * i + 1)) for i in range(8)]
    mf = [s.mfma(P, EE, kb, None), s.mfma(P, EE + 4, kb + 4, P)]
    o = []
    o.append(I('v_max3_f32 v%d, v%d, v%d, v%d' % (vMx, P, P + 1, P + 2)))
    o.append(I('v_min3_f32 v%d, v%d, v%d, v%d' % (vN, P, P + 1, P + 2)))
    for i in range(3, 15, 2):
        o.append(I('v_max3_f32 v%d, v%d, v%d, v%d' % (vMx, vMx, P + i, P + i + 1)))
        o.append(I('v_min3_f32 v%d, v%d, v%d, v%d' % (vN, vN, P + i, P + i + 1)))
    o.append(I('v_max_f32 v%d, v%d, v%d' % (vMx, vMx, P + 15)))
    o.append(I('v_min_f32 v%d, v%d, v%d' % (vN, vN, P + 15)))
    o.append(I('v_xor_b32 v%d, 0x80000000, v%d' % (vN, vN)))
    o.append(I('v_permlane32_swap_b32 v%d, v%d' % (vMx, vN)))
    o.append(I('v_max_f32 v%d, v%d, v%d' % (vMx, vMx, vN)))
    o.append(I('v_mul_f32 v%d, v%d, v%d' % (vMx, vMx, s.vC)))
    o.append(I('v_xor_b32 v%d, 0x80000000, v%d' % (vMx, vMx)))
    o.append(I('v_mov_b32 v%d, v%d' % (vN, vMx)))
    o.append(I('v_permlane32_swap_b32 v%d, v%d' % (vMx, vN)))
    o.append(I('v_mov_b32 v%d, 0x%x' % (vZ, BIGNEG)))
    o.append(I('v_cndmask_b32 v%d, v%d, v%d, s[%d:%d]' % (vM2, vMx, vZ, s.sMh, s.sMh + 1)))
    o.append(I('v_cndmask_b32 v%d, v%d, v%d, s[%d:%d]' % (vN2, vN, vZ, s.sMh, s.sMh + 1)))
    ex = []
    for g0 in range(0, 16, 4):
        for i in range(g0, g0 + 4):
            ex.append(I('v_fma_f32 v%d, v%d, v%d, v%d' % (EE + i, P + i, s.vC, vM2 if i >= 12 else vMx)))
        for i in range(g0, g0 + 4):
            ex.append(I('v_fma_f32 v%d, -v%d, v%d, v%d' % (P + i, P + i, s.vC, vN2 if i >= 12 else vN)))
        for i in range(g0, g0 + 4):
            ex.append(I('v_exp_f32 v%d, v%d' % (EE + i, EE + i)))
        for i in range(g0, g0 + 4):
            ex.append(I('v_exp_f32 v%d, v%d' % (P + i, P + i)))
    return rd, pack, mf, o, ex


def attn_phase1(s, stage):
    tl = s.tl
    kb, EE = s.kb, s.EE
    vMx, vN, vZ, vZ2, vM2, vN2 = s.vMx, s.vN, s.vZ, s.vZ2, s.vM2, s.vN2
    Id, Id4 = s.Id, s.Id4
    s.rounds(swap=(False, True, False))
    def X(c): return s.dma_x(c)
    def W(r, c): return [s.dma_w(r, c)]
    dma = {-4: X(4), -2: W(0, 4), 0: X(5), 4: W(0, 5), 5: X(6), 8: W(0, 6), 9: W(1, 0), 10: W(1, 1),
           12: W(1, 2), 14: W(1, 3), 16: W(1, 4), 18: W(1, 5), 20: W(1, 6), 22: W(2, 0),
           24: W(2, 1), 26: W(2, 2), 28: W(2, 3), 30: W(2, 4), 32: W(2, 5), 34: W(2, 6)}
    for f, gl in dma.items():
        if len(gl) == 2:
            tl.add(f, 'x', gl[0]); tl.add(f + 1, 'x', gl[1])
        else:
            tl.add(f, 'x', gl[0])
    tl.add(13, 'x', [I('s_mov_b32 m0, s%d' % s.sStS),
                     I('buffer_load_dwordx4 v%d, s[%d:%d], s%d offen lds' % (s.vLane16, s.sB, s.sB + 3, s.sWs), tag=('w', 'P', 0),
                       lds=('w', (WPHI, WPHI + 4096), ('w', 'P', 0)))])
    tl.add(24, 'pre', s.barrier([('w', 1, 0), ('w', 1, 1), ('w', 1, 2), ('w', 'P', 0)], 'lgkm', name='B0'))
    tl.add(36, 'pre', s.barrier([('w', 1, c) for c in range(3, 7)], name='B0b'))
    tl.add(52, 'pre', s.barrier([('w', 2, c) for c in range(7)], 'lgkm', name='B1'))
    if s.pfw_late: tl.add(P('PFWG', -3), 'x', s.pfw_late)
    tl.add(6, 'x', [i for g in s.tok_load() for i in g])
    tl.add(44, 'v', s.tok_resolve())
    if 'nopf2' not in XF:
        g = P('PF2G', 13)
        for k, grp in enumerate(s.pf_w2(s.vPoll)): tl.add(g + P('PF2S', 4) * k, 'z', grp)
    tl.place(attn_setup2(s), 0, 21) if 'late2' not in XF else tl.place(attn_setup2(s), 22, 24)
    t = s.tE
    Pk = s.acc[0]
    side = s.stats_read(t) + s.cs_read(0, t) + aug_col0(s, t, t + 2)
    tl.place(side, 24, 29)
    tl.add(30, 'v', s.mfma(Pk, s.augA, s.augB, Pk))
    rd, pack, mf, mm, ex = feat_parts(s, Pk)
    tl.add(30, 'v', rd)
    tl.place(pack, 32, 33)
    tl.add(33, 'z', mf[0]); tl.add(34, 'z', mf[1])
    zs = [I('v_add_f32 v%d, v%d, v%d' % (vZ, EE, EE + 1)), I('v_add_f32 v%d, v%d, v%d' % (vZ2, Pk, Pk + 1))]
    for i in range(2, 16):
        zs.append(I('v_add_f32 v%d, v%d, v%d' % (vZ, vZ, EE + i)))
        zs.append(I('v_add_f32 v%d, v%d, v%d' % (vZ2, vZ2, Pk + i)))
    zs.append(I('v_permlane32_swap_b32 v%d, v%d' % (vZ, vZ2)))
    zs.append(I('v_add_f32 v%d, v%d, v%d' % (vZ, vZ, vZ2)))
    zs.append(I('v_rcp_f32 v%d, v%d' % (vZ, vZ)))
    zs.append(I('v_mul_f32 v%d, v%d, v%d' % (vZ, vZ, s.vC)))
    zs.append(I('v_mov_b32 v%d, v%d' % (vZ2, vZ)))
    zs.append(I('v_permlane32_swap_b32 v%d, v%d' % (vZ, vZ2)))
    nrm = []
    for i in range(0, 16, 2):
        nrm.append(I('v_mul_f32 v%d, v%d, v%d' % (EE + i, EE + i, vZ)))
        nrm.append(I('v_mul_f32 v%d, v%d, v%d' % (EE + i + 1, EE + i + 1, vZ)))
        nrm.append(I('v_cvt_pk_bf16_f32 v%d, v%d, v%d' % (kb + i // 2, EE + i, EE + i + 1)))
    nrm2 = []
    for i in range(0, 16, 2):
        nrm2.append(I('v_mul_f32 v%d, v%d, v%d' % (Pk + i, Pk + i, vZ2)))
        nrm2.append(I('v_mul_f32 v%d, v%d, v%d' % (Pk + i + 1, Pk + i + 1, vZ2)))
        nrm2.append(I('v_cvt_pk_bf16_f32 v%d, v%d, v%d' % (EE + i // 2, Pk + i, Pk + i + 1)))
    KA, KB_, KC = P('KA', 36), P('KB', 49), P('KC', 50)
    tl.place(mm + ex + zs + nrm + nrm2, KA, KB_)
    tl.add(KC, 'z', s.mfma(Pk, kb, Id, None)); tl.add(KC + 1, 'm', s.mfma(Pk, kb + 4, Id + 4, Pk))
    p1 = [I('v_cvt_pk_bf16_f32 v%d, v%d, v%d' % (kb + i, Pk + 2 * i, Pk + 2 * i + 1)) for i in range(8)]
    tl.add(KC + 2, 'v', p1)
    tl.add(KC + 2, 'z', s.mfma(Pk, EE, Id, None)); tl.add(KC + 3, 'm', s.mfma(Pk, EE + 4, Id + 4, Pk))
    p2 = [I('v_cvt_pk_bf16_f32 v%d, v%d, v%d' % (EE + 8 + i, Pk + 2 * i, Pk + 2 * i + 1)) for i in range(8)]
    tl.add(KC + 5, 'z', p2)
    Vt = s.acc[1]
    vb = EE
    cs = s.csacc
    tl.place(s.cs_read(1, cs) + aug_col0(s, cs, cs + 2, s.vB1a, s.vB1b), 52, 54)
    tl.add(55, 'z', s.mfma(Vt, s.augB, s.augA, Vt))
    vW, vR = vMx, vN
    tl.add(51, 'z', [I('s_lshl_b32 s%d, s%d, 14' % (s.sT0, s.sG)),
                     I('s_add_u32 s%d, s%d, %d' % (s.sT0, s.sT0, KVR)),
                     I('s_lshl_b32 s%d, s%d, 12' % (s.sT1, s.sT)),
                     I('s_add_u32 s%d, s%d, s%d' % (s.sT1, s.sT1, s.sT0)),
                     I('v_add_u32 v%d, s%d, v%d' % (vW, s.sT1, s.vLane16)),
                     I('s_lshl_b32 s%d, s%d, 10' % (s.sT1, s.sT)),
                     I('s_add_u32 s%d, s%d, s%d' % (s.sT1, s.sT1, s.sT0)),
                     I('v_add_u32 v%d, s%d, v%d' % (vR, s.sT1, s.vLane16))])
    kvr = [(KVR, KVR + 16384), (KVR + 16384, KVR + 32768)]
    C0 = P('C0', 56)
    tl.add(C0, 'v', [I('v_cvt_pk_bf16_f32 v%d, v%d, v%d' % (vb + i, Vt + 2 * i, Vt + 2 * i + 1)) for i in range(8)])
    tl.add(C0, 'z', [s.mfma(Vt, kb, vb, None), s.mfma(Vt, kb + 4, vb + 4, Vt)])
    pk1 = [I('v_cvt_pk_bf16_f32 v%d, v%d, v%d' % (kb + i, Vt + 2 * i, Vt + 2 * i + 1)) for i in range(8)]
    tl.add(C0 + 1, 'v', pk1)
    tl.add(C0 + 1, 'z', [s.mfma(Vt, EE + 8, vb, None), s.mfma(Vt, EE + 12, vb + 4, Vt)])
    tl.add(C0 + 1, 'z', [I('ds_write_b128 v%d, v[%d:%d] offset:%d' % (vW, kb + 4 * q, kb + 4 * q + 3, 1024 * q), lds=('w', kvr, 'kvr')) for q in range(2)])
    pk2 = [I('v_cvt_pk_bf16_f32 v%d, v%d, v%d' % (EE + i, Vt + 2 * i, Vt + 2 * i + 1)) for i in range(8)]
    tl.add(C0 + 2, 'v', pk2)
    tl.add(C0 + 2, 'v', [I('ds_write_b128 v%d, v[%d:%d] offset:%d' % (vW, EE + 4 * q, EE + 4 * q + 3, 2048 + 1024 * q), lds=('w', kvr, 'kvr')) for q in range(2)])
    KV = P('KV', 60)
    tl.add(KV, 'pre', s.barrier([], 'ldsw', name='KVR'))
    tl.add(KV, 'v', [I('ds_read_b128 v[%d:%d], v%d offset:%d' % (EE + 4 * tp, EE + 4 * tp + 3, vR, 4096 * tp), lds=('r', kvr, 'kvr')) for tp in range(4)])
    lo, hi = Vt, Vt + 4
    red = []
    for tp in range(4):
        red.append(s.mfma4(lo, Id4, EE + 4 * tp, tp == 0)); red.append(s.mfma4(hi, Id4, EE + 4 * tp + 2, tp == 0))
    tl.add(KV + 1, 'v', red[:4]); tl.add(KV + 2, 'v', red[4:])
    tl.add(KV + 3, 'v', [I('v_cvt_pk_bf16_f32 v%d, v%d, v%d' % (Vt + 8 + i, lo + 2 * i, lo + 2 * i + 1)) for i in range(4)] +
           [I('buffer_store_dwordx4 v[%d:%d], v%d, s[%d:%d], s%d offen sc1' % (Vt + 8, Vt + 11, s.vLane16, s.sWS, s.sWS + 3, s.sKvp), tag='kvp')])
    X1 = P('X1', 68)
    tl.add(X1, 'pre', s.barrier(['kvp'], name='X1'))
    fl = s.flag_store(0, s.sKFlag, [], s.vT3, w0=True)
    tl.add(X1, 'd', fl[1])
    if stage >= 3:
        from g5_p2 import P2, quads, A_, B_, C_
        xa, xb = s.xfA, s.xfB
        S4 = [98304, 106496, WPHI, WPHI + 8192]
        p2 = s.p2 = P2(s, [A_, B_, Z_, C_, S4, A_, B_, Z_, C_],
                       quads(xa, xb, xa + 16, xb + 16, xb + 32, xa + 32, (xa + 48, xb + 48), xa, xb), (s.acc[0], s.acc[1]), red=(0, 98304))
        sc, ve = p2.setup_early(False)
        tl.place(sc, 22, 29)
        tl.place(ve, 50, 52)
        def put(grps, g0, step=1):
            for q, grp in enumerate(grps): tl.add(g0 + step * q, 'x', grp if isinstance(grp, list) else [grp])
        put(p2.dma(0), P('W0', 53))
        put(p2.dma(1), P('W1', KV + 4))
        s.post = []
        if P('PREW2', 1): put(p2.dma(2), P('W2', X1 + 1))
        else: s.post += p2.dma(2)
        X3 = P('X3', 76)
        if P('PREW3', 1):
            tl.add(X3, 'pre', s.barrier([], name='X3'))
            put(p2.dma(3), P('W3', X3))
        else: s.post += p2.dma(3)
        A0I, A0C = P('A0I', 66), P('A0C', 73)
        tl.add(A0I, 'x', s.poll_issue(('poll', 0), 'F'))
        tl.add(A0C, 'x', s.stamp_ins('L0a') + s.poll_check(('poll', 0), 0, 'F') + s.stamp_ins('L0'))
        put(p2.act(0, True), A0C)
        if P('PREA1', 1): put(p2.act(1, True), P('A1G', 80))
        else: s.post += p2.act(1, True)
    if stage >= 3: tl.add(P('A1I', 83), 'z', s.poll_issue(('poll', 1), 'F'))
    tl.add(P('KI', 79), 'x', s.poll_issue('kpoll', 'K'))
    return 84


def attn_phase1b(s, stage):
    E = s.E
    kb, EE = s.kb, s.EE
    vMx, vN, vZ, vZ2, vM2, vN2 = s.vMx, s.vN, s.vZ, s.vZ2, s.vM2, s.vN2
    P_ = s.acc[0]
    G = [s.ring + 4 * i for i in range(8)] + [s.xfA + 32 + 4 * i for i in range(6)] + [s.xfB + 48 + 4 * i for i in range(2)]
    s.stamp('kp0')
    s.emit(s.poll_check('kpoll', 0, 'K'))
    s.emit(s.val_ins('kspin', s.sSp))
    s.emit(s.barrier([], 'lgkm', name='R3'))
    cs = s.csacc
    gat = []
    for rb in range(16):
        g = [I('buffer_load_dwordx4 v[%d:%d], v%d, s[%d:%d], s%d offen' % (G[rb], G[rb] + 3, s.vLane16, s.sWS, s.sWS + 3, s.sGat), tag=('gat', rb))]
        if rb < 15:
            g.append(I('s_add_u32 s%d, s%d, 8192' % (s.sGat, s.sGat)))
        gat.append(g)
    rd, pack, mf, mm, ex = feat_parts(s, P_)
    body = s.cs_read(2, cs) + aug_col0(s, cs, cs + 2) + [s.mfma(P_, s.augA, s.augB, P_)] + rd + pack + mf + mm + ex
    for i in range(8):
        body.append(I('v_cvt_pk_bf16_f32 v%d, v%d, v%d' % (kb + i, EE + 2 * i, EE + 2 * i + 1)))
    for i in range(8):
        body.append(I('v_cvt_pk_bf16_f32 v%d, v%d, v%d' % (EE + i, P_ + 2 * i, P_ + 2 * i + 1)))
    if stage >= 3:
        p2 = s.p2
        body += p2.setup_tr()
    GE = P('GE', 9)
    n0 = P('G0', 3)
    for g in gat[:n0]: s.emit(g)
    out = []; rest = gat[n0:]
    for k, it in enumerate(body):
        out.append(it)
        if rest and (k + 1) % GE == 0: out += rest.pop(0)
    for g in rest: out += g
    s.emit(out)
    s.stamp('feat')
    lo, hi = s.acc[1], s.acc[1] + 4
    extra = []
    if stage >= 3:
        s.emit(s.poll_check(('poll', 1), 1, 'F'))
        allx = s.post + p2.act(2, True) + p2.act(3, True)
        extra = allx[:P('NX', 8)]
        s.act_left = allx[P('NX', 8):]
    for rb in range(16):
        s.emit(s.mfma4(lo, s.Id4, G[rb], rb == 0))
        s.emit(s.mfma4(hi, s.Id4, G[rb] + 2, rb == 0))
        if rb % 2 == 1 and extra: s.emit(extra.pop(0))
    for g in extra: s.emit(g)
    s.stamp('gath')
    red = s.acc[1] + 8
    for i in range(4):
        E('v_cvt_pk_bf16_f32 v%d, v%d, v%d' % (red + i, lo + 2 * i, lo + 2 * i + 1))
    for i in range(4):
        E('v_cndmask_b32 v%d, v%d, v%d, s[%d:%d]' % (red + i, red + i, s.ones, s.sMl30, s.sMl30 + 1))
    shr = [(SHR, SHR + 4096), (SHR + 8192, SHR + 12288)]
    E('s_lshl_b32 s%d, s%d, 10' % (s.sT0, s.sT))
    E('s_lshl_b32 s%d, s%d, 13' % (s.sT1, s.sG))
    E('s_add_u32 s%d, s%d, %d' % (s.sT1, s.sT1, SHR))
    E('v_add_u32 v%d, s%d, v%d' % (vN, s.sT1, s.vLane16))
    E('v_add_u32 v%d, s%d, v%d' % (vMx, s.sT0, vN))
    E('ds_write_b128 v%d, v[%d:%d]' % (vMx, red, red + 3), lds=('w', shr, 'shr'))
    s.emit(s.barrier([], 'ldsw', name='share'))
    KA = s.ring
    for f in range(4):
        E('ds_read_b128 v[%d:%d], v%d offset:%d' % (KA + 4 * f, KA + 4 * f + 3, vN, 1024 * f), lds=('r', shr, 'shr'))
    Np, Nm = s.acc[0], s.acc[1]
    s.emit(s.mfma(Np, KA, kb, None))
    s.emit(s.mfma(Nm, KA + 8, EE, None))
    s.emit(s.mfma(Np, KA + 4, kb + 4, Np))
    s.emit(s.mfma(Nm, KA + 12, EE + 4, Nm))
    a, b, dn = vMx, vN, vZ
    E('v_rcp_f32 v%d, v%d' % (a, Np + 14))
    E('v_rcp_f32 v%d, v%d' % (b, Nm + 14))
    E('v_add_f32 v%d, v%d, v%d' % (dn, Np + 12, Np + 13))
    E('v_add_f32 v%d, v%d, v%d' % (vZ2, Nm + 12, Nm + 13))
    E('v_mov_b32 v%d, 0x%x' % (vM2, f2u(1e-6 * 1.4426950408889634)))
    E('v_fmac_f32 v%d, v%d, v%d' % (vM2, dn, a))
    E('v_fmac_f32 v%d, v%d, v%d' % (vM2, vZ2, b))
    E('v_rcp_f32 v%d, v%d' % (vM2, vM2))
    E('v_mul_f32 v%d, 0x%x, v%d' % (vM2, LOG2E, vM2))
    E('v_mul_f32 v%d, v%d, v%d' % (a, a, vM2))
    E('v_mul_f32 v%d, v%d, v%d' % (b, b, vM2))
    E('v_mov_b32 v%d, v%d' % (vZ, a))
    E('v_mov_b32 v%d, v%d' % (vZ2, b))
    E('v_permlane32_swap_b32 v%d, v%d' % (vZ, a))
    E('v_permlane32_swap_b32 v%d, v%d' % (vZ2, b))
    E('v_cndmask_b32 v%d, v%d, 0, s[%d:%d]' % (vM2, a, s.sMh, s.sMh + 1))
    E('v_cndmask_b32 v%d, v%d, 0, s[%d:%d]' % (vN2, b, s.sMh, s.sMh + 1))
    for i in range(16):
        fa, fb = (vM2, vN2) if i >= 12 else (a, b)
        E('v_mul_f32 v%d, v%d, v%d' % (Np + i, Np + i, fa))
        E('v_fmac_f32 v%d, v%d, v%d' % (Np + i, Nm + i, fb))
    for i in range(8):
        E('v_cvt_pk_bf16_f32 v%d, v%d, v%d' % (kb + i, Np + 2 * i, Np + 2 * i + 1))
        if i % 4 == 3:
            kk = i // 4
            E('buffer_store_dwordx4 v[%d:%d], v%d, s[%d:%d], s%d offen offset:%d sc1' % (kb + 4 * kk, kb + 4 * kk + 3, s.vLane16, s.sWS, s.sWS + 3, s.sSt, 1024 * kk), tag=('o', kk))
    s.stamp('ost')


def attn_path(s, stage):
    items = s.capture(attn_setup, s)
    s.emit_setup(items, False)
    s.tok_write()
    s.tl = TL()
    f = attn_phase1(s, stage)
    s.stamp('setup')
    s.tl.emit(s.e, -4, f)
    attn_phase1b(s, stage)
    fl = s.flag_store(4, s.sFlagOff, [('o', 1)], s.vT3)
    if stage < 3:
        s.emit(fl[0:1] + fl[1])
        s.stamp('end')
        return None
    p2 = s.p2
    main = s.e
    s.emit(I('s_cmp_lg_u32 s%d, 0' % s.sIdle))
    s.emit(Fence())
    s.emit(I('s_cbranch_scc1 %s_idle' % s.label))
    ei = main.fork()
    save = (s.nstamp, list(s.names))
    s.e = ei
    s.L('%s_idle' % s.label)
    ei.hist = []
    s.emit(fl[0:1] + fl[1])
    s.stamp('end')
    s.prof_store()
    s.E('s_waitcnt vmcnt(0)')
    s.E('s_endpgm')
    s.names_idle = list(s.names)
    s.e = main
    s.nstamp, s.names = save[0], save[1]
    fl = s.flag_store(4, s.sFlagOff, [('o', 1)], s.vT3)
    tl = s.tl = TL()
    p2.place_main(tl, 0)
    for p in range(9):
        tl.add(8 * p - 4, 'pre', s.barrier(p2.wtags(p), 'lgkm' if p in (0, 8) else None, name='Q%d' % p))
    def put(grps, g0, step=1):
        for q, grp in enumerate(grps): tl.add(g0 + step * q, 'x', grp)
    def poll(level, gi, gc, mask):
        tl.add(gi, 'x', s.poll_issue(('poll', level), mask))
        tl.add(gc, 'x', s.stamp_ins('L%da' % level) + s.poll_check(('poll', level), level, mask) + s.stamp_ins('L%d' % level))
    put(p2.dma(4), P('W4G', -4))
    tl.place(p2.setup_late(), -4, 3)
    tl.add(P('OF', 4), 'x', fl[0:1] + fl[1])
    poll(2, -4, P('AL2C', 5), 'F')
    nl = len(s.act_left)
    for k, grp in enumerate(s.act_left): tl.add((-4 + k) if k < P('NLE', 0) else 5 + (k - P('NLE', 0)) // 2, 'x', grp)
    put(p2.act(4, True), P('A4G', 5 + nl // 2), 1)
    put(p2.act(5, True), P('A5G', 9 + nl // 2), 1)
    poll(3, P('AL3I', 7), P('AL3C', 16), 'F')
    put(p2.dma(5), P('W5G', 12), 1)
    put(p2.act(6, True), P('A6G', 16), 1)
    put(p2.dma(6), P('W6G', 20), 1)
    put(p2.dma(7), P('W7G', 28), 1)
    put(p2.dma(8), P('W8G', 36), 1)
    poll(4, P('AL4I', 24), P('AL4C', 32), 'O')
    put(p2.act(7, True), P('A7G', 32), 1)
    put(p2.act(8, True), P('A8G', 40), 1)
    tl.emit(s.e, -4, 72)
    s.stamp('mm')
    p2.finish()
    s.stamp('end')
    return ei
```

```python
from g5 import *


def aug_col(s, cs, b1, t, half=False):
    o = []
    o.append(I('v_cvt_pk_bf16_f32 v%d, -v%d, -v%d' % (s.augA, cs, cs)))
    o.append(I('v_lshlrev_b32 v%d, 16, v%d' % (t + 1, b1)))
    o.append(I('v_and_b32 v%d, 0xffff0000, v%d' % (t, s.augA)))
    o.append(I('v_add_f32 v%d, v%d, v%d' % (t, cs, t)))
    if half:
        o.append(I('v_mul_f32 v%d, 0.5, v%d' % (t + 1, t + 1)))
    o.append(I('v_cvt_pk_bf16_f32 v%d, -v%d, v%d' % (s.augA + 1, t, t + 1)))
    if half:
        o.append(I('v_lshrrev_b32 v%d, 16, v%d' % (s.augA + 2, t + 1)))
    else:
        o.append(I('v_mov_b32 v%d, v%d' % (s.augA + 2, b1)))
    return o


def mish(s, src, n, t, pk, stores):
    o = []
    G = 4
    for g0 in range(0, n, G):
        a = [src + g0 + i for i in range(G)]
        u = [t + i for i in range(G)]
        w = [t + G + i for i in range(G)]
        for i in range(G): o.append(I('v_mul_f32 v%d, v%d, v%d' % (a[i], a[i], s.vC)))
        for i in range(G): o.append(I('v_exp_f32 v%d, v%d' % (u[i], a[i])))
        for i in range(G): o.append(I('v_fma_f32 v%d, v%d, -0.5, -1.0' % (w[i], u[i])))
        for i in range(G): o.append(I('v_fma_f32 v%d, v%d, v%d, -1.0' % (u[i], u[i], w[i])))
        for i in range(G): o.append(I('v_rcp_f32 v%d, v%d' % (u[i], u[i])))
        for i in range(G): o.append(I('v_fmac_f32 v%d, v%d, v%d' % (a[i], a[i], u[i])))
        for i in range(0, G, 2):
            o.append(I('v_cvt_pk_bf16_f32 v%d, v%d, v%d' % (pk + (g0 + i) // 2, a[i], a[i + 1])))
        if (g0 + G) in stores:
            o += stores[g0 + G]
    return o


def ffn_regs(s):
    A = s.va.alloc
    s.vb1 = [A() for _ in range(4)]
    s.vTrS = [A(), A()]


def build_srds(s, ffn):
    if ffn: srd(s.e, s.sB, s.pB1, 1792 * 2)
    else: srd(s.e, s.sB, s.pWPHI, 16 * 1568)
    srd(s.e, s.sWS, s.pWS, WS_BYTES)
    srd(s.e, s.sW2, s.pW2, 1792 * 896)
    srd(s.e, s.sWO, s.pWO, 448 * 896)
    srd(s.e, s.sOUT, s.pOUT, 2048 * 896)


def ffn_setup(s):
    E = s.E
    ffn_regs(s)
    build_srds(s, True)
    s.setup_addrs()
    E('s_mul_i32 s%d, s%d, 7' % (s.sT0, s.sJ))
    E('s_and_b32 s%d, s%d, 1' % (s.sT1, s.sJ))
    E('s_add_u32 s%d, s%d, s%d' % (s.sT2, s.sT0, s.sT1))
    E('s_lshl_b32 s%d, s%d, 6' % (s.sWc[1], s.sT2))
    E('s_add_u32 s%d, s%d, 256' % (s.sWc[2], s.sWc[1]))
    E('s_add_u32 s%d, s%d, 128' % (s.sWc[1], s.sWc[1]))
    E('s_mul_i32 s%d, s%d, 6' % (s.sT1, s.sT1))
    E('s_sub_u32 s%d, s%d, s%d' % (s.sT0, s.sT0, s.sT1))
    E('s_add_u32 s%d, s%d, 6' % (s.sT0, s.sT0))
    E('s_lshl_b32 s%d, s%d, 6' % (s.sWs, s.sT0))
    E('v_and_b32 v%d, 31, v0' % s.vT2)
    E('v_lshlrev_b32 v%d, 1, v%d' % (s.vT2, s.vT2))
    E('s_add_u32 s%d, s%d, s%d' % (s.sT2, s.sT2, s.sG))
    E('s_lshl_b32 s%d, s%d, 6' % (s.sT1, s.sT2))
    for r in range(3):
        E('buffer_load_ushort v%d, v%d, s[%d:%d], s%d offen offset:%d' % (s.vb1[r], s.vT2, s.sB, s.sB + 3, s.sT1, 128 * r))
    E('buffer_load_ushort v%d, v%d, s[%d:%d], s%d offen' % (s.vb1[3], s.vT2, s.sB, s.sB + 3, s.sWs))
    E('v_lshrrev_b32 v%d, 3, v0' % s.vT0)
    E('v_and_b32 v%d, 7, v0' % s.vT1)
    E('v_lshrrev_b32 v%d, 2, v0' % s.vT2)
    E('v_and_b32 v%d, 4, v%d' % (s.vT2, s.vT2))
    E('v_xor_b32 v%d, v%d, v%d' % (s.vT1, s.vT1, s.vT2))
    E('s_lshl_b32 s%d, s%d, 6' % (s.sT1, s.sG))
    E('s_lshl_b32 s%d, s%d, 3' % (s.sT3, s.sT))
    E('s_add_u32 s%d, s%d, s%d' % (s.sT1, s.sT1, s.sT3))
    E('v_add_u32 v%d, s%d, v%d' % (s.vT0, s.sT1, s.vT0))
    E('v_lshrrev_b32 v%d, 2, v%d' % (s.vT2, s.vT1))
    E('v_lshl_add_u32 v%d, v%d, 5, v%d' % (s.vT0, s.vT2, s.vT0))
    E('v_and_b32 v%d, 3, v%d' % (s.vT2, s.vT1))
    E('v_lshlrev_b32 v%d, 4, v%d' % (s.vT2, s.vT2))
    E('v_mad_u32_u24 v%d, v%d, s%d, v%d' % (s.vOffS, s.vT0, s.sStride, s.vT2))
    E('s_lshl_b32 s%d, s%d, 2' % (s.sT1, s.sRb))
    E('s_add_u32 s%d, s%d, s%d' % (s.sT1, s.sT1, s.sT))
    E('s_lshl_b32 s%d, s%d, 12' % (s.sFlagOff, s.sT1))
    E('s_mul_i32 s%d, s%d, 144' % (s.sT1, s.sT1))
    E('s_add_u32 s%d, s%d, %d' % (s.sT1, s.sT1, ACT_OFF >> 10))
    E('s_lshl_b32 s%d, s%d, 1' % (s.sT2, s.sT2))
    E('s_add_u32 s%d, s%d, s%d' % (s.sSt, s.sT1, s.sT2))
    E('s_lshl_b32 s%d, s%d, 10' % (s.sSt, s.sSt))
    E('s_lshl_b32 s%d, s%d, 1' % (s.sT0, s.sT0))
    E('s_add_u32 s%d, s%d, s%d' % (s.sT0, s.sT0, s.sG))
    E('s_add_u32 s%d, s%d, s%d' % (s.sStS, s.sT1, s.sT0))
    E('s_lshl_b32 s%d, s%d, 10' % (s.sStS, s.sStS))
    E('s_lshl_b32 s%d, s%d, 1' % (s.sT0, s.sJ))
    E('s_add_u32 s%d, s%d, s%d' % (s.sT0, s.sT0, s.sG))
    E('s_lshl_b32 s%d, s%d, 7' % (s.sT0, s.sT0))
    E('s_add_u32 s%d, s%d, s%d' % (s.sFlagOff, s.sFlagOff, s.sT0))
    E('s_add_u32 s%d, s%d, %d' % (s.sFlagOff, s.sFlagOff, FLAGS_OFF + 2048))
    s.lane_col(s.vT2)
    E('s_lshl_b32 s%d, s%d, 6' % (s.sT0, s.sG))
    E('v_add_u32 v%d, s%d, v%d' % (s.vTrS[1], s.sT0, s.vT2))
    s.tr_base(s.vTr[0], s.vTrS[1], s.sPi, RINGA)
    for q in range(1, 4):
        E('v_xor_b32 v%d, %d, v%d' % (s.vTr[q], q << 11, s.vTr[0]))
    E('s_lshr_b32 s%d, s%d, 1' % (s.sT0, s.sPi))
    E('s_lshl_b32 s%d, s%d, 6' % (s.sT0, s.sT0))
    E('v_add_u32 v%d, s%d, v%d' % (s.vTrS[1], s.sT0, s.vT2))
    E('s_and_b32 s%d, s%d, 1' % (s.sT0, s.sT))
    s.tr_base(s.vTrS[0], s.vTrS[1], s.sT0, RINGA)
    E('v_xor_b32 v%d, %d, v%d' % (s.vTrS[1], 1 << 11, s.vTrS[0]))


def ffn_phase1(s, final=True):
    tl = s.tl
    s.rounds()
    def X(c): return s.dma_x(c)
    def W(r, c): return [s.dma_w(r, c)]
    dma = {-4: X(4), -2: W(0, 4), 0: X(5), 4: W(0, 5), 5: X(6), 8: W(0, 6), 9: W(1, 0), 10: W(1, 1),
           12: W(1, 2), 14: W(1, 3), 16: W(1, 4), 18: W(1, 5), 20: W(1, 6), 22: W(2, 0),
           24: W(2, 1), 26: W(2, 2), 28: W(2, 3), 30: W(2, 4), 32: W(2, 5), 34: W(2, 6),
           36: W('S', 0), 38: W('S', 1), 40: W('S', 2), 42: W('S', 3)}
    for f, gl in dma.items():
        if 'nodma' in XF and f >= 9:
            for g in gl:
                for i in (g if isinstance(g, list) else [g]):
                    for k in (i if isinstance(i, list) else [i]):
                        if k.tag: s.e.done_tags.add(k.tag)
            continue
        if len(gl) == 2:
            tl.add(f, 'x', gl[0]); tl.add(f + 1, 'x', gl[1])
        else:
            tl.add(f, 'x', gl[0])
    tl.add(24, 'pre', s.barrier([('w', 1, 0), ('w', 1, 1), ('w', 1, 2)], 'lgkm', name='B0'))
    tl.add(36, 'pre', s.barrier([('w', 1, c) for c in range(3, 7)], name='B0b'))
    tl.add(52, 'pre', s.barrier([('w', 2, c) for c in range(7)], 'lgkm', name='B1'))
    tl.add(80, 'pre', s.barrier([('w', 'S', c) for c in range(4)], 'lgkm', name='B2'))
    if s.pfw_late: tl.add(P('PFWG', -3), 'x', s.pfw_late)
    if 'nopf2' not in XF:
        g = P('PF2G', 13)
        for k, grp in enumerate(s.pf_w2(s.vPoll)): tl.add(g + P('PF2S', 4) * k, 'z', grp)
    tl.add(6, 'x', [i for g in s.tok_load() for i in g])
    tl.add(44, 'v', s.tok_resolve())
    for ci in range(7):
        for rho in range(2):
            f = 84 + 2 * ci + rho
            d = s.slot(f)
            u = ci // 2
            imm = ((u + 2) % 5) * 8192 + (ci % 2) * 4096
            a = s.wdst('S', u)
            an = ('r', (a, a + 8192), ('w', 'S', u))
            tl.add(f - 4, 'd', [I('ds_read_b64_tr_b16 v[%d:%d], v%d offset:%d' % (d, d + 1, s.vTrS[rho], imm), lds=an),
                                I('ds_read_b64_tr_b16 v[%d:%d], v%d offset:%d' % (d + 2, d + 3, s.vTrS[rho], imm + 512), lds=an)])
            x = s.xf(ci, rho)
            first = (ci == 0 and rho == 0)
            tl.add(f, 'm', s.mfma(s.acc[1], d, x, None if first else s.acc[1]))
            tl.add(f, 'v', [s.mfma4(s.csacc, s.ones, d, first), s.mfma4(s.csacc, s.ones, d + 2, False)])
    t = s.tE
    MS, ME, FL = P('MS', 2), P('ME', 24), P('FL', 10)
    for p in range(3):
        g0 = 28 * p + 24
        side = []
        if p == 0: side += s.stats_read(t)
        side += s.cs_read(p, t) + aug_col(s, t, s.vb1[p], t + 2)
        tl.place(side, g0, g0 + 3 + (2 if p == 0 else 0))
        accp = s.acc[p % 2]
        ga = g0 + 4 + (2 if p == 0 else 0)
        tl.add(ga, 'v', s.mfma(accp, s.augA, s.augB, accp))
        st = []
        for kk in range(2):
            ins = [I('buffer_store_dwordx4 v[%d:%d], v%d, s[%d:%d], s%d offen offset:%d sc1' % (s.pk + 4 * kk, s.pk + 4 * kk + 3, s.vLane16, s.sWS, s.sWS + 3, s.sSt, 1024 * kk), tag=('act', p, kk))]
            if kk == 1 and p < 2:
                ins.append(I('s_add_u32 s%d, s%d, 4096' % (s.sSt, s.sSt)))
            st.append(ins)
        if 'nost' in XF:
            for x in st: s.e.done_tags.add(x[0].tag)
            st = [x[1:] for x in st]
        ms = mish(s, accp, 16, t, s.pk, {8: st[0], 16: st[1]})
        if 'nomish' in XF: ms = st[0] + st[1]
        end = (g0 + 4 + ME) if p < 2 else 97
        tl.place(ms, ga + MS, end)
        fl = s.flag_store(p, s.sFlagOff, [('act', p, 1)], s.vT3)
        if p < 2:
            if 'nofl' not in XF: tl.add(end + FL, 'x', fl[0:1] + fl[1])
        else:
            s.fl2 = fl
    return 98


def ffn_tail_simple(s):
    E = s.E
    t = s.tE
    s.emit(aug_col(s, s.csacc, s.vb1[3], t, half=True))
    acc = s.acc[1]
    s.emit(s.mfma(acc, s.augA, s.augB, acc))
    xch_ops = ffn_xch(s)
    s.emit(xch_ops[0])
    s.emit(s.barrier([], 'lgkm', name='XCH'))
    s.emit(xch_ops[1])
    s.emit(s.fl2[0:1] + s.fl2[1])
    fl = s.flag_store(3, s.sFlagOff, [('act', 3, 0)], s.vT3)
    s.emit(fl[0:1] + fl[1])


XCH = 98304


def ffn_xch(s):
    acc = s.acc[1]
    a0 = s.acc[0]
    w = []
    sg = s.sM[0]
    w.append(I('s_sub_u32 s%d, 0, s%d' % (sg, s.sG)))
    w.append(I('s_mov_b32 s%d, s%d' % (sg + 1, sg)))
    for i in range(8):
        w.append(I('v_cndmask_b32 v%d, v%d, v%d, s[%d:%d]' % (a0 + i, acc + 8 + i, acc + i, sg, sg + 1)))
    for i in range(8):
        w.append(I('v_cndmask_b32 v%d, v%d, v%d, s[%d:%d]' % (acc + i, acc + i, acc + 8 + i, sg, sg + 1)))
    w.append(I('s_lshl_b32 s%d, s%d, 11' % (s.sT0, s.sWv)))
    w.append(I('s_add_u32 s%d, s%d, %d' % (s.sT0, s.sT0, XCH)))
    w.append(I('v_add_u32 v%d, s%d, v%d' % (s.vT0, s.sT0, s.vLane16)))
    w.append(I('s_xor_b32 s%d, s%d, %d' % (s.sT0, s.sT0, 4 << 11)))
    w.append(I('v_add_u32 v%d, s%d, v%d' % (s.vT1, s.sT0, s.vLane16)))
    for q in range(2):
        w.append(I('ds_write_b128 v%d, v[%d:%d] offset:%d' % (s.vT0, a0 + 4 * q, a0 + 4 * q + 3, 1024 * q), lds=('w', (XCH, XCH + 16384), 'xch')))
    r = []
    for q in range(2):
        r.append(I('ds_read_b128 v[%d:%d], v%d offset:%d' % (a0 + 4 * q, a0 + 4 * q + 3, s.vT1, 1024 * q), lds=('r', (XCH, XCH + 16384), 'xch')))
    for i in range(8):
        r.append(I('v_add_f32 v%d, v%d, v%d' % (acc + i, acc + i, a0 + i)))
    st = [I('buffer_store_dwordx4 v[%d:%d], v%d, s[%d:%d], s%d offen sc1' % (s.pk, s.pk + 3, s.vLane16, s.sWS, s.sWS + 3, s.sStS), tag=('act', 3, 0))]
    r += mish(s, acc, 8, s.tE, s.pk, {8: st})
    return w, r


def ffn_p2(s):
    import g5_p2
    from g5_p2 import P2, quads, A_, B_, C_, D_, E_
    tl = s.tl
    F0 = 98
    xa, xb = s.xfA, s.xfB
    p2 = P2(s, [A_, B_, C_, E_, D_, A_, B_, C_, E_],
            quads(xb, xb + 16, xb + 32, xa + 32, (xa + 48, xb + 48), s.acc[0], s.acc[1], xb, xb + 16), (xa, xa + 16))
    sc, ve = p2.setup_early(True)
    tl.place(sc + ve, 44, 51)
    def dmas(ps, g0, step=1):
        g = g0
        for p in ps:
            for grp in p2.dma(p):
                tl.add(g, 'x', grp); g += step
    def poll(level, gi, gc, acts, mask):
        tl.add(gi, 'x', s.poll_issue(('poll', level), mask))
        tl.add(gc, 'x', s.stamp_ins('L%da' % level) + s.poll_check(('poll', level), level, mask) + s.stamp_ins('L%d' % level))
        for k, p in enumerate(acts):
            tl.add(gc + k, 'x', p2.act(p))
    def put(grps, gaps):
        if isinstance(gaps, int): gaps = range(gaps, gaps + len(grps))
        for g, grp in zip(gaps, grps): tl.add(g, 'x', grp)
    def pol(level, gi, gc, mask):
        tl.add(gi, 'x', s.poll_issue(('poll', level), mask))
        tl.add(gc, 'x', s.stamp_ins('L%da' % level) + s.poll_check(('poll', level), level, mask) + s.stamp_ins('L%d' % level))
    put(p2.dma(0), P('FW0', 53))
    tl.add(60, 'pre', s.barrier([], name='Y1'))
    put(p2.dma(1), P('FW1', 60))
    tl.add(76, 'pre', s.barrier([], name='Y2'))
    put(p2.dma(2), [76, 77, 78, 79])
    pol(0, P('L0I', 74), P('L0C', 81), 'F')
    put(p2.act(0, True), [81, 82, 83, 84])
    put(p2.act(1, True), [85, 86, 87, 88])
    tl.place(p2.setup_tr(), 84, 90)
    p2.place_main(tl, F0)
    t = s.tE
    acc = s.acc[1]
    tl.add(98, 'x', aug_col(s, s.csacc, s.vb1[3], t, half=True))
    tl.add(98, 'z', s.mfma(acc, s.augA, s.augB, acc))
    w, r = ffn_xch(s)
    tl.place(w, 100, 101)
    tl.place(r, 102, P('SE', 108))
    tl.add(P('F2', 104), 'x', s.fl2[0:1] + s.fl2[1])
    fl = s.flag_store(3, s.sFlagOff, [('act', 3, 0)], s.vT3)
    tl.add(P('F3', 114), 'z', fl[0:1] + fl[1])
    for p in range(9):
        dr = 'ldsw' if p == 1 else ('lgkm' if p == 8 else None)
        tl.add(F0 + 8 * p - 4, 'pre', s.barrier(p2.wtags(p), dr, name='Q%d' % p))
    tl.place(p2.setup_late(), 104, 112)
    pol(1, P('L1I', 94), P('L1C', 100), 'F')
    put(p2.act(2, True), [100, 101, 102, 103])
    put(p2.dma(3), [105, 107, 108, 109])
    put(p2.act(3, True), [110, 111, 112, 113])
    put(p2.dma(4), [115, 116, 117, 118])
    pol(2, P('L2I', 112), P('L2C', 119), 'F')
    put(p2.act(4, True), [119, 120, 121, 122])
    put(p2.dma(5), [119, 120, 121, 122])
    put(p2.act(5, True), [123, 124, 125, 126])
    put(p2.dma(6), [123, 124, 125, 126])
    pol(3, P('L3I', 121), P('L3C', 127), 'F')
    put(p2.act(6, True), [127, 128, 129, 130])
    put(p2.dma(7), [127, 128, 129, 130])
    put(p2.dma(8), [134, 135, 136, 137])
    pol(4, P('L4I', 144), P('L4C', 150), 'O')
    put(p2.act(7, True), [P('L4C', 150)] * 4)
    put(p2.act(8, True), [P('L4C', 150) + 1] * 4)
    return p2, F0 + 72
```

```python
from g5 import *

ORDER = [0, 4, 1, 5, 2, 6, 3, 7, 8]
LEVEL = [0, 0, 1, 1, 2, 2, 3, 4, 4]
A_, B_, C_, D_, E_ = [32768 * i for i in range(5)]
RED = 0
REDQ = 17408


REDQ_ = REDQ


class P2:
    def __init__(self, s, SL, abuf, acc2, red=(0, 2 * REDQ)):
        self.s = s
        self.SL = [list(x) if isinstance(x, (list, tuple)) else [x + q * 8192 for q in range(4)] for x in SL]
        self.abuf = abuf
        self.acc2 = acc2
        self.ta = [s.sQ[2], s.sQ[0]]
        s.sTq = s.sQ[1]
        s.sTa = s.sQ[2]
        self.t = [s.sQ[3]] + list(s.sQo)
        self.vOffW2 = s.vOffW
        self.vOffWO = s.vOffS
        self.vTrP = [s.vTr[0], s.vTr[1]]
        self.vXo = s.vTr[2]
        self.vRedW, self.vRedR = s.vCSw, s.vCSr
        self.vXr = s.augA
        self.win = None
        self.red = red

    def setup_early(self, ffn):
        s = self.s
        t0, t1, t2, t3, t4 = self.t
        o = []
        def E(t): o.append(I(t))
        E('s_and_b32 s%d, s2, 7' % t0)
        E('s_lshr_b32 s%d, s2, 3' % t1)
        if ffn:
            E('s_lshl_b32 s%d, s%d, 5' % (t2, t0))
            E('s_sub_u32 s%d, s%d, 128' % (t2, t2))
            E('s_add_u32 s%d, s%d, s%d' % (t2, t2, t1))
        else:
            E('s_mul_i32 s%d, s%d, 24' % (t2, t0))
            E('s_add_u32 s%d, s%d, 128' % (t2, t2))
            grp = [I('s_cmp_ge_u32 s%d, 24' % t1),
                   I('s_cselect_b32 s%d, 1, 0' % s.sIdle),
                   I('s_cselect_b32 s%d, 0, s%d' % (t1, t1)),
                   I('s_cselect_b32 s%d, 0, %d' % (s.sW2 + 2, 1792 * 896)),
                   I('s_cselect_b32 s%d, 0, %d' % (s.sWO + 2, 448 * 896))]
            o.append(grp)
            E('s_add_u32 s%d, s%d, s%d' % (t2, t2, t1))
        E('s_mul_i32 s%d, s%d, 9363' % (s.sTb, t2))
        E('s_lshr_b32 s%d, s%d, 16' % (s.sTb, s.sTb))
        E('s_mul_i32 s%d, s%d, 7' % (t3, s.sTb))
        E('s_sub_u32 s%d, s%d, s%d' % (s.sCb, t2, t3))
        E('s_lshl_b32 s%d, s%d, 7' % (s.sCb, s.sCb))
        E('s_lshr_b32 s%d, s%d, 1' % (s.sKq, s.sWv))
        E('s_and_b32 s%d, s%d, 1' % (s.sTh, s.sWv))
        E('s_lshl_b32 s%d, s%d, 1' % (t0, s.sTb))
        E('s_add_u32 s%d, s%d, s%d' % (t0, t0, s.sTh))
        E('s_lshl_b32 s%d, s%d, 12' % (s.sPollOff, t0))
        E('s_lshl_b32 s%d, s%d, 9' % (t1, s.sKq))
        E('s_add_u32 s%d, s%d, s%d' % (s.sPollOff, s.sPollOff, t1))
        if FLAGS_OFF: E('s_add_u32 s%d, s%d, 0x%x' % (s.sPollOff, s.sPollOff, FLAGS_OFF))
        E('s_mul_i32 s%d, s%d, 144' % (t0, t0))
        E('s_add_u32 s%d, s%d, %d' % (t0, t0, ACT_OFF >> 10))
        E('s_mul_i32 s%d, s%d, 28' % (t1, s.sKq))
        E('s_add_u32 s%d, s%d, s%d' % (s.sAct, t0, t1))
        E('s_lshl_b32 s%d, s%d, 10' % (s.sAct, s.sAct))
        E('s_lshl_b32 s%d, s%d, 3' % (t1, s.sKq))
        E('s_add_u32 s%d, s%d, s%d' % (s.sActO, t0, t1))
        E('s_add_u32 s%d, s%d, 112' % (s.sActO, s.sActO))
        E('s_lshl_b32 s%d, s%d, 10' % (s.sActO, s.sActO))
        E('s_mul_i32 s%d, s%d, %d' % (t0, s.sTb, 64 * 896))
        E('s_add_u32 s%d, s%d, s%d' % (s.sOffO, t0, s.sCb))
        sc = o
        o = []
        v0_, v1_, v2_ = s.vT0, s.vT1, s.vT2
        E('v_lshrrev_b32 v%d, 3, v0' % v0_)
        E('v_and_b32 v%d, 7, v0' % v1_)
        E('v_lshrrev_b32 v%d, 2, v0' % v2_)
        E('v_and_b32 v%d, 4, v%d' % (v2_, v2_))
        E('v_xor_b32 v%d, v%d, v%d' % (v1_, v1_, v2_))
        E('v_lshlrev_b32 v%d, 4, v%d' % (v1_, v1_))
        E('s_lshl_b32 s%d, s%d, 3' % (t0, s.sWv))
        E('v_add_u32 v%d, s%d, v%d' % (v2_, t0, v0_))
        E('s_movk_i32 s%d, 896' % t1)
        E('v_mad_u32_u24 v%d, v%d, s%d, v%d' % (self.vOffW2, v2_, t1, v1_))
        return sc, o

    def setup_tr(self):
        s = self.s
        t0 = self.t[0]
        o = []
        def E(t): o.append(I(t))
        a, b = self.vTrP[0], self.vTrP[1]
        E('v_lshrrev_b32 v%d, 5, v0' % a)
        E('v_lshlrev_b32 v%d, 9, v%d' % (a, a))
        E('v_bfe_u32 v%d, v0, 2, 2' % b)
        E('v_lshl_add_u32 v%d, v%d, 7, v%d' % (a, b, a))
        E('v_bfe_u32 v%d, v0, 4, 1' % b)
        E('v_lshl_add_u32 v%d, v%d, 5, v%d' % (a, b, a))
        E('v_and_b32 v%d, 3, v0' % b)
        E('v_lshl_add_u32 v%d, v%d, 3, v%d' % (a, b, a))
        E('v_bfe_u32 v%d, v0, 3, 1' % b)
        E('v_lshl_add_u32 v%d, v%d, 6, v%d' % (a, b, a))
        E('s_lshl_b32 s%d, s%d, 13' % (t0, s.sKq))
        E('v_add_u32 v%d, s%d, v%d' % (a, t0, a))
        E('v_xor_b32 v%d, 64, v%d' % (b, a))
        self.win = 0
        return o

    def setup_late(self):
        s = self.s
        t0, t1 = self.t[0], self.t[1]
        v0_, v1_, v2_ = s.vT0, s.vT1, s.vT2
        o = []
        def E(t, **k): o.append(I(t, **k))
        E('v_lshrrev_b32 v%d, 3, v0' % v0_)
        E('v_and_b32 v%d, 7, v0' % v1_)
        E('s_lshl_b32 s%d, s%d, 3' % (t0, s.sWv))
        E('v_add_u32 v%d, s%d, v%d' % (v2_, t0, v0_))
        E('s_movk_i32 s%d, 896' % t1)
        E('v_lshlrev_b32 v%d, 4, v%d' % (self.vXo, v1_))
        E('v_mad_u32_u24 v%d, v%d, s%d, v%d' % (self.vXo, v2_, t1, self.vXo))
        E('buffer_load_dwordx4 v[%d:%d], v%d, s[%d:%d], s%d offen' % (self.vXr, self.vXr + 3, self.vXo, s.sX, s.sX + 3, s.sOffO), tag='xr')
        E('v_mul_u32_u24 v%d, 272, v%d' % (self.vRedR, v2_))
        E('v_lshl_add_u32 v%d, v%d, 5, v%d' % (self.vRedR, v1_, self.vRedR))
        if self.red[0]: E('v_add_u32 v%d, %d, v%d' % (self.vRedR, self.red[0], self.vRedR))
        E('s_and_b32 s%d, s%d, 3' % (t0, s.sWv))
        E('s_lshl_b32 s%d, s%d, 3' % (t0, t0))
        E('v_add_u32 v%d, s%d, v%d' % (v0_, t0, v0_))
        E('v_min_u32 v%d, 27, v%d' % (v0_, v0_))
        E('s_lshr_b32 s%d, s%d, 2' % (t0, s.sWv))
        E('s_mul_i32 s%d, s%d, 28' % (t0, t0))
        E('v_add_u32 v%d, s%d, v%d' % (v0_, t0, v0_))
        E('v_lshrrev_b32 v%d, 2, v0' % v2_)
        E('v_and_b32 v%d, 4, v%d' % (v2_, v2_))
        E('v_xor_b32 v%d, v%d, v%d' % (v1_, v1_, v2_))
        E('v_lshlrev_b32 v%d, 4, v%d' % (v1_, v1_))
        E('v_mad_u32_u24 v%d, v%d, s%d, v%d' % (self.vOffWO, v0_, t1, v1_))
        E('v_and_b32 v%d, 31, v0' % v0_)
        E('s_lshl_b32 s%d, s%d, 5' % (t0, s.sTh))
        E('v_add_u32 v%d, s%d, v%d' % (v0_, t0, v0_))
        E('v_mul_u32_u24 v%d, 272, v%d' % (v0_, v0_))
        E('s_mul_i32 s%d, s%d, %d' % (t0, s.sKq, REDQ))
        if self.red[0]: E('s_add_u32 s%d, s%d, %d' % (t0, t0, self.red[0]))
        ex = self.red[1] - self.red[0] - 2 * REDQ
        if ex:
            E('s_lshr_b32 s%d, s%d, 1' % (t1, s.sKq))
            E('s_mul_i32 s%d, s%d, %d' % (t1, t1, ex))
            E('s_add_u32 s%d, s%d, s%d' % (t0, t0, t1))
        E('v_add_u32 v%d, s%d, v%d' % (v0_, t0, v0_))
        E('v_lshrrev_b32 v%d, 5, v0' % v1_)
        E('v_lshl_add_u32 v%d, v%d, 4, v%d' % (self.vRedW, v1_, v0_))
        return o

    def dma(self, p):
        s = self.s
        st = ORDER[p]
        out = []
        for q in range(4):
            d = self.SL[p][q]
            if st < 7:
                srd_, voff, c = s.sW2, self.vOffW2, 448 * 896 * q + st * 64 * 896
            else:
                srd_, voff, c = s.sWO, self.vOffWO, 112 * 896 * q + (st - 7) * 56 * 896
            g = [I('s_add_u32 m0, s%d, %d' % (s.sM0w, d))]
            if c: g.append(I('s_add_u32 s%d, s%d, %d' % (s.sTq, s.sCb, c)))
            g.append(I('buffer_load_dwordx4 v%d, s[%d:%d], s%d offen lds' % (voff, srd_, srd_ + 3, s.sTq if c else s.sCb),
                       tag=('w2', p, q), lds=('w', (d, d + 8192), ('w2', p, q))))
            out.append(g)
        return out

    def act(self, p, split=False):
        s = self.s
        st = ORDER[p]
        base, c = (s.sAct, 4096 * st) if st < 7 else (s.sActO, 4096 * (st - 7))
        out = []
        sreg = self.ta[p % 2]
        for k in range(4):
            g = []
            if c and k == 0: g.append(I('s_add_u32 s%d, s%d, %d' % (sreg, base, c)))
            r = self.abuf[p][k]
            g.append(I('buffer_load_dwordx4 v[%d:%d], v%d, s[%d:%d], s%d offen offset:%d' % (r, r + 3, s.vLane16, s.sWS, s.sWS + 3, sreg if c else base, k * 1024), tag=('a', p, k)))
            out.append(g)
        return out if split else [i for g in out for i in g]

    def wtags(self, p):
        return [('w2', p, q) for q in range(4)]

    def place_main(self, tl, F0):
        s = self.s
        base = [q * 8192 for q in range(4)]
        for p in range(9):
            a = self.SL[p]
            rel = [a[q] - base[q] for q in range(4)]
            if len(set(rel)) == 1 and 0 <= rel[0] <= 65535 - 8192:
                off = rel[0]
            else:
                assert rel[0] == rel[1] and rel[2] == rel[3]
                if rel[0] == rel[2]:
                    bump = [I('v_add_u32 v%d, 0x%x, v%d' % (v, rel[0] & 0xffffffff, v)) for v in self.vTrP]
                else:
                    bump = [I('s_lshr_b32 s%d, s%d, 1' % (s.sT0, s.sKq)),
                            I('s_mul_i32 s%d, s%d, 0x%x' % (s.sT0, s.sT0, (rel[2] - rel[0]) & 0xffffffff)),
                            I('s_add_u32 s%d, s%d, 0x%x' % (s.sT0, s.sT0, rel[0] & 0xffffffff))]
                    bump += [I('v_add_u32 v%d, s%d, v%d' % (v, s.sT0, v)) for v in self.vTrP]
                tl.add(F0 + 8 * p - 4, 'd', [bump])
                base = list(a); off = 0
            an = ('r', [(a[q], a[q] + 8192) for q in range(4)], [('w2', p, q) for q in range(4)])
            for k in range(4):
                for ct in range(2):
                    g = F0 + 8 * p + 2 * k + ct
                    d = s.slot(g)
                    imm = off + k * 2048
                    tl.add(g - 4, 'd', [I('ds_read_b64_tr_b16 v[%d:%d], v%d offset:%d' % (d, d + 1, self.vTrP[ct], imm), lds=an),
                                        I('ds_read_b64_tr_b16 v[%d:%d], v%d offset:%d' % (d + 2, d + 3, self.vTrP[ct], imm + 1024), lds=an)])
                    acc = self.acc2[ct]
                    tl.add(g, 'm', s.mfma(acc, d, self.abuf[p][k], None if (p == 0 and k == 0) else acc))

    def finish(self):
        s = self.s
        E = s.E
        an = [(self.red[0], self.red[0] + 2 * REDQ), (self.red[1], self.red[1] + 2 * REDQ)]
        for ct in range(2):
            for g4 in range(4):
                r = self.acc2[ct] + 4 * g4
                E('ds_write_b128 v%d, v[%d:%d] offset:%d' % (self.vRedW, r, r + 3, 128 * ct + 32 * g4), lds=('w', an, 'red'))
        d2 = self.red[1] - self.red[0]
        far = d2 + REDQ + 16 > 65535
        if far: E('v_add_u32 v%d, %d, v%d' % (s.vT1, d2, self.vRedR))
        s.emit(s.barrier([], 'ldsw', name='RED'))
        R = s.ring
        for q in range(4):
            for hf in range(2):
                r = R + 8 * q + 4 * hf
                if q < 2: va, of = self.vRedR, REDQ * q + 16 * hf
                elif far: va, of = s.vT1, REDQ * (q - 2) + 16 * hf
                else: va, of = self.vRedR, d2 + REDQ * (q - 2) + 16 * hf
                E('ds_read_b128 v[%d:%d], v%d offset:%d' % (r, r + 3, va, of), lds=('r', an, 'red'))
        X = self.acc2[0]
        for j in range(4):
            E('v_lshlrev_b32 v%d, 16, v%d' % (X + 2 * j, self.vXr + j))
            E('v_and_b32 v%d, 0xffff0000, v%d' % (X + 2 * j + 1, self.vXr + j))
        E('v_mov_b32 v%d, 0x%x' % (s.vT0, LN2))
        for j in range(8): E('v_add_f32 v%d, v%d, v%d' % (R + j, R + j, R + 8 + j))
        for j in range(8): E('v_add_f32 v%d, v%d, v%d' % (R + 16 + j, R + 16 + j, R + 24 + j))
        for j in range(8): E('v_add_f32 v%d, v%d, v%d' % (R + j, R + j, R + 16 + j))
        for j in range(8): E('v_fmac_f32 v%d, v%d, v%d' % (X + j, R + j, s.vT0))
        for j in range(4): E('v_cvt_pk_bf16_f32 v%d, v%d, v%d' % (R + j, X + 2 * j, X + 2 * j + 1))
        E('buffer_store_dwordx4 v[%d:%d], v%d, s[%d:%d], s%d offen' % (R, R + 3, self.vXo, s.sOUT, s.sOUT + 3, s.sOffO), tag='out')


def quads(*bases):
    out = []
    for b in bases:
        if isinstance(b, tuple): out.append([b[0], b[0] + 4, b[1], b[1] + 4])
        else: out.append([b, b + 4, b + 8, b + 12])
    return out
```

```python
import sys, json
from g5 import *
import g5_ffn

STAGE = P('STAGE', 1)

def gen(label, prof):
    s = K(label, prof)
    if prof:
        s.E('v_mov_b32 v255, 0')
        s.stamp('start')
    s.prologue()
    s.E('s_bitcmp1_b32 s2, 2')
    s.e.emit(Fence())
    s.E('s_cbranch_scc1 %s_ffn' % label)
    common = s.e
    ei = None
    ea = common.fork()
    s.e = ea
    save = (s.nstamp, list(s.names), s.va.next)
    if STAGE >= 2:
        import g5_attn
        ei = g5_attn.attn_path(s, STAGE)
    else:
        s.tok_write()
    names_a = list(s.names)
    names_i = list(getattr(s, 'names_idle', names_a))
    s.prof_store() if STAGE >= 2 else None
    s.E('s_endpgm')
    nva = s.va.next
    ef = common.fork()
    s.e = ef
    s.nstamp, s.names, s.va.next = save[0], list(save[1]), save[2]
    s.tl = TL()
    s.L('%s_ffn' % label)
    ef.hist = []
    s.emit_setup(s.capture(g5_ffn.ffn_setup, s), True)
    f = g5_ffn.ffn_phase1(s)
    if STAGE >= 3:
        p2, f = g5_ffn.ffn_p2(s)
    s.stamp('setup')
    s.tl.emit(s.e, -4, f, s.lite('ffn'))
    if STAGE < 3:
        g5_ffn.ffn_tail_simple(s)
    else:
        s.stamp('mm')
        p2.finish()
    s.stamp('end')
    s.prof_store()
    names_f = list(s.names)
    s.E('%s_end:' % label)
    s.L('%s_last' % label)
    s.E('s_endpgm')
    nvf = s.va.next
    text = common.text() + ea.text() + (ei.text()[len(''):] if False else '') + ef.text()
    if ei is not None:
        text = common.text() + ea.text() + ei.text() + ef.text()
    errs = common.ldserr
    for x in errs[:40]: print(x)
    print('lds errors', len(errs), 'instrs attn', ea.nins, 'ffn', ef.nins, 'nops', ea.nnop, ef.nnop, 'vgprs', nva, nvf)
    return text, (256 if prof else max(nva, nvf)), names_a, names_f, names_i

def build(path, prof=False):
    l1 = KBASE + '_kernel'
    text, nv, na, nf, ni = gen(l1, prof)
    lines = ['; @launch grid=(256,1,1) block=(512,1,1) lds=163840']
    open(path, 'w').write(file_text(lines, [kernel_text(l1, text, nv)]))
    json.dump({'attn': na, 'ffn': nf, 'idle': ni}, open(path + '.names.json', 'w'))

if __name__ == '__main__':
    if len(sys.argv) > 1 and sys.argv[1] == 'prof':
        build('gen/' + os.environ.get('OUT', 'p5.s'), True)
    else:
        build('f5.s')
```

```python
from common import *
import os, struct
from collections import defaultdict

XF = set(os.environ.get('XF', '').split(',')) | {'nopf2', 'nopfx', 'nopfw'} - set(os.environ.get('YF', '').split(','))
P = lambda k, d: int(os.environ.get(k, d))
XL = P('XL', 0)
LOC = P('LOC', 0)
SC1 = '' if LOC else ' sc1'
POLLM = os.environ.get('POLLM', 'sc0').replace('+', ' ') if LOC else 'sc1'
FLAGM = (' ' + os.environ.get('FLAGM', '').replace('+', ' ')).rstrip() if LOC else ' sc1'

FLAGS_OFF = 0x0
KFLAGS_OFF = 0x40000
KVP_OFF = 0x80000
ACT_OFF = 0x200000
WS_BYTES = ACT_OFF + 64 * 144 * 1024
PROF_OFF = 0x2000000
RINGA = 114688
MISC = 155648
M_CS = MISC
M_ST = MISC + 4096
LOG2E = 0x3fb8aa3b
LN2 = 0x3f317218
BIGNEG = 0xf149f2ca


def f2u(x):
    return struct.unpack('<I', struct.pack('<f', x))[0]


def cost(it):
    if isinstance(it, (list, tuple)):
        return sum(cost(x) for x in it)
    k = it.kind
    if k == 'mfma': return 8 if it.passes == 8 else 2
    if k == 'trans': return 2
    if k in ('waittag', 'drain', 'fence', 'label'): return 0
    return 1


class TL:
    def __init__(self):
        self.g = defaultdict(lambda: {'pre': [], 'm': [], 'd': [], 'x': [], 'v': [], 'z': []})

    def add(self, f, key, it):
        lst = self.g[f][key]
        if isinstance(it, list): lst.extend(it)
        else: lst.append(it)

    def load(self, f):
        g = self.g[f]
        return cost(g['v']) + cost(g['x']) + cost(g['z'])

    def place(self, items, f0, f1, key='v'):
        gaps = list(range(f0, f1 + 1))
        cur = [self.load(f) for f in gaps]
        tot = sum(cost(i) for i in items)
        lo, hi = 0.0, max(cur) + tot + 1.0
        for _ in range(40):
            mid = (lo + hi) / 2
            if sum(max(0.0, mid - c) for c in cur) >= tot: hi = mid
            else: lo = mid
        room = [max(0.0, hi - c) for c in cur]
        i = 0; acc = 0.0; used = 0.0
        for gi, f in enumerate(gaps):
            acc += room[gi]
            while i < len(items) and (used + cost(items[i]) / 2.0 <= acc + 1e-6 or gi == len(gaps) - 1):
                it = items[i]
                self.g[f][key].extend(it if isinstance(it, (list, tuple)) else [it])
                used += cost(it); i += 1
        assert i == len(items)

    def emit(self, e, f0, f1, lite=None):
        for f in range(f0, f1):
            g = self.g[f]
            if lite: e.emit(lite(f))
            for key in ('pre', 'm', 'd', 'x', 'v', 'z'):
                e.emit(g[key])
            self.g[f] = {'pre': [], 'm': [], 'd': [], 'x': [], 'v': [], 'z': []}


class K:
    def __init__(self, label, prof=False):
        self.e = Emitter()
        self.label = label
        self.prof = prof
        self.tl = TL()
        self.sX, self.sW, self.sWS, self.sB = 8, 12, 16, 20
        self.sW2, self.sWO, self.sOUT = 68, 72, 76
        (self.sWv, self.sT, self.sG, self.sRb, self.sJ, self.sM0x, self.sM0w, self.sXoff) = range(24, 32)
        self.sT0, self.sT1, self.sT2, self.sT3 = 32, 33, 34, 35
        self.sWc = [36, 37, 38]
        self.sWs = 39
        self.sSt, self.sStS = 40, 41
        self.sM = [42, 44, 46]
        self.sMh = 48
        self.sPi, self.sK = 50, 51
        self.pX, self.pWQKV, self.pWPHI, self.pWO, self.pW1, self.pB1, self.pW2, self.pOUT, self.pDBG, self.pWS = 52, 54, 56, 58, 60, 62, 64, 66, 96, 98
        self.sTokB = 100
        self.sFlagOff = 101
        self.sStride = 3
        self.sTb, self.sCb, self.sIdle = 4, 5, 6
        self.sPollOff = 7
        self.sQ = [80, 81, 82, 83]
        self.sQo = [84, 85, 86, 87]
        self.sAct, self.sActO, self.sOffO = 88, 89, 94
        self.sKsel = 95
        self.ringperm = [0, 1, 4, 2, 3]
        self.sK64 = 93
        self.sMaskA, self.sSp, self.sKq, self.sTh = 52, 53, 54, 55
        self.sGat, self.sKvp, self.sKFlag, self.sKPoll = 56, 57, 58, 59
        self.sMl30 = 60
        self.vOffW, self.vLane16, self.vOffS = 1, 2, 3
        self.xfA, self.xfB = 4, 60
        self.acc = [116, 132]
        self.ring = 148
        va = self.va = RegAlloc('v', 180, 255)
        A = va.alloc
        self.csacc = A(4, 4); self.augA = A(4, 4); self.augB = A(4, 4)
        self.pool = A(24, 4)
        self.ones = A(2, 2)
        self.vTr = [A() for _ in range(4)]
        self.vC = A(); self.vCSw = A(); self.vCSr = A()
        self.vT0 = A(); self.vT1 = A(); self.vT2 = A(); self.vT3 = A()
        self.vTok = A(); self.vPoll = A(); self.vPollA = A()
        self.vPF = A()
        self.vL4 = self.vPF
        self.vPFW = self.vPoll
        self.pfw_late = []
        pool = self.pool
        self.sumacc = pool; self.sqacc = pool + 4
        self.vXa = [pool + 8 + i for i in range(4)]
        self.vOffX = [pool + 12, pool + 13]
        self.vSTw = pool + 14; self.vSTr = pool + 15
        self.tE = pool + 16
        self.pk = pool
        self.nstamp = 0
        self.names = []
        self._uid = 0

    def E(self, text, tag=None, lds=None):
        self.e.emit(I(text, tag, lds=lds))

    def emit(self, x):
        self.e.emit(x)

    def R(self, text):
        self.e._raw(text)

    def L(self, name):
        self.e.out.append(name + ':')

    def capture(self, fn, *a, **k):
        rec = Rec(); old = self.e; self.e = rec
        try: fn(*a, **k)
        finally: self.e = old
        return rec.items

    def pf(self, voff, srd_, off=0, lanes=None):
        ld = I('buffer_load_dword v%d, v%d, s[%d:%d], 0 offen%s' % (self.vPF, voff, srd_, srd_ + 3, (' offset:%d' % off) if off else ''))
        ld.wr = []
        if lanes is None: return [ld]
        if lanes <= 32:
            pre = [I('s_mov_b64 exec, 0x%x' % ((1 << lanes) - 1 if lanes < 32 else 0) if lanes < 32 else 's_mov_b32 exec_hi, 0')]
            assert lanes < 32
        else:
            pre = [I('s_mov_b32 exec_hi, 0x%x' % ((1 << (lanes - 32)) - 1))]
        return pre + [ld, I('s_mov_b64 exec, -1')]

    def pf_code(self):
        s = self; E = s.E
        lab = s.uid('pc')
        E('s_getpc_b64 s[%d:%d]' % (s.sT2, s.sT3))
        s.L(lab)
        E('s_lshr_b32 s%d, s2, 3' % s.sT0)
        E('s_lshl_b32 s%d, s%d, 3' % (s.sT0, s.sT0))
        E('s_add_u32 s%d, s%d, s%d' % (s.sT0, s.sT0, s.sWv))
        E('s_lshl_b32 s%d, s%d, 7' % (s.sT0, s.sT0))
        E('s_min_u32 s%d, s%d, %s_last-%s' % (s.sT0, s.sT0, s.label, lab))
        E('v_mov_b32 v%d, s%d' % (s.vT1, s.sT0))
        ld = I('global_load_dword v%d, v%d, s[%d:%d]' % (s.vPoll, s.vT1, s.sT2, s.sT3)); ld.wr = []
        s.emit(ld)

    def pf_x(self):
        s = self
        o = [I('s_lshr_b32 s%d, s2, 6' % s.sT0),
             I('s_lshl_b32 s%d, s%d, 3' % (s.sT0, s.sT0)),
             I('s_add_u32 s%d, s%d, s%d' % (s.sT0, s.sT0, s.sWv)),
             I('s_mul_i32 s%d, s%d, %d' % (s.sT0, s.sT0, 4 * 896)),
             I('s_add_u32 s%d, s%d, s%d' % (s.sT0, s.sT0, s.sXoff)),
             I('v_mul_u32_u24 v%d, 896, v0' % s.vT0),
             I('v_add_u32 v%d, s%d, v%d' % (s.vT0, s.sT0, s.vT0)),
             I('s_mov_b64 exec, 15')]
        for c in range(1, 7): o += s.pf(s.vT0, s.sX, 128 * c)
        o.append(I('s_mov_b64 exec, -1'))
        return o

    def pf_w_addr(self, ffn, dst):
        s = self
        t = s.vT1
        o = [I('s_mul_i32 s%d, s%d, 7' % (s.sT0, s.sWv)),
             I('v_add_u32 v%d, s%d, v0' % (t, s.sT0)),
             I('v_lshrrev_b32 v%d, 2, v%d' % (dst, t)),
             I('s_lshr_b32 s%d, s2, 3' % s.sT0),
             I('s_mul_i32 s%d, s%d, 14' % (s.sT0, s.sT0)),
             I('v_add_u32 v%d, s%d, v%d' % (dst, s.sT0, dst)),
             I('v_mul_u32_u24 v%d, s%d, v%d' % (dst, s.sStride, dst)),
             I('s_bfe_u32 s%d, s2, 0x10001' % s.sT0)]
        if ffn:
            o += [I('s_mul_i32 s%d, s%d, 1792' % (s.sT0, s.sT0)),
                  I('v_add_u32 v%d, s%d, v%d' % (dst, s.sT0, dst)),
                  I('v_and_b32 v%d, 1, v%d' % (s.vT2, t)),
                  I('v_lshl_add_u32 v%d, v%d, 6, v%d' % (dst, s.vT2, dst)),
                  I('v_and_b32 v%d, 3, v%d' % (t, t)),
                  I('v_mul_u32_u24 v%d, 448, v%d' % (t, t)),
                  I('v_add_u32 v%d, v%d, v%d' % (dst, t, dst))]
        else:
            o += [I('s_mul_i32 s%d, s%d, 384' % (s.sT0, s.sT0)),
                  I('v_add_u32 v%d, s%d, v%d' % (dst, s.sT0, dst)),
                  I('v_and_b32 v%d, 3, v%d' % (t, t)),
                  I('v_lshl_add_u32 v%d, v%d, 7, v%d' % (dst, t, dst))]
        return o

    def pf_w2(self, t0):
        s = self
        a, b = s.sSp, 92
        def adr(n):
            return [I('s_lshr_b32 s%d, s2, 3' % a),
                    I('s_mul_i32 s%d, s%d, %d' % (a, a, n)),
                    I('s_mul_i32 s%d, s%d, 7' % (b, s.sWv)),
                    I('s_add_u32 s%d, s%d, s%d' % (a, a, b)),
                    I('v_add_u32 v%d, s%d, v0' % (t0, a)),
                    I('v_lshlrev_b32 v%d, 7, v%d' % (t0, t0))]
        lds = []
        for k in range(7):
            lds.append((adr(392) if k == 0 else [I('v_add_u32 v%d, 7168, v%d' % (t0, t0))]) + s.pf(t0, s.sW2, 0, 7))
        for k in range(2):
            lds.append((adr(98) if k == 0 else [I('v_add_u32 v%d, 7168, v%d' % (t0, t0))]) + s.pf(t0, s.sWO, 0, 7))
        return lds

    def pf3(self, part=None):
        s = self
        parts = [(s.sW2, 49, 0, 49), (s.sWO, 13, 0, 13)] if part is None else [part]
        o = [I('s_lshl_b32 s%d, s92, 3' % s.sT0),
             I('s_add_u32 s%d, s%d, s%d' % (s.sT0, s.sT0, s.sWv))]
        for (srd_, n, first, cnt), v in zip(parts, (s.vT0, s.vT1)):
            o += [I('s_mul_i32 s%d, s%d, %d' % (s.sT1, s.sT0, n))]
            if first: o += [I('s_add_u32 s%d, s%d, %d' % (s.sT1, s.sT1, first))]
            o += [I('v_min_u32 v%d, %d, v0' % (v, cnt - 1)),
                  I('v_add_u32 v%d, s%d, v%d' % (v, s.sT1, v)),
                  I('v_lshlrev_b32 v%d, 7, v%d' % (v, v))]
            ld = I('buffer_load_dword v254, v%d, s[%d:%d], 0 offen' % (v, srd_, srd_ + 3)); ld.wr = []
            o.append(ld)
        return o

    def pf4(self):
        s = self
        o = [I('s_lshl_b32 s%d, s2, 3' % s.sT0),
             I('s_add_u32 s%d, s%d, s%d' % (s.sT0, s.sT0, s.sWv))]
        for (srd_, n), v in zip(((s.sW2, 7), (s.sWO, 2)), (s.vT0, s.vT1)):
            o += [I('s_mul_i32 s%d, s%d, %d' % (s.sT1, s.sT0, n)),
                  I('v_min_u32 v%d, %d, v0' % (v, n - 1)),
                  I('v_add_u32 v%d, s%d, v%d' % (v, s.sT1, v)),
                  I('v_lshlrev_b32 v%d, 7, v%d' % (v, v))]
            ld = I('buffer_load_dword v254, v%d, s[%d:%d], 0 offen' % (v, srd_, srd_ + 3)); ld.wr = []
            o.append(ld)
        return o

    def pf5(self):
        s = self
        o = [I('s_and_b32 s%d, s2, 3' % s.sT0),
             I('s_lshl_b32 s%d, s%d, 5' % (s.sT0, s.sT0)),
             I('s_lshr_b32 s%d, s2, 3' % s.sT1),
             I('s_add_u32 s%d, s%d, s%d' % (s.sT0, s.sT0, s.sT1)),
             I('s_lshl_b32 s%d, s%d, 3' % (s.sT0, s.sT0)),
             I('s_add_u32 s%d, s%d, s%d' % (s.sT0, s.sT0, s.sWv))]
        parts = []
        for (srd_, n), v in zip(((s.sW2, 13), (s.sWO, 4)), (s.vT0, s.vT1)):
            q = [I('s_mul_i32 s%d, s%d, %d' % (s.sT1, s.sT0, n)),
                 I('v_min_u32 v%d, %d, v0' % (v, n - 1)),
                 I('v_add_u32 v%d, s%d, v%d' % (v, s.sT1, v)),
                 I('v_lshlrev_b32 v%d, 7, v%d' % (v, v))]
            ld = I('buffer_load_dword v254, v%d, s[%d:%d], 0 offen' % (v, srd_, srd_ + 3)); ld.wr = []
            q.append(ld)
            parts.append(q)
        return o + parts[0] + parts[1]

    def pf3_place(self, tl, spec):
        s = self
        gs = [int(x) for x in spec.split('+')]
        if len(gs) == 1:
            tl.add(gs[0], 'z', s.pf3()); return
        parts = [(s.sW2, 49, 0, 17), (s.sW2, 49, 17, 16), (s.sW2, 49, 33, 16), (s.sWO, 13, 0, 13)]
        for g, pt in zip(gs, parts): tl.add(g, 'z', s.pf3(pt))

    def uid(self, base):
        K._u = getattr(K, '_u', 0) + 1
        return '%s_%s%d' % (self.label, base, K._u)

    def xf(self, c, q):
        return (self.xfA + 8 * c + 4 * q) if q < 2 else (self.xfB + 8 * c + 4 * (q - 2))

    def slot(self, f):
        return self.ring + 4 * (f % 8)

    def mfma(self, d, a, b, c):
        cs = '0' if c is None else 'v[%d:%d]' % (c, c + 15)
        return I('v_mfma_f32_32x32x16_bf16 v[%d:%d], v[%d:%d], v[%d:%d], %s' % (d, d + 15, a, a + 3, b, b + 3, cs))

    def mfma4(self, d, a, b, first):
        cs = '0' if first else 'v[%d:%d]' % (d, d + 3)
        return I('v_mfma_f32_4x4x4_16b_bf16 v[%d:%d], v[%d:%d], v[%d:%d], %s' % (d, d + 3, a, a + 1, b, b + 1, cs))

    def stamp_ins(self, name):
        if not self.prof:
            return []
        sel = os.environ.get('STAMPS')
        if sel and name not in sel.split(','):
            return []
        i = self.nstamp
        self.nstamp += 1
        assert i < 63
        self.names.append(name)
        return [I('s_memrealtime s[90:91]' if os.environ.get('RT') else 's_memtime s[90:91]'), Drain(['lgkm']), I('s_nop 3'), I('v_writelane_b32 v255, s90, %d' % i)]

    def stamp(self, name):
        self.emit(self.stamp_ins(name))

    def lite(self, which):
        sel = os.environ.get('LITE')
        if not (self.prof and sel): return None
        p = sel.split(':')
        if p[0] != which: return None
        a, b = int(p[1]), int(p[2]); st = int(p[3]) if len(p) > 3 else 1
        state = {'prev': None}
        def f(g):
            o = []
            if not (a <= g <= b + 1) or ((g - a) % st and g != b + 1): return o
            if state['prev'] is not None:
                o.append(I('v_writelane_b32 v255, s90, %d' % state['prev'])); state['prev'] = None
            if g <= b:
                i = self.nstamp; self.nstamp += 1; assert i < 64
                self.names.append('g%d' % g)
                x = I('s_memtime s[90:91]'); x.kind = 'salu'; x.wr = []; x.rd = []
                o.append(x); state['prev'] = i
            return o
        return f

    def val_ins(self, name, sreg):
        if not self.prof: return []
        sel = os.environ.get('STAMPS')
        if sel and name not in sel.split(','): return []
        i = self.nstamp; self.nstamp += 1
        self.names.append('#' + name)
        return [I('s_nop 3'), I('v_writelane_b32 v255, s%d, %d' % (sreg, i))]

    def prof_store(self):
        if not self.prof:
            return
        E = self.E
        E('s_lshl_b32 s92, s2, 3')
        E('s_add_u32 s92, s92, s%d' % self.sWv)
        E('s_lshl_b32 s92, s92, 8')
        E('s_add_u32 s92, s92, 0x%x' % PROF_OFF)
        E('v_lshlrev_b32 v%d, 2, v0' % self.vT0)
        E('s_mov_b32 s%d, 0x%x' % (self.sWS + 2, 0x4000000))
        E('buffer_store_dword v255, v%d, s[%d:%d], s92 offen' % (self.vT0, self.sWS, self.sWS + 3))

    def wdst(self, r, c):
        if r == 0: return RINGA + self.ringperm[c % 5] * 8192
        if r == 'S': return RINGA + ((c + 2) % 5) * 8192
        return (r - 1) * 57344 + c * 8192

    def dma_x(self, c):
        s = self
        out = []
        for e_ in range(2):
            out.append([I('s_add_u32 m0, s%d, %d' % (s.sM0x, c * 16384 + e_ * 1024 - c * 128)),
                        I('buffer_load_dwordx4 v%d, s[%d:%d], s%d offen offset:%d lds' % (s.vOffX[e_], s.sX, s.sX + 3, s.sXoff, c * 128), tag=('x', c),
                          lds=('w', (c * 16384, c * 16384 + 16384), ('x', c)))])
        return out

    def dma_w(self, r, c):
        s = self
        d = s.wdst(r, c)
        out = [I('s_add_u32 m0, s%d, %d' % (s.sM0w, d))]
        if r == 'S':
            out.append(I('buffer_load_dwordx4 v%d, s[%d:%d], s%d offen lds' % (s.vOffS, s.sW, s.sW + 3, s.sWs), tag=('w', r, c), lds=('w', (d, d + 8192), ('w', r, c))))
            out.append(I('s_add_u32 s%d, s%d, %d' % (s.sWs, s.sWs, 128 * 3584)))
        else:
            out.append(I('buffer_load_dwordx4 v%d, s[%d:%d], s%d offen lds' % (s.vOffW, s.sW, s.sW + 3, s.sWc[r]), tag=('w', r, c), lds=('w', (d, d + 8192), ('w', r, c))))
            out.append(I('s_add_u32 s%d, s%d, s%d' % (s.sWc[r], s.sWc[r], s.sK64)))
        return out

    def barrier(self, tags=(), drain=None, name=None):
        out = []
        if name and os.environ.get('PRE'): out += self.stamp_ins(name + 'a')
        if tags: out.append(WaitTag(list(tags)))
        if drain: out.append(Drain([drain]))
        if name: out += self.stamp_ins(name)
        out.append(I('s_barrier'))
        return out

    def prologue(self):
        E = self.E; s = self
        E('s_load_dwordx8 s[52:59], s[0:1], 0')
        E('s_load_dwordx8 s[60:67], s[0:1], 40')
        E('s_load_dwordx4 s[96:99], s[0:1], 72')
        E('s_cmp_ge_u32 s2, 256')
        E('s_cbranch_scc1 %s_end' % s.label)
        if 'swapx' in XF: E('s_xor_b32 s2, s2, 4')
        E('v_lshrrev_b32 v%d, 6, v0' % s.vT0)
        E('v_and_b32 v0, 63, v0')
        E('v_readfirstlane_b32 s%d, v%d' % (s.sWv, s.vT0))
        if 'nopfc' not in XF and not P('PFCL', 0): s.pf_code()
        if os.environ.get('PF3') or os.environ.get('PF3A'): E('s_lshr_b32 s92, s2, 3')
        if XL:
            E('s_and_b32 s%d, s2, 7' % s.sT0)
            E('s_lshl_b32 s%d, s%d, 1' % (s.sT0, s.sT0))
            E('s_bfe_u32 s%d, s2, 0x10004' % s.sT1)
            E('s_add_u32 s%d, s%d, s%d' % (s.sT0, s.sT0, s.sT1))
            E('s_lshr_b32 s%d, s2, 5' % s.sT1)
            E('s_bfe_u32 s%d, s2, 0x10003' % s.sT2)
            E('s_lshl_b32 s%d, s%d, 2' % (s.sT2, s.sT2))
            E('s_lshr_b32 s%d, s%d, 3' % (s.sT3, s.sT0))
            E('s_or_b32 s%d, s%d, s%d' % (s.sT2, s.sT2, s.sT3))
            E('s_lshr_b32 s%d, s%d, 2' % (s.sT3, s.sT1))
            E('s_lshl_b32 s%d, s%d, 1' % (s.sT3, s.sT3))
            E('s_or_b32 s%d, s%d, s%d' % (s.sT2, s.sT2, s.sT3))
            E('s_and_b32 s%d, s%d, 7' % (s.sT0, s.sT0))
            E('s_lshl_b32 s%d, s%d, 3' % (s.sT0, s.sT0))
            E('s_or_b32 s%d, s%d, s%d' % (s.sT2, s.sT2, s.sT0))
            E('s_and_b32 s%d, s%d, 3' % (s.sT1, s.sT1))
            E('s_lshl_b32 s%d, s%d, 6' % (s.sT1, s.sT1))
            E('s_or_b32 s2, s%d, s%d' % (s.sT2, s.sT1))
        E('s_lshr_b32 s%d, s2, 3' % s.sT1)
        E('s_and_b32 s%d, s2, 1' % s.sT2)
        E('s_lshl_b32 s%d, s%d, 3' % (s.sT2, s.sT2))
        E('s_and_b32 s%d, s%d, 7' % (s.sT3, s.sT1))
        E('s_add_u32 s%d, s%d, s%d' % (s.sRb, s.sT2, s.sT3))
        E('s_and_b32 s%d, s2, 2' % s.sT2)
        E('s_lshl_b32 s%d, s%d, 1' % (s.sT2, s.sT2))
        E('s_lshr_b32 s%d, s%d, 3' % (s.sT3, s.sT1))
        E('s_add_u32 s%d, s%d, s%d' % (s.sJ, s.sT2, s.sT3))
        E('s_mul_i32 s%d, s%d, %d' % (s.sXoff, s.sRb, 128 * 896))
        E('s_lshl_b32 s%d, s%d, 11' % (s.sM0x, s.sWv))
        E('s_lshl_b32 s%d, s%d, 10' % (s.sM0w, s.sWv))
        E('v_lshrrev_b32 v%d, 3, v0' % s.vT0)
        E('v_and_b32 v%d, 7, v0' % s.vT1)
        E('v_lshrrev_b32 v%d, 4, v0' % s.vT2)
        E('v_xor_b32 v%d, v%d, v%d' % (s.vT3, s.vT1, s.vT2))
        E('v_lshlrev_b32 v%d, 4, v%d' % (s.vT3, s.vT3))
        E('s_lshl_b32 s%d, s%d, 4' % (s.sT0, s.sWv))
        E('v_add_u32 v%d, s%d, v%d' % (s.vOffX[1], s.sT0, s.vT0))
        E('s_movk_i32 s%d, 896' % s.sT1)
        E('v_mad_u32_u24 v%d, v%d, s%d, v%d' % (s.vOffX[0], s.vOffX[1], s.sT1, s.vT3))
        E('v_xor_b32 v%d, 64, v%d' % (s.vOffX[1], s.vOffX[0]))
        E('v_add_u32 v%d, %d, v%d' % (s.vOffX[1], 8 * 896, s.vOffX[1]))
        E('v_lshlrev_b32 v%d, 2, v%d' % (s.vT2, s.vT2))
        E('v_and_b32 v%d, 4, v%d' % (s.vT2, s.vT2))
        E('v_xor_b32 v%d, v%d, v%d' % (s.vT1, s.vT1, s.vT2))
        E('s_lshl_b32 s%d, s%d, 3' % (s.sT0, s.sWv))
        E('v_add_u32 v%d, s%d, v%d' % (s.vT0, s.sT0, s.vT0))
        E('s_mul_i32 s%d, s%d, 7' % (s.sT2, s.sJ))
        E('s_and_b32 s%d, s%d, 1' % (s.sT3, s.sJ))
        E('s_add_u32 s%d, s%d, s%d' % (s.sT2, s.sT2, s.sT3))
        E('s_lshl_b32 s%d, s%d, 6' % (s.sT2, s.sT2))
        E('s_lshr_b32 s%d, s%d, 1' % (s.sT3, s.sJ))
        E('s_lshr_b32 s%d, s%d, 2' % (s.sT0, s.sJ))
        E('s_and_b32 s%d, s%d, s%d' % (s.sT3, s.sT3, s.sT0))
        E('s_and_b32 s%d, s%d, 1' % (s.sT3, s.sT3))
        E('s_xor_b32 s%d, s%d, s%d' % (s.sT3, s.sJ, s.sT3))
        E('s_mul_i32 s%d, s%d, 112' % (s.sT0, s.sT3))
        E('s_add_u32 s%d, s%d, 896' % (s.sT0, s.sT0))
        E('s_movk_i32 s%d, 0xe00' % s.sT1)
        E('s_movk_i32 s%d, 0xa80' % s.sK64)
        E('s_bitcmp1_b32 s2, 2')
        if 'allw1' in XF: E('s_cmp_eq_u32 s2, s2')
        E('s_cselect_b32 s%d, s%d, s%d' % (s.sWc[0], s.sT2, s.sT0))
        E('s_cselect_b32 s%d, s%d, s%d' % (s.sJ, s.sJ, s.sT3))
        E('s_cselect_b32 s%d, s%d, s%d' % (s.sStride, s.sT1, s.sK64))
        E('s_cselect_b32 s%d, 8, %d' % (s.sT0, 8 if 'nodis' in XF else 7))
        E('s_cselect_b32 s%d, s%d, s%d' % (s.sW, s.pW1, s.pWQKV))
        E('s_cselect_b32 s%d, s%d, s%d' % (s.sW + 1, s.pW1 + 1, s.pWQKV + 1))
        if 'allwq' in XF:
            E('s_mov_b32 s%d, s%d' % (s.sStride, s.sK64))
            E('s_mov_b32 s%d, s%d' % (s.sW, s.pWQKV))
            E('s_mov_b32 s%d, s%d' % (s.sW + 1, s.pWQKV + 1))
        if 'w1k' in XF:
            E('s_movk_i32 s%d, 0xe00' % s.sStride)
            E('s_mov_b32 s%d, s%d' % (s.sW, s.pW1))
            E('s_mov_b32 s%d, s%d' % (s.sW + 1, s.pW1 + 1))
        E('v_lshlrev_b32 v%d, 4, v%d' % (s.vT2, s.vT1))
        E('v_mad_u32_u24 v%d, v%d, s%d, v%d' % (s.vOffW, s.vT0, s.sStride, s.vT2))
        E('v_cmp_eq_u32 vcc, s%d, v%d' % (s.sT0, s.vT1))
        E('v_mov_b32 v%d, 0x40000000' % s.vT2)
        E('v_cndmask_b32 v%d, v%d, v%d, vcc' % (s.vOffW, s.vOffW, s.vT2))
        E('s_lshl_b32 s%d, s%d, 6' % (s.sK64, s.sStride))
        E('s_mul_i32 s%d, s%d, 448' % (s.sT1, s.sStride))
        srd(s.e, s.sX, s.pX, 2048 * 896)
        E('s_and_b32 s%d, s%d, 0xffff' % (s.sW + 1, s.sW + 1))
        E('s_mov_b32 s%d, s%d' % (s.sW + 2, s.sT1))
        E('s_mov_b32 s%d, 0x00020000' % (s.sW + 3))
        s.stamp('predma')
        n0 = P('N0', 1)
        for c in range(n0):
            s.emit([i for g in s.dma_x(c) for i in g])
            s.emit(s.dma_w(0, c))
        if 'nopfc' not in XF and P('PFCL', 0) == 1: s.pf_code()
        s.rest_dma = [[i for g in s.dma_x(c) for i in g] + s.dma_w(0, c) for c in range(n0, 4)]
        s.stamp('dma')

    def emit_setup(self, items, ffn):
        s = self
        offs = (0, 128, 256) if ffn else (896, 1792, 0)
        if 'nopfw' not in XF:
            s.emit(s.pf_w_addr(ffn, s.vPFW))
            s.emit(s.pf(s.vPFW, s.sW, offs[0], 7))
        s.stamp('pfw')
        if 'nopfx' not in XF: s.emit(s.pf_x())
        s.stamp('pfx')
        if 'nopfw' not in XF:
            late = s.pf(s.vPFW, s.sW, offs[1], 7) + s.pf(s.vPFW, s.sW, offs[2], 7)
            if 'pfw3' in XF: s.emit(late)
            else: s.pfw_late = late
        n = len(s.rest_dma)
        m = len(items)
        fr = [float(x) for x in os.environ.get('RD', '1,1,1').split(',')]
        k = 0
        for idx, it in enumerate(items):
            while k < n and idx >= fr[k] * m:
                s.emit(s.rest_dma[k]); k += 1
            s.emit(it)
        s.stamp('su')
        while k < n:
            s.emit(s.rest_dma[k]); k += 1
            s.stamp('r%d' % k)

    def setup_addrs(self):
        E = self.E; s = self
        E('s_and_b32 s%d, s%d, 3' % (s.sT, s.sWv))
        E('s_lshr_b32 s%d, s%d, 2' % (s.sG, s.sWv))
        E('s_lshl_b32 s%d, s%d, 1' % (s.sPi, s.sG))
        E('s_xor_b32 s%d, s%d, s%d' % (s.sPi, s.sPi, s.sT))
        E('v_lshrrev_b32 v%d, 5, v0' % s.vT0)
        E('s_lshl_b32 s%d, s%d, 1' % (s.sT1, s.sPi))
        E('v_add_u32 v%d, s%d, v%d' % (s.vT1, s.sT1, s.vT0))
        E('v_bfe_u32 v%d, v0, 1, 3' % s.vT2)
        E('v_xor_b32 v%d, v%d, v%d' % (s.vT1, s.vT1, s.vT2))
        E('v_lshlrev_b32 v%d, 4, v%d' % (s.vT1, s.vT1))
        E('v_and_b32 v%d, 31, v0' % s.vT2)
        E('v_lshl_add_u32 v%d, v%d, 7, v%d' % (s.vT1, s.vT2, s.vT1))
        E('s_lshl_b32 s%d, s%d, 12' % (s.sT1, s.sT))
        E('v_add_u32 v%d, s%d, v%d' % (s.vXa[0], s.sT1, s.vT1))
        for q in range(1, 4):
            E('v_xor_b32 v%d, %d, v%d' % (s.vXa[q], q << 5, s.vXa[0]))
        E('v_lshlrev_b32 v%d, 4, v0' % s.vLane16)
        E('v_lshlrev_b32 v%d, 2, v0' % s.vL4)
        E('v_lshlrev_b32 v%d, 7, v0' % s.vPollA)
        E('s_lshl_b32 s%d, s%d, 10' % (s.sT1, s.sG))
        E('s_add_u32 s%d, s%d, %d' % (s.sT1, s.sT1, M_CS))
        E('v_add_u32 v%d, s%d, v%d' % (s.vCSr, s.sT1, s.vLane16))
        E('s_lshl_b32 s%d, s%d, 2' % (s.sT1, s.sT))
        E('v_add_u32 v%d, s%d, v%d' % (s.vCSw, s.sT1, s.vCSr))
        E('s_lshl_b32 s%d, s%d, 10' % (s.sT1, s.sT))
        E('s_add_u32 s%d, s%d, %d' % (s.sT1, s.sT1, M_ST))
        E('v_lshlrev_b32 v%d, 5, v%d' % (s.vT2, s.vT2))
        E('v_add_u32 v%d, s%d, v%d' % (s.vSTr, s.sT1, s.vT2))
        E('s_lshl_b32 s%d, s%d, 4' % (s.sT1, s.sG))
        E('v_lshl_add_u32 v%d, v%d, 3, v%d' % (s.vSTw, s.vT0, s.vSTr))
        E('v_add_u32 v%d, s%d, v%d' % (s.vSTw, s.sT1, s.vSTw))
        E('v_mov_b32 v%d, 0x3f803f80' % s.ones)
        E('v_mov_b32 v%d, 0x3f803f80' % (s.ones + 1))
        E('v_mov_b32 v%d, 0' % (s.augA + 3))
        for k, m in enumerate((0x22222222, 0xcccccccc, 0x88888888)):
            E('s_mov_b32 s%d, 0x%x' % (s.sM[k], m)); E('s_mov_b32 s%d, 0x%x' % (s.sM[k] + 1, m))
        E('s_mov_b32 s%d, 0' % s.sMh); E('s_mov_b32 s%d, -1' % (s.sMh + 1))
        E('s_mov_b32 s%d, 0x%x' % (s.sK, f2u(1.0 / 448)))

    def tr_base(self, dst, vcol, spi, base):
        E = self.E; s = self
        E('v_lshrrev_b32 v%d, 5, v0' % s.vT0)
        E('v_lshlrev_b32 v%d, 10, v%d' % (s.vT0, s.vT0))
        E('v_bfe_u32 v%d, v0, 2, 2' % s.vT1)
        E('v_lshl_add_u32 v%d, v%d, 7, v%d' % (s.vT0, s.vT1, s.vT0))
        E('v_lshlrev_b32 v%d, 3, v0' % s.vT1)
        E('v_and_b32 v%d, 64, v%d' % (s.vT1, s.vT1))
        E('v_xor_b32 v%d, v%d, v%d' % (s.vT1, s.vT1, vcol))
        E('v_add_u32 v%d, v%d, v%d' % (s.vT0, s.vT0, s.vT1))
        E('s_lshl_b32 s%d, s%d, 11' % (s.sT1, spi))
        E('s_add_u32 s%d, s%d, %d' % (s.sT1, s.sT1, base))
        E('v_add_u32 v%d, s%d, v%d' % (dst, s.sT1, s.vT0))

    def lane_col(self, dst):
        E = self.E; s = self
        E('v_and_b32 v%d, 3, v0' % dst)
        E('v_lshlrev_b32 v%d, 3, v%d' % (dst, dst))
        E('v_bfe_u32 v%d, v0, 4, 1' % s.vT3)
        E('v_lshl_add_u32 v%d, v%d, 5, v%d' % (dst, s.vT3, dst))

    def frag_reads(self, f):
        s = self
        r, c, q = f // 28, (f % 28) // 4, f % 4
        d = s.slot(f)
        out = []
        if r == 0 and 'nox' not in XF:
            x = s.xf(c, q)
            out.append(I('ds_read_b128 v[%d:%d], v%d offset:%d' % (x, x + 3, s.vXa[q], (c % 4) * 16384), lds=('r', (c * 16384, c * 16384 + 16384), ('x', c))))
        imm = s.ringperm[c % 5] * 8192 if r == 0 else c * 8192
        a = s.wdst(r, c)
        an = ('r', (a, a + 8192), ('w', r, c))
        out.append(I('ds_read_b64_tr_b16 v[%d:%d], v%d offset:%d' % (d, d + 1, s.vTr[q], imm), lds=an))
        out.append(I('ds_read_b64_tr_b16 v[%d:%d], v%d offset:%d' % (d + 2, d + 3, s.vTr[q], imm + 512), lds=an))
        return out

    def rounds(self, swap=(False, False, False), nr=3):
        s = self; tl = s.tl
        for f in range(28 * nr):
            r, c, q = f // 28, (f % 28) // 4, f % 4
            tl.add(f - 4, 'd', s.frag_reads(f))
            acc = s.acc[r % 2]
            x = s.xf(c, q); w = s.slot(f)
            cs = None if (c == 0 and q == 0) else acc
            tl.add(f, 'm', s.mfma(acc, x, w, cs) if swap[r] else s.mfma(acc, w, x, cs))
            if q == 0:
                c0 = s.mfma4(s.csacc, s.ones, w, c == 0)
                c1 = s.mfma4(s.csacc, s.ones, w + 2, False)
                zk = 'z' if 'm4end' in XF else 'v'
                if c < 6:
                    tl.add(f, zk, c0); tl.add(f + 1, zk, c1)
                else:
                    tl.add(f - 3, zk, c0); tl.add(f - 2, zk, c1)
            if r == 0 and q < 2 and 'nostat' not in XF:
                fst = (c == 0 and q == 0)
                ff = f if c < 6 else f - 3 + 0
                if c < 6:
                    tl.add(f, 'v', [s.mfma4(s.sumacc, s.ones, x, fst), s.mfma4(s.sqacc, x, x, fst)])
                    tl.add(f + 2, 'v', [s.mfma4(s.sumacc, s.ones, x + 2, False), s.mfma4(s.sqacc, x + 2, x + 2, False)])
                else:
                    g0 = 22 + q - 0
                    tl.add(22 if q == 0 else 23, 'v', [s.mfma4(s.sumacc, s.ones, x, False), s.mfma4(s.sqacc, x, x, False),
                                                       s.mfma4(s.sumacc, s.ones, x + 2, False), s.mfma4(s.sqacc, x + 2, x + 2, False)])
            if c == 6 and r < nr - 1:
                delta = (-RINGA if r == 0 else 57344) & 0xffffffff
                tl.add(f - 4 + 1, 'v', I('v_add_u32 v%d, 0x%x, v%d' % (s.vTr[q], delta, s.vTr[q])))
            if r == 0 and c == 3:
                tl.add(f - 4 + 1, 'v', I('v_add_u32 v%d, 0x10000, v%d' % (s.vXa[q], s.vXa[q])))
        for r in range(nr):
            g = 28 * r + 23
            if r == 0: tl.add(g, 'v', s.stats_write())
            tl.add(g, 'v', s.cs_write(r))
        tl.add(-4, 'pre', s.barrier([('x', 0), ('w', 0, 0)], name='c0'))
        for st in range(1, 7):
            if 'nobar0' in XF: continue
            tl.add(4 * (st - 1), 'pre', s.barrier([('x', st), ('w', 0, st)] if 'nowait0' not in XF else [], name=('c%d' % st if (st in (3, 6) or os.environ.get('PRE')) else None)))

    def stats_write(self):
        s = self
        q = s.sqacc
        return [I('v_cndmask_b32 v%d, v%d, v%d, s[%d:%d]' % (q, q, q + 1, s.sM[0], s.sM[0] + 1)),
                I('v_cndmask_b32 v%d, v%d, v%d, s[%d:%d]' % (q + 2, q + 2, q + 3, s.sM[2], s.sM[2] + 1)),
                I('v_cndmask_b32 v%d, v%d, v%d, s[%d:%d]' % (s.sumacc + 1, q, q + 2, s.sM[1], s.sM[1] + 1)),
                I('ds_write_b64 v%d, v[%d:%d]' % (s.vSTw, s.sumacc, s.sumacc + 1), lds=('w', (M_ST, M_ST + 4096), 'st'))]

    def cs_write(self, r):
        s = self
        a = M_CS + (r % 2) * 2048
        return [I('ds_write_b32 v%d, v%d offset:%d' % (s.vCSw, s.csacc, (r % 2) * 2048), lds=('w', (a, a + 2048), ('cs', r)))]

    def stats_read(self, t):
        s = self
        o = []
        an = ('r', (M_ST, M_ST + 4096), 'st')
        o.append(I('ds_read_b128 v[%d:%d], v%d' % (t, t + 3, s.vSTr), lds=an))
        o.append(I('ds_read_b128 v[%d:%d], v%d offset:16' % (t + 4, t + 7, s.vSTr), lds=an))
        o.append(I('v_add_f32 v%d, v%d, v%d' % (t, t, t + 2)))
        o.append(I('v_add_f32 v%d, v%d, v%d' % (t + 4, t + 4, t + 6)))
        o.append(I('v_add_f32 v%d, v%d, v%d' % (t + 1, t + 1, t + 3)))
        o.append(I('v_add_f32 v%d, v%d, v%d' % (t + 5, t + 5, t + 7)))
        o.append(I('v_add_f32 v%d, v%d, v%d' % (t, t, t + 4)))
        o.append(I('v_add_f32 v%d, v%d, v%d' % (t + 1, t + 1, t + 5)))
        o.append(I('v_mul_f32 v%d, s%d, v%d' % (t, s.sK, t)))
        o.append(I('v_mul_f32 v%d, v%d, v%d' % (t + 2, t, t)))
        o.append(I('v_fma_f32 v%d, v%d, s%d, -v%d' % (t + 1, t + 1, s.sK, t + 2)))
        o.append(I('v_max_f32 v%d, 0, v%d' % (t + 1, t + 1)))
        o.append(I('v_add_f32 v%d, 0x%x, v%d' % (t + 1, f2u(1e-5), t + 1)))
        o.append(I('v_rsq_f32 v%d, v%d' % (t + 7, t + 1)))
        o.append(I('v_cvt_pk_bf16_f32 v%d, v%d, v%d' % (t + 2, t, t)))
        o.append(I('v_and_b32 v%d, 0xffff0000, v%d' % (t + 2, t + 2)))
        o.append(I('v_sub_f32 v%d, v%d, v%d' % (t + 2, t, t + 2)))
        o.append(I('v_cvt_pk_bf16_f32 v%d, v%d, v%d' % (s.augB, t, t + 2)))
        o.append(I('v_mul_f32 v%d, v%d, v%d' % (t + 1, t + 1, t + 7)))
        o.append(I('v_mul_f32 v%d, 0x%x, v%d' % (s.vC, LOG2E, t + 7)))
        o.append(I('v_cndmask_b32 v%d, v%d, 0, s[%d:%d]' % (t + 1, t + 1, s.sMh, s.sMh + 1)))
        o.append(I('v_cvt_pk_bf16_f32 v%d, v%d, v%d' % (t + 3, t + 1, t + 1)))
        o.append(I('v_and_b32 v%d, 0xffff0000, v%d' % (t + 3, t + 3)))
        o.append(I('v_sub_f32 v%d, v%d, v%d' % (t + 3, t + 1, t + 3)))
        o.append(I('v_cvt_pk_bf16_f32 v%d, v%d, v%d' % (s.augB + 1, t, t + 1)))
        o.append(I('v_cvt_pk_bf16_f32 v%d, v%d, 0' % (s.augB + 2, t + 3)))
        o.append(I('v_mov_b32 v%d, 0' % (s.augB + 3)))
        return o

    def cs_read(self, r, t):
        s = self
        a = M_CS + (r % 2) * 2048
        return [I('ds_read_b128 v[%d:%d], v%d offset:%d' % (t, t + 3, s.vCSr, (r % 2) * 2048), lds=('r', (a, a + 2048), ('cs', r))),
                I('v_add_f32 v%d, v%d, v%d' % (t, t, t + 1)),
                I('v_add_f32 v%d, v%d, v%d' % (t + 2, t + 2, t + 3)),
                I('v_add_f32 v%d, v%d, v%d' % (t, t, t + 2))]

    def tok_write(self):
        s = self; R = s.R
        lab = s.uid('tw')
        s.e.emit(Fence())
        R('s_or_b32 s%d, s2, s%d' % (s.sT0, s.sWv))
        R('s_cbranch_scc1 %s' % lab)
        R('s_memrealtime s[%d:%d]' % (s.sT2, s.sT3))
        R('v_mov_b32 v%d, 0' % s.vT3)
        R('s_waitcnt lgkmcnt(0)')
        R('s_or_b32 s%d, s%d, 1' % (s.sT2, s.sT2))
        R('v_mov_b32 v%d, s%d' % (s.vTok, s.sT2))
        R('s_mov_b64 exec, 1')
        R('global_store_dword v%d, v%d, s[%d:%d] sc1' % (s.vT3, s.vTok, s.pDBG, s.pDBG + 1))
        R('s_mov_b64 exec, -1')
        R('s_nop 1')
        s.L(lab)

    def tok_load(self):
        s = self
        return [[I('v_mov_b32 v%d, 0' % s.vTok),
                 I('global_load_dword v%d, v%d, s[%d:%d] sc1' % (s.vTok, s.vTok, s.pDBG, s.pDBG + 1), tag='tok')]]

    def raw(self, lines):
        r = Ins('s_nop 0'); r.kind = 'rawblock'; r.ops = lines
        return r

    def tok_resolve(self):
        s = self
        lp = s.uid('tr'); ok = s.uid('tk')
        return [Raw(['v_readfirstlane_b32 s%d, v%d' % (s.sTokB, s.vTok),
                     's_mov_b32 s%d, 0' % s.sSp,
                     's_nop 2',
                     lp + ':',
                     's_cmp_lg_u32 s%d, 0' % s.sTokB,
                     's_cbranch_scc1 ' + ok,
                     'v_mov_b32 v%d, 0' % s.vTok,
                     'global_load_dword v%d, v%d, s[%d:%d] sc1' % (s.vTok, s.vTok, s.pDBG, s.pDBG + 1),
                     's_waitcnt vmcnt(0)',
                     'v_readfirstlane_b32 s%d, v%d' % (s.sTokB, s.vTok),
                     's_add_u32 s%d, s%d, 1' % (s.sSp, s.sSp),
                     's_cmp_lt_u32 s%d, 0x1000' % s.sSp,
                     's_cbranch_scc1 ' + lp,
                     ok + ':',
                     's_and_b32 s%d, s%d, -8' % (s.sTokB, s.sTokB),
                     's_add_u32 s%d, s%d, 1' % (s.sTokB, s.sTokB)],
                    rd=[s.vTok], wr=[s.vTok], waits=['tok'])]

    def flag_store(self, level, soff, after, vt, w0=False):
        s = self
        va = s.vL4
        pre = []
        if w0:
            va = s.vT2
            pre = [I('v_add_u32 v%d, s%d, v%d' % (va, s.sKsel, s.vL4))]
        st = [I('s_mov_b32 exec_hi, 0'),
              I('buffer_store_dword v%d, v%d, s[%d:%d], s%d offen%s' % (vt, va, s.sWS, s.sWS + 3, soff, ' sc1' if w0 else FLAGM))]
        return [WaitTag(list(after)) if after else [],
                pre + [I('s_add_u32 s%d, s%d, %d' % (s.sSp, s.sTokB, level)),
                 I('v_mov_b32 v%d, s%d' % (vt, s.sSp))] + st +
                [I('s_mov_b64 exec, -1')]]

    def poll_where(self, kind):
        s = self
        if kind == 'K': return s.sKPoll, 0, 0xffff, 's%d' % s.sMaskA
        return s.sPollOff, (2048 if kind == 'F' else 0), 0xf, '15'

    def poll_issue(self, tag, kind):
        s = self
        soff, off, ex, _ = s.poll_where(kind)
        if kind == 'K':
            return [I('v_add_u32 v%d, s%d, v%d' % (s.vT2, s.sKsel, s.vPollA)),
                    I('s_mov_b64 exec, 0x%x' % ex),
                    I('buffer_load_dword v%d, v%d, s[%d:%d], s%d offen offset:%d sc1' % (s.vTok, s.vT2, s.sWS, s.sWS + 3, soff, off), tag=tag),
                    I('s_mov_b64 exec, -1')]
        return [I('s_mov_b64 exec, 0x%x' % ex),
                I('buffer_load_dword v%d, v%d, s[%d:%d], s%d offen offset:%d %s' % (s.vPoll, s.vPollA, s.sWS, s.sWS + 3, soff, off, POLLM), tag=tag),
                I('s_mov_b64 exec, -1')]

    def poll_check(self, tag, level, kind):
        s = self
        soff, off, ex, mask = s.poll_where(kind)
        va, vv, vt = s.vPollA, (s.vTok if kind == 'K' else s.vPoll), s.vT3
        lp = s.uid('pl'); ok = s.uid('pk')
        pre = ['s_mov_b32 s%d, 0' % s.sSp]
        if kind == 'K':
            pre += ['s_cmp_lg_u32 s%d, 0' % s.sWv, 's_cbranch_scc1 ' + ok]
        return [Raw(pre + ['s_add_u32 s%d, s%d, %d' % (s.sT3, s.sTokB, level),
                     lp + ':',
                     'v_subrev_u32 v%d, s%d, v%d' % (vt, s.sT3, vv),
                     'v_cmp_gt_u32 vcc, %d, v%d' % (7 - level, vt),
                     's_nop 3',
                     's_and_b32 s%d, vcc_lo, %s' % (s.sT2, mask),
                     's_cmp_eq_u32 s%d, %s' % (s.sT2, mask),
                     's_cbranch_scc1 ' + ok,
                     's_mov_b64 exec, 0x%x' % ex,
                     'buffer_load_dword v%d, v%d, s[%d:%d], s%d offen offset:%d %s' % (vv, va, s.sWS, s.sWS + 3, soff, off, POLLM if kind != 'K' else 'sc1'),
                     's_mov_b64 exec, -1',
                     's_add_u32 s%d, s%d, 1' % (s.sSp, s.sSp),
                     's_waitcnt vmcnt(0)',
                     's_cmp_lt_u32 s%d, 0x1000' % s.sSp,
                     's_cbranch_scc1 ' + lp,
                     ok + ':'],
                    rd=[vv, vt], wr=[vv, vt], waits=[tag])]


class Rec:
    def __init__(self): self.items = []
    def emit(self, x):
        if isinstance(x, str): x = I(x)
        if isinstance(x, (list, tuple)):
            for i in x: self.emit(i)
        else: self.items.append(x)


class Raw(Ins):
    def __init__(self, lines, rd=(), wr=(), waits=()):
        self.text = ''; self.op = 'rawblock'; self.kind = 'rawblock'
        self.ops = list(lines); self.mods = ''
        self.rd = [('v', r) for r in rd]; self.wr = [('v', r) for r in wr]
        self.tag = None; self.passes = 0; self.mf = None; self.comment = None; self.raw = True
        self.waittags = list(waits); self.lds = None


_orig_emit = Emitter.emit
def _emit(self, ins):
    if isinstance(ins, Raw):
        if ins.waittags:
            _orig_emit(self, WaitTag(ins.waittags))
        vmc, lgc = self._need_waits(ins.rd + ins.wr)
        if vmc is not None or lgc is not None:
            self._emit_wait(vmc, lgc)
        _orig_emit(self, Fence())
        for l in ins.ops:
            if l.endswith(':'): self.out.append(l)
            else: self._raw(l)
        self.hist = []
        self._raw('s_nop 1', states=2)
        return
    return _orig_emit(self, ins)
Emitter.emit = _emit
```

```python
from g5 import *
import g5_ffn

WPHI = RINGA + 4 * 8192
KVR = RINGA
SHR = WPHI + 4096
Z_ = RINGA


def attn_regs(s):
    A = s.va.alloc
    s.Id = A(8, 4)
    s.Id4 = A(2, 2)
    s.vMx, s.vN, s.vZ, s.vZ2, s.vM2, s.vN2 = [A() for _ in range(6)]
    s.vB1a, s.vB1b = A(), A()
    s.vWp = s.vOffS
    s.kb, s.EE = s.pool, s.pool + 8


def attn_setup(s):
    E = s.E
    assert s.ringperm == [0, 1, 4, 2, 3]
    attn_regs(s)
    hp = s.sJ
    g5_ffn.build_srds(s, False)
    s.setup_addrs()
    Id, Id4, vWp = s.Id, s.Id4, s.vWp
    E('s_mul_i32 s%d, s%d, 112' % (s.sWc[2], hp))
    E('s_add_u32 s%d, s%d, 1792' % (s.sWc[1], s.sWc[2]))
    s.lane_col(s.vT2)
    E('s_mul_i32 s%d, s%d, 56' % (s.sT0, s.sG))
    E('v_add_u32 v%d, s%d, v%d' % (vWp, s.sT0, s.vT2))
    E('v_cmp_eq_u32 vcc, 56, v%d' % s.vT2)
    E('v_mov_b32 v%d, 112' % s.vT3)
    E('v_cndmask_b32 v%d, v%d, v%d, vcc' % (vWp, vWp, s.vT3))
    s.tr_base(s.vTr[0], vWp, s.sPi, RINGA)
    for q in range(1, 4):
        E('v_xor_b32 v%d, %d, v%d' % (s.vTr[q], q << 11, s.vTr[0]))
    E('s_mul_i32 s%d, s%d, 3136' % (s.sWs, hp))
    E('s_lshl_b32 s%d, s%d, 10' % (s.sT2, s.sT))
    E('s_add_u32 s%d, s%d, s%d' % (s.sWs, s.sWs, s.sT2))
    E('s_add_u32 s%d, s%d, %d' % (s.sStS, s.sT2, WPHI))


def attn_setup2(s):
    o = []
    def E(t): o.append(I(t))
    hp = s.sJ
    Id, Id4, vWp = s.Id, s.Id4, s.vWp
    t0, t1, t2 = s.vMx, s.vN, s.vZ
    E('v_and_b32 v%d, 3, v0' % t2)
    E('v_lshlrev_b32 v%d, 3, v%d' % (t2, t2))
    E('v_bfe_u32 v%d, v0, 4, 1' % t0)
    E('v_lshl_add_u32 v%d, v%d, 5, v%d' % (t2, t0, t2))
    E('v_min_u32 v%d, 48, v%d' % (t2, t2))
    E('v_lshrrev_b32 v%d, 5, v0' % t0)
    E('v_bfe_u32 v%d, v0, 2, 2' % t1)
    E('v_lshl_add_u32 v%d, v%d, 2, v%d' % (t0, t0, t1))
    E('v_mad_u32_u24 v%d, v%d, 56, v%d' % (vWp, t0, t2))
    E('s_mul_i32 s%d, s%d, 1568' % (s.sT0, s.sG))
    E('s_add_u32 s%d, s%d, %d' % (s.sT0, s.sT0, WPHI))
    E('v_add_u32 v%d, s%d, v%d' % (vWp, s.sT0, vWp))
    E('v_and_b32 v%d, 31, v0' % t0)
    E('v_lshrrev_b32 v%d, 5, v0' % t1)
    E('v_lshlrev_b32 v%d, 2, v%d' % (t1, t1))
    E('v_sub_u32 v%d, v%d, v%d' % (t1, t0, t1))
    E('v_lshlrev_b32 v%d, 4, v%d' % (t1, t1))
    E('s_movk_i32 s%d, 0x3f80' % s.sT0)
    for kk in range(2):
        for m in range(4):
            cst = 16 * kk + 8 * (m // 2) + 2 * (m % 2)
            d = Id + 4 * kk + m
            E('v_subrev_u32 v%d, %d, v%d' % (t2, 16 * cst, t1))
            E('v_lshlrev_b32 v%d, v%d, s%d' % (d, t2, s.sT0))
            E('v_cmp_gt_u32 vcc, 32, v%d' % t2)
            E('v_cndmask_b32 v%d, 0, v%d, vcc' % (d, d))
    E('v_and_b32 v%d, 1, v0' % t2)
    E('v_lshlrev_b32 v%d, 4, v%d' % (t2, t2))
    E('v_lshlrev_b32 v%d, v%d, s%d' % (t2, t2, s.sT0))
    E('v_cndmask_b32 v%d, v%d, 0, s[%d:%d]' % (Id4, t2, s.sM[1], s.sM[1] + 1))
    E('v_cndmask_b32 v%d, 0, v%d, s[%d:%d]' % (Id4 + 1, t2, s.sM[1], s.sM[1] + 1))
    E('v_cmp_eq_u32 vcc, 28, v%d' % t0)
    E('v_cndmask_b32 v%d, 0, 1.0, vcc' % s.vB1a)
    E('v_cmp_eq_u32 vcc, 29, v%d' % t0)
    E('v_mov_b32 v%d, 0x3f80' % t2)
    E('v_cndmask_b32 v%d, 0, v%d, vcc' % (s.vB1b, t2))
    E('v_cmp_eq_u32 s[%d:%d], 30, v%d' % (s.sMl30, s.sMl30 + 1, t0))
    E('s_lshl_b32 s%d, s%d, 2' % (s.sT1, s.sRb))
    E('s_add_u32 s%d, s%d, s%d' % (s.sT1, s.sT1, s.sT))
    E('s_lshl_b32 s%d, s%d, 12' % (s.sFlagOff, s.sT1))
    E('s_mul_i32 s%d, s%d, 144' % (s.sT1, s.sT1))
    E('s_lshl_b32 s%d, s%d, 1' % (s.sT2, hp))
    E('s_add_u32 s%d, s%d, s%d' % (s.sT2, s.sT2, s.sG))
    E('s_lshl_b32 s%d, s%d, 7' % (s.sT3, s.sT2))
    E('s_add_u32 s%d, s%d, s%d' % (s.sFlagOff, s.sFlagOff, s.sT3))
    E('s_add_u32 s%d, s%d, 0x%x' % (s.sFlagOff, s.sFlagOff, FLAGS_OFF)) if FLAGS_OFF else None
    E('s_lshl_b32 s%d, s%d, 1' % (s.sT3, s.sT2))
    E('s_add_u32 s%d, s%d, s%d' % (s.sSt, s.sT1, s.sT3))
    E('s_add_u32 s%d, s%d, %d' % (s.sSt, s.sSt, 112 + (ACT_OFF >> 10)))
    E('s_lshl_b32 s%d, s%d, 10' % (s.sSt, s.sSt))
    E('s_lshl_b32 s%d, s%d, 17' % (s.sGat, hp))
    E('s_lshl_b32 s%d, s%d, 10' % (s.sT2, s.sWv))
    E('s_add_u32 s%d, s%d, s%d' % (s.sGat, s.sGat, s.sT2))
    E('s_add_u32 s%d, s%d, 0x%x' % (s.sGat, s.sGat, KVP_OFF))
    E('s_lshl_b32 s%d, s%d, 13' % (s.sT2, s.sRb))
    E('s_add_u32 s%d, s%d, s%d' % (s.sKvp, s.sGat, s.sT2))
    E('s_lshl_b32 s%d, s%d, 11' % (s.sT2, hp))
    E('s_add_u32 s%d, s%d, 0x%x' % (s.sKPoll, s.sT2, KFLAGS_OFF))
    E('s_lshl_b32 s%d, s%d, 7' % (s.sT2, s.sRb))
    E('s_add_u32 s%d, s%d, s%d' % (s.sKFlag, s.sKPoll, s.sT2))
    E('s_lshl_b32 s%d, 1, s%d' % (s.sT2, s.sRb))
    E('s_xor_b32 s%d, s%d, 0xffff' % (s.sMaskA, s.sT2))
    o.append([I('s_cmp_eq_u32 s%d, 0' % s.sWv), I('s_cselect_b32 s%d, 0, 0x40000000' % s.sKsel)])
    return o


def aug_col0(s, cs, t, b1a=None, b1b=None):
    o = []
    o.append(I('v_cvt_pk_bf16_f32 v%d, -v%d, -v%d' % (s.augA, cs, cs)))
    o.append(I('v_and_b32 v%d, 0xffff0000, v%d' % (t, s.augA)))
    o.append(I('v_add_f32 v%d, v%d, v%d' % (t, cs, t)))
    if b1a is None:
        o.append(I('v_cvt_pk_bf16_f32 v%d, -v%d, 0' % (s.augA + 1, t)))
        o.append(I('v_mov_b32 v%d, 0' % (s.augA + 2)))
    else:
        o.append(I('v_cvt_pk_bf16_f32 v%d, -v%d, v%d' % (s.augA + 1, t, b1a)))
        o.append(I('v_mov_b32 v%d, v%d' % (s.augA + 2, b1b)))
    return o


def feat_parts(s, P):
    kb, EE = s.kb, s.EE
    vMx, vN, vZ, vM2, vN2 = s.vMx, s.vN, s.vZ, s.vM2, s.vN2
    rd = []
    an = ('r', (WPHI, WPHI + 4096), ('w', 'P', 0))
    for kk in range(2):
        for sec in range(2):
            d = EE + 4 * kk + 2 * sec
            rd.append(I('ds_read_b64_tr_b16 v[%d:%d], v%d offset:%d' % (d, d + 1, s.vWp, 896 * kk + 448 * sec), lds=an))
    pack = [I('v_cvt_pk_bf16_f32 v%d, v%d, v%d' % (kb + i, P + 2 * i, P + 2 * i + 1)) for i in range(8)]
    mf = [s.mfma(P, EE, kb, None), s.mfma(P, EE + 4, kb + 4, P)]
    o = []
    o.append(I('v_max3_f32 v%d, v%d, v%d, v%d' % (vMx, P, P + 1, P + 2)))
    o.append(I('v_min3_f32 v%d, v%d, v%d, v%d' % (vN, P, P + 1, P + 2)))
    for i in range(3, 15, 2):
        o.append(I('v_max3_f32 v%d, v%d, v%d, v%d' % (vMx, vMx, P + i, P + i + 1)))
        o.append(I('v_min3_f32 v%d, v%d, v%d, v%d' % (vN, vN, P + i, P + i + 1)))
    o.append(I('v_max_f32 v%d, v%d, v%d' % (vMx, vMx, P + 15)))
    o.append(I('v_min_f32 v%d, v%d, v%d' % (vN, vN, P + 15)))
    o.append(I('v_xor_b32 v%d, 0x80000000, v%d' % (vN, vN)))
    o.append(I('v_permlane32_swap_b32 v%d, v%d' % (vMx, vN)))
    o.append(I('v_max_f32 v%d, v%d, v%d' % (vMx, vMx, vN)))
    o.append(I('v_mul_f32 v%d, v%d, v%d' % (vMx, vMx, s.vC)))
    o.append(I('v_xor_b32 v%d, 0x80000000, v%d' % (vMx, vMx)))
    o.append(I('v_mov_b32 v%d, v%d' % (vN, vMx)))
    o.append(I('v_permlane32_swap_b32 v%d, v%d' % (vMx, vN)))
    o.append(I('v_mov_b32 v%d, 0x%x' % (vZ, BIGNEG)))
    o.append(I('v_cndmask_b32 v%d, v%d, v%d, s[%d:%d]' % (vM2, vMx, vZ, s.sMh, s.sMh + 1)))
    o.append(I('v_cndmask_b32 v%d, v%d, v%d, s[%d:%d]' % (vN2, vN, vZ, s.sMh, s.sMh + 1)))
    ex = []
    for g0 in range(0, 16, 4):
        for i in range(g0, g0 + 4):
            ex.append(I('v_fma_f32 v%d, v%d, v%d, v%d' % (EE + i, P + i, s.vC, vM2 if i >= 12 else vMx)))
        for i in range(g0, g0 + 4):
            ex.append(I('v_fma_f32 v%d, -v%d, v%d, v%d' % (P + i, P + i, s.vC, vN2 if i >= 12 else vN)))
        for i in range(g0, g0 + 4):
            ex.append(I('v_exp_f32 v%d, v%d' % (EE + i, EE + i)))
        for i in range(g0, g0 + 4):
            ex.append(I('v_exp_f32 v%d, v%d' % (P + i, P + i)))
    return rd, pack, mf, o, ex


def attn_phase1(s, stage):
    tl = s.tl
    kb, EE = s.kb, s.EE
    vMx, vN, vZ, vZ2, vM2, vN2 = s.vMx, s.vN, s.vZ, s.vZ2, s.vM2, s.vN2
    Id, Id4 = s.Id, s.Id4
    s.rounds(swap=(False, True, False))
    def X(c): return s.dma_x(c)
    def W(r, c): return [s.dma_w(r, c)]
    dma = {-4: X(4), -2: W(0, 4), 0: X(5), 4: W(0, 5), 5: X(6), 8: W(0, 6), 9: W(1, 0), 10: W(1, 1),
           12: W(1, 2), 14: W(1, 3), 16: W(1, 4), 18: W(1, 5), 20: W(1, 6), 22: W(2, 0),
           24: W(2, 1), 26: W(2, 2), 28: W(2, 3), 30: W(2, 4), 32: W(2, 5), 34: W(2, 6)}
    for f, gl in dma.items():
        if len(gl) == 2:
            tl.add(f, 'x', gl[0]); tl.add(f + 1, 'x', gl[1])
        else:
            tl.add(f, 'x', gl[0])
    tl.add(13, 'x', [I('s_mov_b32 m0, s%d' % s.sStS),
                     I('buffer_load_dwordx4 v%d, s[%d:%d], s%d offen lds' % (s.vLane16, s.sB, s.sB + 3, s.sWs), tag=('w', 'P', 0),
                       lds=('w', (WPHI, WPHI + 4096), ('w', 'P', 0)))])
    tl.add(24, 'pre', s.barrier([('w', 1, 0), ('w', 1, 1), ('w', 1, 2), ('w', 'P', 0)], 'lgkm', name='B0'))
    tl.add(36, 'pre', s.barrier([('w', 1, c) for c in range(3, 7)], name='B0b'))
    tl.add(52, 'pre', s.barrier([('w', 2, c) for c in range(7)], 'lgkm', name='B1'))
    if s.pfw_late: tl.add(P('PFWG', -3), 'x', s.pfw_late)
    tl.add(6, 'x', [i for g in s.tok_load() for i in g])
    tl.add(44, 'v', s.tok_resolve())
    if 'nopf2' not in XF:
        g = P('PF2G', 13)
        for k, grp in enumerate(s.pf_w2(s.vPoll)): tl.add(g + P('PF2S', 4) * k, 'z', grp)
    if P('PF4A', 0): tl.add(P('PF4A', 0), 'z', s.pf4())
    if os.environ.get('PF3A'): s.pf3_place(tl, os.environ['PF3A'])
    tl.place(attn_setup2(s), 0, 21) if 'late2' not in XF else tl.place(attn_setup2(s), 22, 24)
    t = s.tE
    Pk = s.acc[0]
    side = s.stats_read(t) + s.cs_read(0, t) + aug_col0(s, t, t + 2)
    tl.place(side, 24, 29)
    tl.add(30, 'v', s.mfma(Pk, s.augA, s.augB, Pk))
    rd, pack, mf, mm, ex = feat_parts(s, Pk)
    tl.add(30, 'v', rd)
    tl.place(pack, 32, 33)
    tl.add(33, 'z', mf[0]); tl.add(34, 'z', mf[1])
    zs = [I('v_add_f32 v%d, v%d, v%d' % (vZ, EE, EE + 1)), I('v_add_f32 v%d, v%d, v%d' % (vZ2, Pk, Pk + 1))]
    for i in range(2, 16):
        zs.append(I('v_add_f32 v%d, v%d, v%d' % (vZ, vZ, EE + i)))
        zs.append(I('v_add_f32 v%d, v%d, v%d' % (vZ2, vZ2, Pk + i)))
    zs.append(I('v_permlane32_swap_b32 v%d, v%d' % (vZ, vZ2)))
    zs.append(I('v_add_f32 v%d, v%d, v%d' % (vZ, vZ, vZ2)))
    zs.append(I('v_rcp_f32 v%d, v%d' % (vZ, vZ)))
    zs.append(I('v_mul_f32 v%d, v%d, v%d' % (vZ, vZ, s.vC)))
    zs.append(I('v_mov_b32 v%d, v%d' % (vZ2, vZ)))
    zs.append(I('v_permlane32_swap_b32 v%d, v%d' % (vZ, vZ2)))
    nrm = []
    for i in range(0, 16, 2):
        nrm.append(I('v_mul_f32 v%d, v%d, v%d' % (EE + i, EE + i, vZ)))
        nrm.append(I('v_mul_f32 v%d, v%d, v%d' % (EE + i + 1, EE + i + 1, vZ)))
        nrm.append(I('v_cvt_pk_bf16_f32 v%d, v%d, v%d' % (kb + i // 2, EE + i, EE + i + 1)))
    nrm2 = []
    for i in range(0, 16, 2):
        nrm2.append(I('v_mul_f32 v%d, v%d, v%d' % (Pk + i, Pk + i, vZ2)))
        nrm2.append(I('v_mul_f32 v%d, v%d, v%d' % (Pk + i + 1, Pk + i + 1, vZ2)))
        nrm2.append(I('v_cvt_pk_bf16_f32 v%d, v%d, v%d' % (EE + i // 2, Pk + i, Pk + i + 1)))
    KA, KB_, KC = P('KA', 36), P('KB', 49), P('KC', 50)
    tl.place(mm + ex + zs + nrm + nrm2, KA, KB_)
    tl.add(KC, 'z', s.mfma(Pk, kb, Id, None)); tl.add(KC + 1, 'm', s.mfma(Pk, kb + 4, Id + 4, Pk))
    p1 = [I('v_cvt_pk_bf16_f32 v%d, v%d, v%d' % (kb + i, Pk + 2 * i, Pk + 2 * i + 1)) for i in range(8)]
    tl.add(KC + 2, 'v', p1)
    tl.add(KC + 2, 'z', s.mfma(Pk, EE, Id, None)); tl.add(KC + 3, 'm', s.mfma(Pk, EE + 4, Id + 4, Pk))
    p2 = [I('v_cvt_pk_bf16_f32 v%d, v%d, v%d' % (EE + 8 + i, Pk + 2 * i, Pk + 2 * i + 1)) for i in range(8)]
    tl.add(KC + 5, 'z', p2)
    Vt = s.acc[1]
    vb = EE
    cs = s.csacc
    tl.place(s.cs_read(1, cs) + aug_col0(s, cs, cs + 2, s.vB1a, s.vB1b), 52, 54)
    tl.add(55, 'z', s.mfma(Vt, s.augB, s.augA, Vt))
    vW, vR = vMx, vN
    tl.add(51, 'z', [I('s_lshl_b32 s%d, s%d, 14' % (s.sT0, s.sG)),
                     I('s_add_u32 s%d, s%d, %d' % (s.sT0, s.sT0, KVR)),
                     I('s_lshl_b32 s%d, s%d, 12' % (s.sT1, s.sT)),
                     I('s_add_u32 s%d, s%d, s%d' % (s.sT1, s.sT1, s.sT0)),
                     I('v_add_u32 v%d, s%d, v%d' % (vW, s.sT1, s.vLane16)),
                     I('s_lshl_b32 s%d, s%d, 10' % (s.sT1, s.sT)),
                     I('s_add_u32 s%d, s%d, s%d' % (s.sT1, s.sT1, s.sT0)),
                     I('v_add_u32 v%d, s%d, v%d' % (vR, s.sT1, s.vLane16))])
    kvr = [(KVR, KVR + 16384), (KVR + 16384, KVR + 32768)]
    C0 = P('C0', 56)
    tl.add(C0, 'v', [I('v_cvt_pk_bf16_f32 v%d, v%d, v%d' % (vb + i, Vt + 2 * i, Vt + 2 * i + 1)) for i in range(8)])
    tl.add(C0, 'z', [s.mfma(Vt, kb, vb, None), s.mfma(Vt, kb + 4, vb + 4, Vt)])
    pk1 = [I('v_cvt_pk_bf16_f32 v%d, v%d, v%d' % (kb + i, Vt + 2 * i, Vt + 2 * i + 1)) for i in range(8)]
    tl.add(C0 + 1, 'v', pk1)
    tl.add(C0 + 1, 'z', [s.mfma(Vt, EE + 8, vb, None), s.mfma(Vt, EE + 12, vb + 4, Vt)])
    tl.add(C0 + 1, 'z', [I('ds_write_b128 v%d, v[%d:%d] offset:%d' % (vW, kb + 4 * q, kb + 4 * q + 3, 1024 * q), lds=('w', kvr, 'kvr')) for q in range(2)])
    pk2 = [I('v_cvt_pk_bf16_f32 v%d, v%d, v%d' % (EE + i, Vt + 2 * i, Vt + 2 * i + 1)) for i in range(8)]
    tl.add(C0 + 2, 'v', pk2)
    tl.add(C0 + 2, 'v', [I('ds_write_b128 v%d, v[%d:%d] offset:%d' % (vW, EE + 4 * q, EE + 4 * q + 3, 2048 + 1024 * q), lds=('w', kvr, 'kvr')) for q in range(2)])
    KV = P('KV', 60)
    tl.add(KV, 'pre', s.barrier([], 'ldsw', name='KVR'))
    tl.add(KV, 'v', [I('ds_read_b128 v[%d:%d], v%d offset:%d' % (EE + 4 * tp, EE + 4 * tp + 3, vR, 4096 * tp), lds=('r', kvr, 'kvr')) for tp in range(4)])
    lo, hi = Vt, Vt + 4
    red = []
    for tp in range(4):
        red.append(s.mfma4(lo, Id4, EE + 4 * tp, tp == 0)); red.append(s.mfma4(hi, Id4, EE + 4 * tp + 2, tp == 0))
    tl.add(KV + 1, 'v', red[:4]); tl.add(KV + 2, 'v', red[4:])
    tl.add(KV + 3, 'v', [I('v_cvt_pk_bf16_f32 v%d, v%d, v%d' % (Vt + 8 + i, lo + 2 * i, lo + 2 * i + 1)) for i in range(4)] +
           [I('buffer_store_dwordx4 v[%d:%d], v%d, s[%d:%d], s%d offen sc1' % (Vt + 8, Vt + 11, s.vLane16, s.sWS, s.sWS + 3, s.sKvp), tag='kvp')])
    X1 = P('X1', 68)
    tl.add(X1, 'pre', s.barrier(['kvp'], name='X1'))
    fl = s.flag_store(0, s.sKFlag, [], s.vT3, w0=True)
    tl.add(X1, 'd', fl[1])
    if stage >= 3:
        from g5_p2 import P2, quads, A_, B_, C_
        xa, xb = s.xfA, s.xfB
        S4 = [98304, 106496, WPHI, WPHI + 8192]
        p2 = s.p2 = P2(s, [A_, B_, Z_, C_, S4, A_, B_, Z_, C_],
                       quads(xa, xb, xa + 16, xb + 16, xb + 32, xa + 32, (xa + 48, xb + 48), xa, xb), (s.acc[0], s.acc[1]), red=(0, 98304))
        sc, ve = p2.setup_early(False)
        tl.place(sc, 22, 29)
        tl.place(ve, 50, 52)
        def put(grps, g0, step=1):
            for q, grp in enumerate(grps): tl.add(g0 + step * q, 'x', grp if isinstance(grp, list) else [grp])
        put(p2.dma(0), P('W0', 53))
        put(p2.dma(1), P('W1', KV + 4))
        s.post = []
        if P('PREW2', 1): put(p2.dma(2), P('W2', X1 + 1))
        else: s.post += p2.dma(2)
        X3 = P('X3', 76)
        if P('PREW3', 1):
            tl.add(X3, 'pre', s.barrier([], name='X3'))
            put(p2.dma(3), P('W3', X3))
        else: s.post += p2.dma(3)
        A0I, A0C = P('A0I', 66), P('A0C', 73)
        tl.add(A0I, 'x', s.poll_issue(('poll', 0), 'F'))
        tl.add(A0C, 'x', s.stamp_ins('L0a') + s.poll_check(('poll', 0), 0, 'F') + s.stamp_ins('L0'))
        put(p2.act(0, True), A0C)
        if P('PREA1', 1): put(p2.act(1, True), P('A1G', 80))
        else: s.post += p2.act(1, True)
    if stage >= 3: tl.add(P('A1I', 83), 'z', s.poll_issue(('poll', 1), 'F'))
    tl.add(P('KI', 79), 'x', s.poll_issue('kpoll', 'K'))
    return 84


def attn_phase1b(s, stage):
    E = s.E
    kb, EE = s.kb, s.EE
    vMx, vN, vZ, vZ2, vM2, vN2 = s.vMx, s.vN, s.vZ, s.vZ2, s.vM2, s.vN2
    P_ = s.acc[0]
    G = [s.ring + 4 * i for i in range(8)] + [s.xfA + 32 + 4 * i for i in range(6)] + [s.xfB + 48 + 4 * i for i in range(2)]
    s.stamp('kp0')
    s.emit(s.poll_check('kpoll', 0, 'K'))
    s.emit(s.val_ins('kspin', s.sSp))
    s.emit(s.barrier([], 'lgkm', name='R3'))
    cs = s.csacc
    gat = []
    for rb in range(16):
        g = [I('buffer_load_dwordx4 v[%d:%d], v%d, s[%d:%d], s%d offen' % (G[rb], G[rb] + 3, s.vLane16, s.sWS, s.sWS + 3, s.sGat), tag=('gat', rb))]
        if rb < 15:
            g.append(I('s_add_u32 s%d, s%d, 8192' % (s.sGat, s.sGat)))
        gat.append(g)
    rd, pack, mf, mm, ex = feat_parts(s, P_)
    body = s.cs_read(2, cs) + aug_col0(s, cs, cs + 2) + [s.mfma(P_, s.augA, s.augB, P_)] + rd + pack + mf + mm + ex
    for i in range(8):
        body.append(I('v_cvt_pk_bf16_f32 v%d, v%d, v%d' % (kb + i, EE + 2 * i, EE + 2 * i + 1)))
    for i in range(8):
        body.append(I('v_cvt_pk_bf16_f32 v%d, v%d, v%d' % (EE + i, P_ + 2 * i, P_ + 2 * i + 1)))
    if stage >= 3:
        p2 = s.p2
        body += p2.setup_tr()
    GE = P('GE', 9)
    n0 = P('G0', 3)
    for g in gat[:n0]: s.emit(g)
    out = []; rest = gat[n0:]
    for k, it in enumerate(body):
        out.append(it)
        if rest and (k + 1) % GE == 0: out += rest.pop(0)
    for g in rest: out += g
    s.emit(out)
    s.stamp('feat')
    lo, hi = s.acc[1], s.acc[1] + 4
    extra = []
    if stage >= 3:
        s.emit(s.poll_check(('poll', 1), 1, 'F'))
        allx = s.post + p2.act(2, True) + p2.act(3, True)
        extra = allx[:P('NX', 8)]
        s.act_left = allx[P('NX', 8):]
        if P('AP', 0): s.emit(s.poll_issue(('poll', 2), 'F'))
    for rb in range(16):
        s.emit(s.mfma4(lo, s.Id4, G[rb], rb == 0))
        s.emit(s.mfma4(hi, s.Id4, G[rb] + 2, rb == 0))
        if rb % 2 == 1 and extra: s.emit(extra.pop(0))
    for g in extra: s.emit(g)
    s.stamp('gath')
    if stage >= 3 and P('AP', 0) == 1:
        s.emit(s.stamp_ins('L2a') + s.poll_check(('poll', 2), 2, 'F') + s.val_ins('sp2', s.sSp) + s.stamp_ins('L2'))
        w4 = p2.dma(4)
        s.early = p2.act(4, True) + w4[:2] + p2.act(5, True)
        for g in s.early[:P('NE', 10)]: s.emit(g)
        s.early = s.early[P('NE', 10):]
    red = s.acc[1] + 8
    for i in range(4):
        E('v_cvt_pk_bf16_f32 v%d, v%d, v%d' % (red + i, lo + 2 * i, lo + 2 * i + 1))
    for i in range(4):
        E('v_cndmask_b32 v%d, v%d, v%d, s[%d:%d]' % (red + i, red + i, s.ones, s.sMl30, s.sMl30 + 1))
    shr = [(SHR, SHR + 4096), (SHR + 8192, SHR + 12288)]
    E('s_lshl_b32 s%d, s%d, 10' % (s.sT0, s.sT))
    E('s_lshl_b32 s%d, s%d, 13' % (s.sT1, s.sG))
    E('s_add_u32 s%d, s%d, %d' % (s.sT1, s.sT1, SHR))
    E('v_add_u32 v%d, s%d, v%d' % (vN, s.sT1, s.vLane16))
    E('v_add_u32 v%d, s%d, v%d' % (vMx, s.sT0, vN))
    E('ds_write_b128 v%d, v[%d:%d]' % (vMx, red, red + 3), lds=('w', shr, 'shr'))
    s.emit(s.barrier([], 'ldsw', name='share'))
    KA = s.ring
    for f in range(4):
        E('ds_read_b128 v[%d:%d], v%d offset:%d' % (KA + 4 * f, KA + 4 * f + 3, vN, 1024 * f), lds=('r', shr, 'shr'))
    Np, Nm = s.acc[0], s.acc[1]
    s.emit(s.mfma(Np, KA, kb, None))
    s.emit(s.mfma(Nm, KA + 8, EE, None))
    s.emit(s.mfma(Np, KA + 4, kb + 4, Np))
    s.emit(s.mfma(Nm, KA + 12, EE + 4, Nm))
    a, b, dn = vMx, vN, vZ
    E('v_rcp_f32 v%d, v%d' % (a, Np + 14))
    E('v_rcp_f32 v%d, v%d' % (b, Nm + 14))
    E('v_add_f32 v%d, v%d, v%d' % (dn, Np + 12, Np + 13))
    E('v_add_f32 v%d, v%d, v%d' % (vZ2, Nm + 12, Nm + 13))
    E('v_mov_b32 v%d, 0x%x' % (vM2, f2u(1e-6 * 1.4426950408889634)))
    E('v_fmac_f32 v%d, v%d, v%d' % (vM2, dn, a))
    E('v_fmac_f32 v%d, v%d, v%d' % (vM2, vZ2, b))
    E('v_rcp_f32 v%d, v%d' % (vM2, vM2))
    E('v_mul_f32 v%d, 0x%x, v%d' % (vM2, LOG2E, vM2))
    E('v_mul_f32 v%d, v%d, v%d' % (a, a, vM2))
    E('v_mul_f32 v%d, v%d, v%d' % (b, b, vM2))
    E('v_mov_b32 v%d, v%d' % (vZ, a))
    E('v_mov_b32 v%d, v%d' % (vZ2, b))
    E('v_permlane32_swap_b32 v%d, v%d' % (vZ, a))
    E('v_permlane32_swap_b32 v%d, v%d' % (vZ2, b))
    E('v_cndmask_b32 v%d, v%d, 0, s[%d:%d]' % (vM2, a, s.sMh, s.sMh + 1))
    E('v_cndmask_b32 v%d, v%d, 0, s[%d:%d]' % (vN2, b, s.sMh, s.sMh + 1))
    for i in range(16):
        fa, fb = (vM2, vN2) if i >= 12 else (a, b)
        E('v_mul_f32 v%d, v%d, v%d' % (Np + i, Np + i, fa))
        E('v_fmac_f32 v%d, v%d, v%d' % (Np + i, Nm + i, fb))
    for i in range(8):
        E('v_cvt_pk_bf16_f32 v%d, v%d, v%d' % (kb + i, Np + 2 * i, Np + 2 * i + 1))
        if i % 4 == 3:
            kk = i // 4
            E('buffer_store_dwordx4 v[%d:%d], v%d, s[%d:%d], s%d offen offset:%d%s' % (kb + 4 * kk, kb + 4 * kk + 3, s.vLane16, s.sWS, s.sWS + 3, s.sSt, 1024 * kk, SC1), tag=('o', kk))
    s.stamp('ost')


def attn_path(s, stage):
    items = s.capture(attn_setup, s)
    s.emit_setup(items, False)
    s.tok_write()
    s.tl = TL()
    f = attn_phase1(s, stage)
    s.stamp('setup')
    s.tl.emit(s.e, -4, f, s.lite('attn'))
    attn_phase1b(s, stage)
    fl = s.flag_store(4, s.sFlagOff, [('o', 1)], s.vT3)
    if stage < 3:
        s.emit(fl[0:1] + fl[1])
        s.stamp('end')
        return None
    p2 = s.p2
    main = s.e
    s.emit(I('s_cmp_lg_u32 s%d, 0' % s.sIdle))
    s.emit(Fence())
    s.emit(I('s_cbranch_scc1 %s_idle' % s.label))
    ei = main.fork()
    save = (s.nstamp, list(s.names))
    s.e = ei
    s.L('%s_idle' % s.label)
    ei.hist = []
    s.emit(fl[0:1] + fl[1])
    s.stamp('end')
    s.prof_store()
    s.E('s_waitcnt vmcnt(0)')
    s.E('s_endpgm')
    s.names_idle = list(s.names)
    s.e = main
    s.nstamp, s.names = save[0], save[1]
    fl = s.flag_store(4, s.sFlagOff, [('o', 1)], s.vT3)
    tl = s.tl = TL()
    p2.place_main(tl, 0)
    AP = P('AP', 0)
    DR = P('ADR', 1)
    for p in range(9):
        tl.add(8 * p - 4, 'pre', s.barrier(p2.wtags(p), 'lgkm' if (p in (0, 8) or (AP and DR and p in (1, 2, 3, 4))) else None, name='Q%d' % p))
    def put(grps, g0, step=1):
        for q, grp in enumerate(grps): tl.add(g0 + step * q, 'x', grp)
    def poll(level, gi, gc, mask):
        tl.add(gi, 'x', s.poll_issue(('poll', level), mask))
        tl.add(gc, 'x', s.stamp_ins('L%da' % level) + s.poll_check(('poll', level), level, mask) + s.val_ins('sp%d' % level, s.sSp) + s.stamp_ins('L%d' % level))
    if AP:
        assert not s.act_left
        w4 = p2.dma(4)
        o8 = 0 if DR else 8
        if AP == 1:
            tl.add(-4, 'x', s.poll_issue(('poll', 3), 'F'))
            put(s.early, -4)
            put(w4[2:], -4)
        else:
            tl.add(-4, 'x', s.stamp_ins('L2a') + s.poll_check(('poll', 2), 2, 'F') + s.val_ins('sp2', s.sSp) + s.stamp_ins('L2'))
            tl.add(-4, 'x', s.poll_issue(('poll', 3), 'F'))
            put(w4, -4)
            put(p2.act(4, True), -4)
            put(p2.act(5, True), 0)
        tl.place(p2.setup_late(), -4, 3)
        tl.add(P('OF', 4), 'x', fl[0:1] + fl[1])
        g3 = P('AL3C', 2 if AP == 1 else 6)
        tl.add(g3, 'x', s.stamp_ins('L3a') + s.poll_check(('poll', 3), 3, 'F') + s.val_ins('sp3', s.sSp) + s.stamp_ins('L3'))
        put(p2.dma(5), P('W5G', 4 + o8), 1)
        put(p2.act(6, True), max(g3, P('A6G', 0)), 1)
        put(p2.dma(6), P('W6G', 12 + o8), 1)
        put(p2.dma(7), P('W7G', 20 + o8), 1)
        poll(4, P('AL4I', 16), P('AL4C', 24), 'O')
        put(p2.act(7, True), P('AL4C', 24), 1)
        put(p2.dma(8), P('W8G', 28 + o8), 1)
        put(p2.act(8, True), P('AL4C', 24) + 8, 1)
    else:
        put(p2.dma(4), P('W4G', -4))
        tl.place(p2.setup_late(), -4, 3)
        tl.add(P('OF', 4), 'x', fl[0:1] + fl[1])
        poll(2, -4, P('AL2C', 5), 'F')
        nl = len(s.act_left)
        for k, grp in enumerate(s.act_left): tl.add((-4 + k) if k < P('NLE', 0) else 5 + (k - P('NLE', 0)) // 2, 'x', grp)
        put(p2.act(4, True), P('A4G', 5 + nl // 2), 1)
        put(p2.act(5, True), P('A5G', 9 + nl // 2), 1)
        poll(3, P('AL3I', 7), P('AL3C', 16), 'F')
        put(p2.dma(5), P('W5G', 12), 1)
        put(p2.act(6, True), P('A6G', 16), 1)
        put(p2.dma(6), P('W6G', 20), 1)
        put(p2.dma(7), P('W7G', 28), 1)
        put(p2.dma(8), P('W8G', 36), 1)
        poll(4, P('AL4I', 24), P('AL4C', 32), 'O')
        put(p2.act(7, True), P('A7G', 32), 1)
        put(p2.act(8, True), P('A8G', 40), 1)
    tl.emit(s.e, -4, 72, s.lite('attn2'))
    s.stamp('mm')
    p2.finish()
    s.stamp('end')
    return ei
```

```python
from g5 import *


def aug_col(s, cs, b1, t, half=False):
    o = []
    o.append(I('v_cvt_pk_bf16_f32 v%d, -v%d, -v%d' % (s.augA, cs, cs)))
    o.append(I('v_lshlrev_b32 v%d, 16, v%d' % (t + 1, b1)))
    o.append(I('v_and_b32 v%d, 0xffff0000, v%d' % (t, s.augA)))
    o.append(I('v_add_f32 v%d, v%d, v%d' % (t, cs, t)))
    if half:
        o.append(I('v_mul_f32 v%d, 0.5, v%d' % (t + 1, t + 1)))
    o.append(I('v_cvt_pk_bf16_f32 v%d, -v%d, v%d' % (s.augA + 1, t, t + 1)))
    if half:
        o.append(I('v_lshrrev_b32 v%d, 16, v%d' % (s.augA + 2, t + 1)))
    else:
        o.append(I('v_mov_b32 v%d, v%d' % (s.augA + 2, b1)))
    return o


def mish(s, src, n, t, pk, stores):
    o = []
    G = 4
    for g0 in range(0, n, G):
        a = [src + g0 + i for i in range(G)]
        u = [t + i for i in range(G)]
        w = [t + G + i for i in range(G)]
        for i in range(G): o.append(I('v_mul_f32 v%d, v%d, v%d' % (a[i], a[i], s.vC)))
        for i in range(G): o.append(I('v_exp_f32 v%d, v%d' % (u[i], a[i])))
        for i in range(G): o.append(I('v_fma_f32 v%d, v%d, -0.5, -1.0' % (w[i], u[i])))
        for i in range(G): o.append(I('v_fma_f32 v%d, v%d, v%d, -1.0' % (u[i], u[i], w[i])))
        for i in range(G): o.append(I('v_rcp_f32 v%d, v%d' % (u[i], u[i])))
        for i in range(G): o.append(I('v_fmac_f32 v%d, v%d, v%d' % (a[i], a[i], u[i])))
        for i in range(0, G, 2):
            o.append(I('v_cvt_pk_bf16_f32 v%d, v%d, v%d' % (pk + (g0 + i) // 2, a[i], a[i + 1])))
        if (g0 + G) in stores:
            o += stores[g0 + G]
    return o


def ffn_regs(s):
    A = s.va.alloc
    s.vb1 = [A() for _ in range(4)]
    s.vTrS = [A(), A()]


def build_srds(s, ffn):
    if ffn: srd(s.e, s.sB, s.pB1, 1792 * 2)
    else: srd(s.e, s.sB, s.pWPHI, 16 * 1568)
    srd(s.e, s.sWS, s.pWS, WS_BYTES)
    srd(s.e, s.sW2, s.pW2, 1792 * 896)
    srd(s.e, s.sWO, s.pWO, 448 * 896)
    srd(s.e, s.sOUT, s.pOUT, 2048 * 896)


def ffn_setup(s):
    E = s.E
    ffn_regs(s)
    build_srds(s, True)
    s.setup_addrs()
    E('s_mul_i32 s%d, s%d, 7' % (s.sT0, s.sJ))
    E('s_and_b32 s%d, s%d, 1' % (s.sT1, s.sJ))
    E('s_add_u32 s%d, s%d, s%d' % (s.sT2, s.sT0, s.sT1))
    E('s_lshl_b32 s%d, s%d, 6' % (s.sWc[1], s.sT2))
    E('s_add_u32 s%d, s%d, 256' % (s.sWc[2], s.sWc[1]))
    E('s_add_u32 s%d, s%d, 128' % (s.sWc[1], s.sWc[1]))
    E('s_mul_i32 s%d, s%d, 6' % (s.sT1, s.sT1))
    E('s_sub_u32 s%d, s%d, s%d' % (s.sT0, s.sT0, s.sT1))
    E('s_add_u32 s%d, s%d, 6' % (s.sT0, s.sT0))
    E('s_lshl_b32 s%d, s%d, 6' % (s.sWs, s.sT0))
    E('v_and_b32 v%d, 31, v0' % s.vT2)
    E('v_lshlrev_b32 v%d, 1, v%d' % (s.vT2, s.vT2))
    E('s_add_u32 s%d, s%d, s%d' % (s.sT2, s.sT2, s.sG))
    E('s_lshl_b32 s%d, s%d, 6' % (s.sT1, s.sT2))
    for r in range(3):
        E('buffer_load_ushort v%d, v%d, s[%d:%d], s%d offen offset:%d' % (s.vb1[r], s.vT2, s.sB, s.sB + 3, s.sT1, 128 * r))
    E('buffer_load_ushort v%d, v%d, s[%d:%d], s%d offen' % (s.vb1[3], s.vT2, s.sB, s.sB + 3, s.sWs))
    E('v_lshrrev_b32 v%d, 3, v0' % s.vT0)
    E('v_and_b32 v%d, 7, v0' % s.vT1)
    E('v_lshrrev_b32 v%d, 2, v0' % s.vT2)
    E('v_and_b32 v%d, 4, v%d' % (s.vT2, s.vT2))
    E('v_xor_b32 v%d, v%d, v%d' % (s.vT1, s.vT1, s.vT2))
    E('s_lshl_b32 s%d, s%d, 6' % (s.sT1, s.sG))
    E('s_lshl_b32 s%d, s%d, 3' % (s.sT3, s.sT))
    E('s_add_u32 s%d, s%d, s%d' % (s.sT1, s.sT1, s.sT3))
    E('v_add_u32 v%d, s%d, v%d' % (s.vT0, s.sT1, s.vT0))
    E('v_lshrrev_b32 v%d, 2, v%d' % (s.vT2, s.vT1))
    E('v_lshl_add_u32 v%d, v%d, 5, v%d' % (s.vT0, s.vT2, s.vT0))
    E('v_and_b32 v%d, 3, v%d' % (s.vT2, s.vT1))
    E('v_lshlrev_b32 v%d, 4, v%d' % (s.vT2, s.vT2))
    E('v_mad_u32_u24 v%d, v%d, s%d, v%d' % (s.vOffS, s.vT0, s.sStride, s.vT2))
    E('s_lshl_b32 s%d, s%d, 2' % (s.sT1, s.sRb))
    E('s_add_u32 s%d, s%d, s%d' % (s.sT1, s.sT1, s.sT))
    E('s_lshl_b32 s%d, s%d, 12' % (s.sFlagOff, s.sT1))
    E('s_mul_i32 s%d, s%d, 144' % (s.sT1, s.sT1))
    E('s_add_u32 s%d, s%d, %d' % (s.sT1, s.sT1, ACT_OFF >> 10))
    E('s_lshl_b32 s%d, s%d, 1' % (s.sT2, s.sT2))
    E('s_add_u32 s%d, s%d, s%d' % (s.sSt, s.sT1, s.sT2))
    E('s_lshl_b32 s%d, s%d, 10' % (s.sSt, s.sSt))
    E('s_lshl_b32 s%d, s%d, 1' % (s.sT0, s.sT0))
    E('s_add_u32 s%d, s%d, s%d' % (s.sT0, s.sT0, s.sG))
    E('s_add_u32 s%d, s%d, s%d' % (s.sStS, s.sT1, s.sT0))
    E('s_lshl_b32 s%d, s%d, 10' % (s.sStS, s.sStS))
    E('s_lshl_b32 s%d, s%d, 1' % (s.sT0, s.sJ))
    E('s_add_u32 s%d, s%d, s%d' % (s.sT0, s.sT0, s.sG))
    E('s_lshl_b32 s%d, s%d, 7' % (s.sT0, s.sT0))
    E('s_add_u32 s%d, s%d, s%d' % (s.sFlagOff, s.sFlagOff, s.sT0))
    E('s_add_u32 s%d, s%d, %d' % (s.sFlagOff, s.sFlagOff, FLAGS_OFF + 2048))
    s.lane_col(s.vT2)
    E('s_lshl_b32 s%d, s%d, 6' % (s.sT0, s.sG))
    E('v_add_u32 v%d, s%d, v%d' % (s.vTrS[1], s.sT0, s.vT2))
    s.tr_base(s.vTr[0], s.vTrS[1], s.sPi, RINGA)
    for q in range(1, 4):
        E('v_xor_b32 v%d, %d, v%d' % (s.vTr[q], q << 11, s.vTr[0]))
    E('s_lshr_b32 s%d, s%d, 1' % (s.sT0, s.sPi))
    E('s_lshl_b32 s%d, s%d, 6' % (s.sT0, s.sT0))
    E('v_add_u32 v%d, s%d, v%d' % (s.vTrS[1], s.sT0, s.vT2))
    E('s_and_b32 s%d, s%d, 1' % (s.sT0, s.sT))
    s.tr_base(s.vTrS[0], s.vTrS[1], s.sT0, RINGA)
    E('v_xor_b32 v%d, %d, v%d' % (s.vTrS[1], 1 << 11, s.vTrS[0]))


def ffn_phase1(s, final=True):
    tl = s.tl
    s.rounds()
    def X(c): return s.dma_x(c)
    def W(r, c): return [s.dma_w(r, c)]
    dma = {-4: X(4), -2: W(0, 4), 0: X(5), 4: W(0, 5), 5: X(6), 8: W(0, 6), 9: W(1, 0), 10: W(1, 1),
           12: W(1, 2), 14: W(1, 3), 16: W(1, 4), 18: W(1, 5), 20: W(1, 6), 22: W(2, 0),
           24: W(2, 1), 26: W(2, 2), 28: W(2, 3), 30: W(2, 4), 32: W(2, 5), 34: W(2, 6),
           36: W('S', 0), 38: W('S', 1), 40: W('S', 2), 42: W('S', 3)}
    for f, gl in dma.items():
        if 'nodma' in XF and f >= 9:
            for g in gl:
                for i in (g if isinstance(g, list) else [g]):
                    for k in (i if isinstance(i, list) else [i]):
                        if k.tag: s.e.done_tags.add(k.tag)
            continue
        if len(gl) == 2:
            tl.add(f, 'x', gl[0]); tl.add(f + 1, 'x', gl[1])
        else:
            tl.add(f, 'x', gl[0])
    tl.add(24, 'pre', s.barrier([('w', 1, 0), ('w', 1, 1), ('w', 1, 2)], 'lgkm', name='B0'))
    tl.add(36, 'pre', s.barrier([('w', 1, c) for c in range(3, 7)], name='B0b'))
    tl.add(52, 'pre', s.barrier([('w', 2, c) for c in range(7)], 'lgkm', name='B1'))
    tl.add(80, 'pre', s.barrier([('w', 'S', c) for c in range(4)], 'lgkm', name='B2'))
    if s.pfw_late: tl.add(P('PFWG', -3), 'x', s.pfw_late)
    if 'nopf2' not in XF:
        g = P('PF2G', 13)
        for k, grp in enumerate(s.pf_w2(s.vPoll)): tl.add(g + P('PF2S', 4) * k, 'z', grp)
    if P('PF5', 0): tl.add(P('PF5', 0), 'z', s.pf5())
    if P('PF4', 0): tl.add(P('PF4', 0), 'z', s.pf4())
    if os.environ.get('PF3'): s.pf3_place(tl, os.environ['PF3'])
    tl.add(6, 'x', [i for g in s.tok_load() for i in g])
    tl.add(44, 'v', s.tok_resolve())
    for ci in range(7):
        for rho in range(2):
            f = 84 + 2 * ci + rho
            d = s.slot(f)
            u = ci // 2
            imm = ((u + 2) % 5) * 8192 + (ci % 2) * 4096
            a = s.wdst('S', u)
            an = ('r', (a, a + 8192), ('w', 'S', u))
            tl.add(f - 4, 'd', [I('ds_read_b64_tr_b16 v[%d:%d], v%d offset:%d' % (d, d + 1, s.vTrS[rho], imm), lds=an),
                                I('ds_read_b64_tr_b16 v[%d:%d], v%d offset:%d' % (d + 2, d + 3, s.vTrS[rho], imm + 512), lds=an)])
            x = s.xf(ci, rho)
            first = (ci == 0 and rho == 0)
            tl.add(f, 'm', s.mfma(s.acc[1], d, x, None if first else s.acc[1]))
            tl.add(f, 'v', [s.mfma4(s.csacc, s.ones, d, first), s.mfma4(s.csacc, s.ones, d + 2, False)])
    t = s.tE
    MS, ME, FL = P('MS', 2), P('ME', 24), P('FL', 10)
    for p in range(3):
        g0 = 28 * p + 24
        side = []
        if p == 0: side += s.stats_read(t)
        side += s.cs_read(p, t) + aug_col(s, t, s.vb1[p], t + 2)
        tl.place(side, g0, g0 + 3 + (2 if p == 0 else 0))
        accp = s.acc[p % 2]
        ga = g0 + 4 + (2 if p == 0 else 0)
        tl.add(ga, 'v', s.mfma(accp, s.augA, s.augB, accp))
        st = []
        for kk in range(2):
            ins = [I('buffer_store_dwordx4 v[%d:%d], v%d, s[%d:%d], s%d offen offset:%d%s' % (s.pk + 4 * kk, s.pk + 4 * kk + 3, s.vLane16, s.sWS, s.sWS + 3, s.sSt, 1024 * kk, SC1), tag=('act', p, kk))]
            if kk == 1 and p < 2:
                ins.append(I('s_add_u32 s%d, s%d, 4096' % (s.sSt, s.sSt)))
            st.append(ins)
        if 'nost' in XF:
            for x in st: s.e.done_tags.add(x[0].tag)
            st = [x[1:] for x in st]
        ms = mish(s, accp, 16, t, s.pk, {8: st[0], 16: st[1]})
        if 'nomish' in XF: ms = st[0] + st[1]
        end = (g0 + 4 + ME) if p < 2 else 97
        tl.place(ms, ga + MS, end)
        fl = s.flag_store(p, s.sFlagOff, [('act', p, 1)], s.vT3)
        if p < 2:
            if 'nofl' not in XF: tl.add(end + FL, 'x', fl[0:1] + fl[1])
        else:
            s.fl2 = fl
    return 98


def ffn_tail_simple(s):
    E = s.E
    t = s.tE
    s.emit(aug_col(s, s.csacc, s.vb1[3], t, half=True))
    acc = s.acc[1]
    s.emit(s.mfma(acc, s.augA, s.augB, acc))
    xch_ops = ffn_xch(s)
    s.emit(xch_ops[0])
    s.emit(s.barrier([], 'lgkm', name='XCH'))
    s.emit(xch_ops[1])
    s.emit(s.fl2[0:1] + s.fl2[1])
    fl = s.flag_store(3, s.sFlagOff, [('act', 3, 0)], s.vT3)
    s.emit(fl[0:1] + fl[1])


XCH = 98304


def ffn_xch(s):
    acc = s.acc[1]
    a0 = s.acc[0]
    w = []
    sg = s.sM[0]
    w.append(I('s_sub_u32 s%d, 0, s%d' % (sg, s.sG)))
    w.append(I('s_mov_b32 s%d, s%d' % (sg + 1, sg)))
    for i in range(8):
        w.append(I('v_cndmask_b32 v%d, v%d, v%d, s[%d:%d]' % (a0 + i, acc + 8 + i, acc + i, sg, sg + 1)))
    for i in range(8):
        w.append(I('v_cndmask_b32 v%d, v%d, v%d, s[%d:%d]' % (acc + i, acc + i, acc + 8 + i, sg, sg + 1)))
    w.append(I('s_lshl_b32 s%d, s%d, 11' % (s.sT0, s.sWv)))
    w.append(I('s_add_u32 s%d, s%d, %d' % (s.sT0, s.sT0, XCH)))
    w.append(I('v_add_u32 v%d, s%d, v%d' % (s.vT0, s.sT0, s.vLane16)))
    w.append(I('s_xor_b32 s%d, s%d, %d' % (s.sT0, s.sT0, 4 << 11)))
    w.append(I('v_add_u32 v%d, s%d, v%d' % (s.vT1, s.sT0, s.vLane16)))
    for q in range(2):
        w.append(I('ds_write_b128 v%d, v[%d:%d] offset:%d' % (s.vT0, a0 + 4 * q, a0 + 4 * q + 3, 1024 * q), lds=('w', (XCH, XCH + 16384), 'xch')))
    r = []
    for q in range(2):
        r.append(I('ds_read_b128 v[%d:%d], v%d offset:%d' % (a0 + 4 * q, a0 + 4 * q + 3, s.vT1, 1024 * q), lds=('r', (XCH, XCH + 16384), 'xch')))
    for i in range(8):
        r.append(I('v_add_f32 v%d, v%d, v%d' % (acc + i, acc + i, a0 + i)))
    st = [I('buffer_store_dwordx4 v[%d:%d], v%d, s[%d:%d], s%d offen%s' % (s.pk, s.pk + 3, s.vLane16, s.sWS, s.sWS + 3, s.sStS, SC1), tag=('act', 3, 0))]
    r += mish(s, acc, 8, s.tE, s.pk, {8: st})
    return w, r


def ffn_p2(s):
    import g5_p2
    from g5_p2 import P2, quads, A_, B_, C_, D_, E_
    tl = s.tl
    F0 = 98
    xa, xb = s.xfA, s.xfB
    p2 = P2(s, [A_, B_, C_, E_, D_, A_, B_, C_, E_],
            quads(xb, xb + 16, xb + 32, xa + 32, (xa + 48, xb + 48), s.acc[0], s.acc[1], xb, xb + 16), (xa, xa + 16))
    sc, ve = p2.setup_early(True)
    tl.place(sc + ve, 44, 51)
    def dmas(ps, g0, step=1):
        g = g0
        for p in ps:
            for grp in p2.dma(p):
                tl.add(g, 'x', grp); g += step
    def poll(level, gi, gc, acts, mask):
        tl.add(gi, 'x', s.poll_issue(('poll', level), mask))
        tl.add(gc, 'x', s.stamp_ins('L%da' % level) + s.poll_check(('poll', level), level, mask) + s.stamp_ins('L%d' % level))
        for k, p in enumerate(acts):
            tl.add(gc + k, 'x', p2.act(p))
    def put(grps, gaps):
        if isinstance(gaps, int): gaps = range(gaps, gaps + len(grps))
        for g, grp in zip(gaps, grps): tl.add(g, 'x', grp)
    def pol(level, gi, gc, mask):
        tl.add(gi, 'x', s.poll_issue(('poll', level), mask))
        tl.add(gc, 'x', s.stamp_ins('L%da' % level) + [WaitTag([('poll', level)])] + s.stamp_ins('L%db' % level) + s.poll_check(('poll', level), level, mask) + s.val_ins('sp%d' % level, s.sSp) + s.stamp_ins('L%d' % level))
    put(p2.dma(0), P('FW0', 53))
    tl.add(60, 'pre', s.barrier([], name='Y1'))
    put(p2.dma(1), P('FW1', 60))
    tl.add(76, 'pre', s.barrier([], name='Y2'))
    put(p2.dma(2), [76, 77, 78, 79])
    pol(0, P('L0I', 74), P('L0C', 81), 'F')
    put(p2.act(0, True), [81, 82, 83, 84])
    put(p2.act(1, True), [85, 86, 87, 88])
    tl.place(p2.setup_tr(), 84, 90)
    p2.place_main(tl, F0)
    t = s.tE
    acc = s.acc[1]
    tl.add(98, 'x', aug_col(s, s.csacc, s.vb1[3], t, half=True))
    tl.add(98, 'z', s.mfma(acc, s.augA, s.augB, acc))
    w, r = ffn_xch(s)
    tl.place(w, 100, 101)
    tl.place(r, 102, P('SE', 108))
    tl.add(P('F2', 104), 'x', s.fl2[0:1] + s.fl2[1])
    fl = s.flag_store(3, s.sFlagOff, [('act', 3, 0)], s.vT3)
    tl.add(P('F3', 114), 'z', fl[0:1] + fl[1])
    FP = P('FP', 0)
    for p in range(9):
        dr = 'ldsw' if p == 1 else ('lgkm' if p == 8 or (FP and p == 0) else None)
        tl.add(F0 + 8 * p - 4, 'pre', s.barrier(p2.wtags(p), dr, name='Q%d' % p))
    tl.place(p2.setup_late(), 104, 112)
    if FP:
        w4 = p2.dma(4)
        pol(1, P('L1I', 94), P('L1C', 100), 'F')
        put(p2.dma(3), [94, 95, 96, 97])
        put(w4[2:], [98, 99])
        put(p2.act(2, True), [100, 101, 102, 103])
        put(p2.act(3, True), [104, 105, 106, 107])
        put(w4[:2], [110, 111])
        pol(2, P('L2I', 112), P('L2C', 119), 'F')
        put(p2.dma(5), [112, 113, 114, 115])
        put(p2.dma(6), [P('W6G', 118)] * 4)
        put(p2.act(4, True), [P('L2C', 119) + k for k in range(4)])
        put(p2.act(5, True), [P('L2C', 119) + 4 + k for k in range(4)])
        put(p2.dma(7), [126] * 4)
        pol(3, P('L3I', 121), P('L3C', 127), 'F')
        put(p2.act(6, True), [P('L3C', 127) + k for k in range(4)])
        put(p2.dma(8), [134, 135, 136, 137])
        pol(4, P('L4I', 144), P('L4C', 150), 'O')
        put(p2.act(7, True), [P('L4C', 150)] * 4)
        put(p2.act(8, True), [P('L4C', 150) + 1] * 4)
        return p2, F0 + 72
    pol(1, P('L1I', 94), P('L1C', 100), 'F')
    put(p2.act(2, True), [100, 101, 102, 103])
    put(p2.dma(3), [105, 107, 108, 109])
    put(p2.act(3, True), [110, 111, 112, 113])
    put(p2.dma(4), [115, 116, 117, 118])
    pol(2, P('L2I', 112), P('L2C', 119), 'F')
    put(p2.act(4, True), [119, 120, 121, 122])
    put(p2.dma(5), [119, 120, 121, 122])
    put(p2.act(5, True), [123, 124, 125, 126])
    put(p2.dma(6), [123, 124, 125, 126])
    pol(3, P('L3I', 121), P('L3C', 127), 'F')
    put(p2.act(6, True), [127, 128, 129, 130])
    put(p2.dma(7), [127, 128, 129, 130])
    put(p2.dma(8), [134, 135, 136, 137])
    pol(4, P('L4I', 144), P('L4C', 150), 'O')
    put(p2.act(7, True), [P('L4C', 150)] * 4)
    put(p2.act(8, True), [P('L4C', 150) + 1] * 4)
    return p2, F0 + 72
```

```python
from g5 import *

ORDER = [0, 4, 1, 5, 2, 6, 3, 7, 8]
LEVEL = [0, 0, 1, 1, 2, 2, 3, 4, 4]
A_, B_, C_, D_, E_ = [32768 * i for i in range(5)]
RED = 0
REDQ = 17408


REDQ_ = REDQ


class P2:
    def __init__(self, s, SL, abuf, acc2, red=(0, 2 * REDQ)):
        self.s = s
        self.SL = [list(x) if isinstance(x, (list, tuple)) else [x + q * 8192 for q in range(4)] for x in SL]
        self.abuf = abuf
        self.acc2 = acc2
        self.ta = [s.sQ[2], s.sQ[0]]
        s.sTq = s.sQ[1]
        s.sTa = s.sQ[2]
        self.t = [s.sQ[3]] + list(s.sQo)
        self.vOffW2 = s.vOffW
        self.vOffWO = s.vOffS
        self.vTrP = [s.vTr[0], s.vTr[1]]
        self.vXo = s.vTr[2]
        self.vRedW, self.vRedR = s.vCSw, s.vCSr
        self.vXr = s.augA
        self.win = None
        self.red = red

    def setup_early(self, ffn):
        s = self.s
        t0, t1, t2, t3, t4 = self.t
        o = []
        def E(t): o.append(I(t))
        E('s_and_b32 s%d, s2, 7' % t0)
        E('s_lshr_b32 s%d, s2, 3' % t1)
        if XL:
            E('s_and_b32 s%d, s%d, 1' % (t0, s.sRb))
            E('s_lshl_b32 s%d, s%d, 3' % (t0, t0))
            E('s_add_u32 s%d, s%d, s%d' % (t1, t0, s.sJ))
            E('s_lshr_b32 s%d, s%d, 1' % (t2, s.sRb))
            E('s_mul_i32 s%d, s%d, 28' % (t2, t2))
            if not ffn:
                E('s_add_u32 s%d, s%d, 16' % (t2, t2))
                grp = [I('s_cmp_ge_u32 s%d, 12' % t1),
                       I('s_cselect_b32 s%d, 1, 0' % s.sIdle),
                       I('s_cselect_b32 s%d, 0, s%d' % (t1, t1))]
                szs = [I('s_cselect_b32 s%d, 0, %d' % (s.sW2 + 2, 1792 * 896)),
                       I('s_cselect_b32 s%d, 0, %d' % (s.sWO + 2, 448 * 896))]
                if os.environ.get('PF3A') or P('PF4A', 0): self.late_sz = [I('s_cmp_lg_u32 s%d, 0' % s.sIdle)] + szs
                else: grp += szs
                o.append(grp)
            E('s_add_u32 s%d, s%d, s%d' % (t2, t2, t1))
        elif ffn:
            E('s_lshl_b32 s%d, s%d, 5' % (t2, t0))
            E('s_sub_u32 s%d, s%d, 128' % (t2, t2))
            E('s_add_u32 s%d, s%d, s%d' % (t2, t2, t1))
        else:
            E('s_mul_i32 s%d, s%d, 24' % (t2, t0))
            E('s_add_u32 s%d, s%d, 128' % (t2, t2))
            grp = [I('s_cmp_ge_u32 s%d, 24' % t1),
                   I('s_cselect_b32 s%d, 1, 0' % s.sIdle),
                   I('s_cselect_b32 s%d, 0, s%d' % (t1, t1))]
            szs = [I('s_cselect_b32 s%d, 0, %d' % (s.sW2 + 2, 1792 * 896)),
                   I('s_cselect_b32 s%d, 0, %d' % (s.sWO + 2, 448 * 896))]
            if os.environ.get('PF3A') or P('PF4A', 0): self.late_sz = [I('s_cmp_lg_u32 s%d, 0' % s.sIdle)] + szs
            else: grp += szs
            o.append(grp)
            E('s_add_u32 s%d, s%d, s%d' % (t2, t2, t1))
        E('s_mul_i32 s%d, s%d, 9363' % (s.sTb, t2))
        E('s_lshr_b32 s%d, s%d, 16' % (s.sTb, s.sTb))
        E('s_mul_i32 s%d, s%d, 7' % (t3, s.sTb))
        E('s_sub_u32 s%d, s%d, s%d' % (s.sCb, t2, t3))
        E('s_lshl_b32 s%d, s%d, 7' % (s.sCb, s.sCb))
        E('s_lshr_b32 s%d, s%d, 1' % (s.sKq, s.sWv))
        E('s_and_b32 s%d, s%d, 1' % (s.sTh, s.sWv))
        E('s_lshl_b32 s%d, s%d, 1' % (t0, s.sTb))
        E('s_add_u32 s%d, s%d, s%d' % (t0, t0, s.sTh))
        E('s_lshl_b32 s%d, s%d, 12' % (s.sPollOff, t0))
        E('s_lshl_b32 s%d, s%d, 9' % (t1, s.sKq))
        E('s_add_u32 s%d, s%d, s%d' % (s.sPollOff, s.sPollOff, t1))
        if FLAGS_OFF: E('s_add_u32 s%d, s%d, 0x%x' % (s.sPollOff, s.sPollOff, FLAGS_OFF))
        E('s_mul_i32 s%d, s%d, 144' % (t0, t0))
        E('s_add_u32 s%d, s%d, %d' % (t0, t0, ACT_OFF >> 10))
        E('s_mul_i32 s%d, s%d, 28' % (t1, s.sKq))
        E('s_add_u32 s%d, s%d, s%d' % (s.sAct, t0, t1))
        E('s_lshl_b32 s%d, s%d, 10' % (s.sAct, s.sAct))
        E('s_lshl_b32 s%d, s%d, 3' % (t1, s.sKq))
        E('s_add_u32 s%d, s%d, s%d' % (s.sActO, t0, t1))
        E('s_add_u32 s%d, s%d, 112' % (s.sActO, s.sActO))
        E('s_lshl_b32 s%d, s%d, 10' % (s.sActO, s.sActO))
        E('s_mul_i32 s%d, s%d, %d' % (t0, s.sTb, 64 * 896))
        E('s_add_u32 s%d, s%d, s%d' % (s.sOffO, t0, s.sCb))
        sc = o
        o = []
        if getattr(self, 'late_sz', None): o.append(self.late_sz)
        v0_, v1_, v2_ = s.vT0, s.vT1, s.vT2
        E('v_lshrrev_b32 v%d, 3, v0' % v0_)
        E('v_and_b32 v%d, 7, v0' % v1_)
        E('v_lshrrev_b32 v%d, 2, v0' % v2_)
        E('v_and_b32 v%d, 4, v%d' % (v2_, v2_))
        E('v_xor_b32 v%d, v%d, v%d' % (v1_, v1_, v2_))
        E('v_lshlrev_b32 v%d, 4, v%d' % (v1_, v1_))
        E('s_lshl_b32 s%d, s%d, 3' % (t0, s.sWv))
        E('v_add_u32 v%d, s%d, v%d' % (v2_, t0, v0_))
        E('s_movk_i32 s%d, 896' % t1)
        E('v_mad_u32_u24 v%d, v%d, s%d, v%d' % (self.vOffW2, v2_, t1, v1_))
        return sc, o

    def setup_tr(self):
        s = self.s
        t0 = self.t[0]
        o = []
        def E(t): o.append(I(t))
        a, b = self.vTrP[0], self.vTrP[1]
        E('v_lshrrev_b32 v%d, 5, v0' % a)
        E('v_lshlrev_b32 v%d, 9, v%d' % (a, a))
        E('v_bfe_u32 v%d, v0, 2, 2' % b)
        E('v_lshl_add_u32 v%d, v%d, 7, v%d' % (a, b, a))
        E('v_bfe_u32 v%d, v0, 4, 1' % b)
        E('v_lshl_add_u32 v%d, v%d, 5, v%d' % (a, b, a))
        E('v_and_b32 v%d, 3, v0' % b)
        E('v_lshl_add_u32 v%d, v%d, 3, v%d' % (a, b, a))
        E('v_bfe_u32 v%d, v0, 3, 1' % b)
        E('v_lshl_add_u32 v%d, v%d, 6, v%d' % (a, b, a))
        E('s_lshl_b32 s%d, s%d, 13' % (t0, s.sKq))
        E('v_add_u32 v%d, s%d, v%d' % (a, t0, a))
        E('v_xor_b32 v%d, 64, v%d' % (b, a))
        self.win = 0
        return o

    def setup_late(self):
        s = self.s
        t0, t1 = self.t[0], self.t[1]
        v0_, v1_, v2_ = s.vT0, s.vT1, s.vT2
        o = []
        def E(t, **k): o.append(I(t, **k))
        E('v_lshrrev_b32 v%d, 3, v0' % v0_)
        E('v_and_b32 v%d, 7, v0' % v1_)
        E('s_lshl_b32 s%d, s%d, 3' % (t0, s.sWv))
        E('v_add_u32 v%d, s%d, v%d' % (v2_, t0, v0_))
        E('s_movk_i32 s%d, 896' % t1)
        E('v_lshlrev_b32 v%d, 4, v%d' % (self.vXo, v1_))
        E('v_mad_u32_u24 v%d, v%d, s%d, v%d' % (self.vXo, v2_, t1, self.vXo))
        E('buffer_load_dwordx4 v[%d:%d], v%d, s[%d:%d], s%d offen' % (self.vXr, self.vXr + 3, self.vXo, s.sX, s.sX + 3, s.sOffO), tag='xr')
        E('v_mul_u32_u24 v%d, 272, v%d' % (self.vRedR, v2_))
        E('v_lshl_add_u32 v%d, v%d, 5, v%d' % (self.vRedR, v1_, self.vRedR))
        if self.red[0]: E('v_add_u32 v%d, %d, v%d' % (self.vRedR, self.red[0], self.vRedR))
        E('s_and_b32 s%d, s%d, 3' % (t0, s.sWv))
        E('s_lshl_b32 s%d, s%d, 3' % (t0, t0))
        E('v_add_u32 v%d, s%d, v%d' % (v0_, t0, v0_))
        E('v_min_u32 v%d, 27, v%d' % (v0_, v0_))
        E('s_lshr_b32 s%d, s%d, 2' % (t0, s.sWv))
        E('s_mul_i32 s%d, s%d, 28' % (t0, t0))
        E('v_add_u32 v%d, s%d, v%d' % (v0_, t0, v0_))
        E('v_lshrrev_b32 v%d, 2, v0' % v2_)
        E('v_and_b32 v%d, 4, v%d' % (v2_, v2_))
        E('v_xor_b32 v%d, v%d, v%d' % (v1_, v1_, v2_))
        E('v_lshlrev_b32 v%d, 4, v%d' % (v1_, v1_))
        E('v_mad_u32_u24 v%d, v%d, s%d, v%d' % (self.vOffWO, v0_, t1, v1_))
        E('v_and_b32 v%d, 31, v0' % v0_)
        E('s_lshl_b32 s%d, s%d, 5' % (t0, s.sTh))
        E('v_add_u32 v%d, s%d, v%d' % (v0_, t0, v0_))
        E('v_mul_u32_u24 v%d, 272, v%d' % (v0_, v0_))
        E('s_mul_i32 s%d, s%d, %d' % (t0, s.sKq, REDQ))
        if self.red[0]: E('s_add_u32 s%d, s%d, %d' % (t0, t0, self.red[0]))
        ex = self.red[1] - self.red[0] - 2 * REDQ
        if ex:
            E('s_lshr_b32 s%d, s%d, 1' % (t1, s.sKq))
            E('s_mul_i32 s%d, s%d, %d' % (t1, t1, ex))
            E('s_add_u32 s%d, s%d, s%d' % (t0, t0, t1))
        E('v_add_u32 v%d, s%d, v%d' % (v0_, t0, v0_))
        E('v_lshrrev_b32 v%d, 5, v0' % v1_)
        E('v_lshl_add_u32 v%d, v%d, 4, v%d' % (self.vRedW, v1_, v0_))
        return o

    def dma(self, p):
        s = self.s
        st = ORDER[p]
        out = []
        for q in range(4):
            d = self.SL[p][q]
            if st < 7:
                srd_, voff, c = s.sW2, self.vOffW2, 448 * 896 * q + st * 64 * 896
            else:
                srd_, voff, c = s.sWO, self.vOffWO, 112 * 896 * q + (st - 7) * 56 * 896
            g = [I('s_add_u32 m0, s%d, %d' % (s.sM0w, d))]
            if c: g.append(I('s_add_u32 s%d, s%d, %d' % (s.sTq, s.sCb, c)))
            g.append(I('buffer_load_dwordx4 v%d, s[%d:%d], s%d offen lds' % (voff, srd_, srd_ + 3, s.sTq if c else s.sCb),
                       tag=('w2', p, q), lds=('w', (d, d + 8192), ('w2', p, q))))
            out.append(g)
        return out

    def act(self, p, split=False):
        s = self.s
        st = ORDER[p]
        base, c = (s.sAct, 4096 * st) if st < 7 else (s.sActO, 4096 * (st - 7))
        out = []
        sreg = self.ta[p % 2]
        for k in range(4):
            g = []
            if c and k == 0: g.append(I('s_add_u32 s%d, s%d, %d' % (sreg, base, c)))
            r = self.abuf[p][k]
            g.append(I('buffer_load_dwordx4 v[%d:%d], v%d, s[%d:%d], s%d offen offset:%d' % (r, r + 3, s.vLane16, s.sWS, s.sWS + 3, sreg if c else base, k * 1024), tag=('a', p, k)))
            out.append(g)
        return out if split else [i for g in out for i in g]

    def wtags(self, p):
        return [('w2', p, q) for q in range(4)]

    def place_main(self, tl, F0):
        s = self.s
        base = [q * 8192 for q in range(4)]
        for p in range(9):
            a = self.SL[p]
            rel = [a[q] - base[q] for q in range(4)]
            if len(set(rel)) == 1 and 0 <= rel[0] <= 65535 - 8192:
                off = rel[0]
            else:
                assert rel[0] == rel[1] and rel[2] == rel[3]
                if rel[0] == rel[2]:
                    bump = [I('v_add_u32 v%d, 0x%x, v%d' % (v, rel[0] & 0xffffffff, v)) for v in self.vTrP]
                else:
                    bump = [I('s_lshr_b32 s%d, s%d, 1' % (s.sT0, s.sKq)),
                            I('s_mul_i32 s%d, s%d, 0x%x' % (s.sT0, s.sT0, (rel[2] - rel[0]) & 0xffffffff)),
                            I('s_add_u32 s%d, s%d, 0x%x' % (s.sT0, s.sT0, rel[0] & 0xffffffff))]
                    bump += [I('v_add_u32 v%d, s%d, v%d' % (v, s.sT0, v)) for v in self.vTrP]
                tl.add(F0 + 8 * p - 4, 'd', [bump])
                base = list(a); off = 0
            an = ('r', [(a[q], a[q] + 8192) for q in range(4)], [('w2', p, q) for q in range(4)])
            for k in range(4):
                for ct in range(2):
                    g = F0 + 8 * p + 2 * k + ct
                    d = s.slot(g)
                    imm = off + k * 2048
                    tl.add(g - 4, 'd', [I('ds_read_b64_tr_b16 v[%d:%d], v%d offset:%d' % (d, d + 1, self.vTrP[ct], imm), lds=an),
                                        I('ds_read_b64_tr_b16 v[%d:%d], v%d offset:%d' % (d + 2, d + 3, self.vTrP[ct], imm + 1024), lds=an)])
                    acc = self.acc2[ct]
                    tl.add(g, 'm', s.mfma(acc, d, self.abuf[p][k], None if (p == 0 and k == 0) else acc))

    def finish(self):
        s = self.s
        E = s.E
        an = [(self.red[0], self.red[0] + 2 * REDQ), (self.red[1], self.red[1] + 2 * REDQ)]
        for ct in range(2):
            for g4 in range(4):
                r = self.acc2[ct] + 4 * g4
                E('ds_write_b128 v%d, v[%d:%d] offset:%d' % (self.vRedW, r, r + 3, 128 * ct + 32 * g4), lds=('w', an, 'red'))
        d2 = self.red[1] - self.red[0]
        far = d2 + REDQ + 16 > 65535
        if far: E('v_add_u32 v%d, %d, v%d' % (s.vT1, d2, self.vRedR))
        s.emit(s.barrier([], 'ldsw', name='RED'))
        R = s.ring
        for q in range(4):
            for hf in range(2):
                r = R + 8 * q + 4 * hf
                if q < 2: va, of = self.vRedR, REDQ * q + 16 * hf
                elif far: va, of = s.vT1, REDQ * (q - 2) + 16 * hf
                else: va, of = self.vRedR, d2 + REDQ * (q - 2) + 16 * hf
                E('ds_read_b128 v[%d:%d], v%d offset:%d' % (r, r + 3, va, of), lds=('r', an, 'red'))
        X = self.acc2[0]
        for j in range(4):
            E('v_lshlrev_b32 v%d, 16, v%d' % (X + 2 * j, self.vXr + j))
            E('v_and_b32 v%d, 0xffff0000, v%d' % (X + 2 * j + 1, self.vXr + j))
        E('v_mov_b32 v%d, 0x%x' % (s.vT0, LN2))
        for j in range(8): E('v_add_f32 v%d, v%d, v%d' % (R + j, R + j, R + 8 + j))
        for j in range(8): E('v_add_f32 v%d, v%d, v%d' % (R + 16 + j, R + 16 + j, R + 24 + j))
        for j in range(8): E('v_add_f32 v%d, v%d, v%d' % (R + j, R + j, R + 16 + j))
        for j in range(8): E('v_fmac_f32 v%d, v%d, v%d' % (X + j, R + j, s.vT0))
        for j in range(4): E('v_cvt_pk_bf16_f32 v%d, v%d, v%d' % (R + j, X + 2 * j, X + 2 * j + 1))
        E('buffer_store_dwordx4 v[%d:%d], v%d, s[%d:%d], s%d offen%s' % (R, R + 3, self.vXo, s.sOUT, s.sOUT + 3, s.sOffO, os.environ.get('OUTM', '').replace('+', ' ')), tag='out')


def quads(*bases):
    out = []
    for b in bases:
        if isinstance(b, tuple): out.append([b[0], b[0] + 4, b[1], b[1] + 4])
        else: out.append([b, b + 4, b + 8, b + 12])
    return out
```
